```python
import torch

def _softmax(x, axis=-1):
    return torch.softmax(x, dim=axis)
def _gelu(x):
    return torch.nn.functional.gelu(x, approximate="tanh")
def _silu(x):
    return torch.nn.functional.silu(x)
def _sigmoid(x):
    return torch.sigmoid(x)
def _layernorm(x, axis=-1, eps=1e-5):
    m = x.mean(dim=axis, keepdim=True)
    v = x.var(dim=axis, keepdim=True, unbiased=False)
    return (x - m) / torch.sqrt(v + eps)
def _scatter_add(tgt, idx, src, axis=0):
    return tgt.clone().index_add_(axis, idx, src)
def _segment_sum(src, seg, n):
    out = torch.zeros((n,) + src.shape[1:], dtype=src.dtype)
    return out.index_add_(0, seg, src)
def _pad(x, pw):
    flat = tuple(v for pair in reversed(pw) for v in pair)
    return torch.nn.functional.pad(x, flat)

kernel_name = 'concat_heads__ssm_conv_s5__mha_block__prompt'

def setup_inputs():

    _w = (lambda a: (lambda t: t.to(torch.bfloat16) if t.is_floating_point() else t)(torch.as_tensor(a)))
    def _A_setup():
        B, S, D = 1, 2048, 512
        P = D
        Lambda_re = -0.5 * (lambda _x: torch.exp(torch.as_tensor(_x)))((lambda *s: torch.randn(*s, dtype=torch.bfloat16) * 0.4)(P))
        Lambda_im = (lambda *s: torch.randn(*s, dtype=torch.bfloat16) * 0.8)(P) * 1.0
        B_re = (lambda *s: torch.randn(*s, dtype=torch.bfloat16) * 0.8)(P, D) * (D ** -0.5)
        B_im = (lambda *s: torch.randn(*s, dtype=torch.bfloat16) * 0.8)(P, D) * (D ** -0.5)
        C_re = (lambda *s: torch.randn(*s, dtype=torch.bfloat16) * 0.4)(D, P) * (P ** -0.5)
        C_im = (lambda *s: torch.randn(*s, dtype=torch.bfloat16) * 0.8)(D, P) * (P ** -0.5)
        log_dt = (lambda *s: torch.randn(*s, dtype=torch.bfloat16) * 0.4)(P) * 0.3 - 2.0
        Dskip = (lambda *s: torch.randn(*s, dtype=torch.bfloat16) * 0.1)(D)
        return {
            "x": _w((lambda *s: torch.randn(*s, dtype=torch.bfloat16) * 0.05)(B, S, D)),
            "Lambda_re": _w(Lambda_re),
            "Lambda_im": _w(Lambda_im),
            "B_re": _w(B_re),
            "B_im": _w(B_im),
            "C_re": _w(C_re),
            "C_im": _w(C_im),
            "log_dt": _w(log_dt),
            "Dskip": _w(Dskip),
        }
    _A_in = _A_setup()

    def _B_setup():
        B, S, D, H = 1, 2048, 512, 32
        return {
            "x": _w((lambda *s: torch.randn(*s, dtype=torch.bfloat16) * 0.2)(B, S, D)),
            "wqkv": _w((lambda *s: torch.randn(*s, dtype=torch.bfloat16) * 0.2)(D, 3 * D)),
            "wo": _w((lambda *s: torch.randn(*s, dtype=torch.bfloat16) * 0.05)(D, D)),
        }
    _B_in = _B_setup()

    return {
        "A_x": _A_in["x"],
        "A_Lambda_re": _A_in["Lambda_re"],
        "A_Lambda_im": _A_in["Lambda_im"],
        "A_B_re": _A_in["B_re"],
        "A_B_im": _A_in["B_im"],
        "A_C_re": _A_in["C_re"],
        "A_C_im": _A_in["C_im"],
        "A_log_dt": _A_in["log_dt"],
        "A_Dskip": _A_in["Dskip"],
        "B_x": _B_in["x"],
        "B_wqkv": _B_in["wqkv"],
        "B_wo": _B_in["wo"],
    }

def reference(A_x, A_Lambda_re, A_Lambda_im, A_B_re, A_B_im, A_C_re, A_C_im, A_log_dt, A_Dskip, B_x, B_wqkv, B_wo):
    def _A_ref(x, Lambda_re, Lambda_im, B_re, B_im, C_re, C_im, log_dt, Dskip):
        Bsz, L, H = x.shape
        Lam = Lambda_re + 1j * Lambda_im
        Bmat = B_re + 1j * B_im
        Cmat = C_re + 1j * C_im
        dt = torch.exp(log_dt)
        Lam_bar = torch.exp(dt * Lam)
        B_bar = ((Lam_bar - 1.0) / Lam)[:, None] * Bmat
        Bu = torch.einsum("bld,pd->blp", x + 0j, B_bar)
        h = torch.zeros_like(Bu[:, 0, :])
        hs = []
        for t in range(L):
            h = Lam_bar[None, :] * h + Bu[:, t, :]
            hs.append(h)
        hseq = torch.stack(hs, 1)
        y = 2.0 * torch.einsum("blp,dp->bld", hseq, Cmat).real + x * Dskip[None, None, :]
        return y

    def _B_ref(x, wqkv, wo):
        B, S, D = x.shape
        H = 32
        Dh = D // H
        qkv = (lambda x, *d: x.permute(*d))((x @ wqkv).reshape(B, S, 3, H, Dh), 2, 0, 3, 1, 4)
        q, k, v = qkv[0], qkv[1], qkv[2]
        scores = torch.einsum("bhqd,bhkd->bhqk", q, k) * (Dh ** -0.5)
        p = _softmax(scores, axis=-1)
        o = torch.einsum("bhqk,bhkd->bhqd", p, v)
        return (lambda x, *d: x.permute(*d))(o, 0, 2, 1, 3).reshape(B, S, D) @ wo

    a = _A_ref(A_x, A_Lambda_re, A_Lambda_im, A_B_re, A_B_im, A_C_re, A_C_im, A_log_dt, A_Dskip)
    b = _B_ref(B_x, B_wqkv, B_wo)
    return torch.concatenate([a, b], axis=-1)
```

```python
import re

class Asm:
    def __init__(self):
        self.lines = []
    def __call__(self, s):
        for l in s.strip("\n").split("\n"):
            l = l.strip()
            if l:
                self.lines.append(l)
    def label(self, name):
        self.lines.append(name + ":")
    def text(self):
        out = []
        for l in self.lines:
            if l.endswith(":") or l.startswith("."):
                out.append(l)
            else:
                out.append("    " + l)
        return "\n".join(out) + "\n"

def v(a, n=1):
    return "v%d" % a if n == 1 else "v[%d:%d]" % (a, a + n - 1)
def s(a, n=1):
    return "s%d" % a if n == 1 else "s[%d:%d]" % (a, a + n - 1)

_reg = re.compile(r"\b([vs])(?:(\d+)|\[(\d+):(\d+)\])")
def regs(op):
    out = set()
    for m in _reg.finditer(op):
        if m.group(2) is not None:
            out.add((m.group(1), int(m.group(2))))
        else:
            for r in range(int(m.group(3)), int(m.group(4)) + 1):
                out.add((m.group(1), r))
    if re.search(r"\bvcc\b", op): out.add(("s", "vcc"))
    if re.search(r"\bm0\b", op): out.add(("s", "m0"))
    if re.search(r"\bexec\b", op): out.add(("s", "exec"))
    return out

TRANS = ("v_exp_", "v_log_", "v_rcp_", "v_rsq_", "v_sqrt_", "v_sin_", "v_cos_")
def parse(l):
    l = l.split(";")[0].strip()
    if not l or l.endswith(":") or l.startswith("."):
        return None
    parts = l.split(None, 1)
    mn = parts[0]
    ops = [o.strip() for o in parts[1].split(",")] if len(parts) > 1 else []
    d = dict(mn=mn, ops=ops, text=l, w=set(), r=set())
    isv = mn.startswith("v_")
    d["mfma"] = mn.startswith("v_mfma") or mn.startswith("v_smfmac")
    d["valu"] = isv and not d["mfma"]
    d["trans"] = mn.startswith(TRANS)
    d["vmem"] = mn.startswith(("buffer_", "global_"))
    d["ds"] = mn.startswith("ds_")
    d["salu"] = mn.startswith("s_")
    d["states"] = 1
    if mn == "s_nop": d["states"] = int(ops[0], 0) + 1
    if isv:
        nd = 1
        if mn.startswith(("v_add_co", "v_sub_co", "v_addc_co", "v_subb_co")): nd = 2
        if mn.startswith("v_permlane") :
            d["w"] = regs(ops[0]) | regs(ops[1]); d["r"] = set(d["w"])
        else:
            for o in ops[:nd]: d["w"] |= regs(o)
            for o in ops[nd:]: d["r"] |= regs(o)
            if mn.startswith(("v_fmac", "v_pk_fmac", "v_dot2c")) or "UNUSED_PRESERVE" in l or mn.startswith("v_writelane"): d["r"] |= regs(ops[0])
            if mn.startswith("v_cndmask") and len(ops) == 3: d["r"].add(("s", "vcc"))
        if d["mfma"]:
            d["A"] = regs(ops[1]); d["B"] = regs(ops[2]); d["C"] = regs(ops[3]); d["D"] = regs(ops[0])
            d["passes"] = 8 if "32x32" in mn else 4
    elif d["vmem"]:
        allr = set()
        for o in ops: allr |= regs(o)
        if "store" in mn or ("atomic" in mn):
            d["r"] = allr
            d["sdata"] = regs(ops[0]) if mn.startswith("buffer_") else regs(ops[1])
            d["wide"] = "x3" in mn or "x4" in mn
        elif " lds" in l or "_lds_" in mn:
            d["r"] = allr | {("s", "m0")}; d["dma"] = True
        else:
            d["w"] = regs(ops[0])
            for o in ops[1:]: d["r"] |= regs(o)
            if "d16" in mn: d["r"] |= regs(ops[0])
    elif d["ds"]:
        if mn.startswith(("ds_read", "ds_bpermute", "ds_permute", "ds_swizzle")) or "_rtn" in mn:
            d["w"] = regs(ops[0])
            for o in ops[1:]: d["r"] |= regs(o)
        else:
            for o in ops: d["r"] |= regs(o)
    elif d["salu"]:
        if mn.startswith(("s_cmp", "s_cbranch", "s_branch", "s_waitcnt", "s_barrier", "s_nop", "s_endpgm", "s_setprio", "s_sleep", "s_bitcmp")):
            for o in ops: d["r"] |= regs(o)
            if "vcc" in mn: d["r"].add(("s", "vcc"))
        else:
            if ops: d["w"] = regs(ops[0])
            for o in ops[1:]: d["r"] |= regs(o)
            if "saveexec" in mn: d["w"].add(("s", "exec"))
    return d

def need(p, c):
    n = 0
    pv = {r for r in p["w"] if r[0] == "v"}; ps = {r for r in p["w"] if r[0] == "s"}
    if p["valu"]:
        if c["mfma"] and pv & (c["A"] | c["B"] | c["C"]): n = max(n, 2)
        if c["mfma"] and ("s", "exec") in ps: n = max(n, 4)
        if p["trans"] and c["valu"] and not c["trans"] and pv & c["r"]: n = max(n, 1)
        if c["mn"].startswith(("v_readfirstlane", "v_readlane")) and pv & c["r"]: n = max(n, 1)
        if c["mn"].startswith("v_permlane") and pv & c["r"]: n = max(n, 2)
        if "dpp" in c["text"] and pv & c["r"]: n = max(n, 2)
        if ("sdwa" in p["mn"] or "op_sel" in p["text"]) and c["valu"] and pv & (c["r"] | c["w"]) and not p["mn"].startswith("v_pk_"): n = max(n, 1)
        if c["vmem"] and ps & c["r"]: n = max(n, 5)
        if c["valu"] and ps & c["r"]: n = max(n, 2)
        if c["mn"].startswith(("v_readlane", "v_writelane")) and ps & c["r"]: n = max(n, 4)
        if c["salu"] and ps & c["r"]: n = max(n, 1)
    if p["salu"] and ("s", "m0") in ps and c.get("dma"): n = max(n, 1)
    if p["mfma"]:
        P = p["passes"]; t = {4: (6, 8, 3), 8: (10, 12, 7)}[P]
        D = p["D"]
        if c["mfma"]:
            if D & (c["A"] | c["B"]): n = max(n, t[1])
            if D & c["C"] and not (c["C"] == D and c["passes"] == P): n = max(n, t[0])
            if D & c["D"] and not (c["C"] == D and c["passes"] == P) : n = max(n, t[0])
        elif (c["valu"] or c["vmem"] or c["ds"]) and D & (c["r"] | c["w"]): n = max(n, t[1])
        if c["valu"] and p["C"] & c["w"]: n = max(n, t[2])
    if p["vmem"] and p.get("wide") and p["sdata"] & c["w"]:
        n = max(n, 2 if c["valu"] else 1)
    return n

def lint(lines):
    ins = []; labels = {}
    for l in lines:
        if l.endswith(":"):
            labels[l[:-1]] = len(ins); continue
        d = parse(l)
        if d: ins.append(d)
    succ = []
    for k, d in enumerate(ins):
        sc = []
        if d["mn"] == "s_endpgm": pass
        elif d["mn"] == "s_branch": sc = [labels[d["ops"][0]]]
        elif d["mn"].startswith("s_cbranch"): sc = [k + 1, labels[d["ops"][0]]]
        elif d["mn"].startswith("s_setpc"): sc = []
        else: sc = [k + 1]
        succ.append([x for x in sc if x < len(ins)])
    probs = []
    for k, p in enumerate(ins):
        if not (p["valu"] or p["mfma"] or p["salu"] or p["vmem"]): continue
        stack = [(x, 0) for x in succ[k]]; seen = set()
        while stack:
            x, dist = stack.pop()
            if (x, dist) in seen: continue
            seen.add((x, dist))
            c = ins[x]
            nd = need(p, c)
            if nd > dist:
                probs.append("need %d have %d: [%d] %s  ->  [%d] %s" % (nd, dist, k, p["text"], x, c["text"]))
            nd2 = dist + c["states"]
            if nd2 < 13:
                for y in succ[x]: stack.append((y, nd2))
    return sorted(set(probs))
```

```python
import sys
from asmlib import Asm, v, s, lint

NAME = "concat_heads__ssm_conv_s5__mha_block__prompt"
WS_XCC, WS_FKVG, WS_FL, WS_FP, WS_FG, WS_FO, WS_E = 0x1000, 0x2000, 0x2800, 0x3000, 0x4000, 0x6000, 0x10000
MB = 1 << 20
WS_KVG, WS_KVL, WS_Q, WS_G, WS_O, WS_C, WS_WO, WS_DBG = 1*MB, 5*MB, 9*MB, 11*MB, 15*MB, 17*MB, 18*MB, 19*MB
WS_SIZE = 20 * MB
L_RING = 65536
L_SCR = 131072
L_XW = 147456
L_CNT = L_XW + 1024
LDS_BYTES = 163840
SPIN = 1 << 18

sW, sJ, sI, sTQ, sHG, sTAG, sEP, sFAST = 3, 16, 17, 18, 19, 20, 21, 22
S_XB, S_WQ, S_WS, S_OUT, S_XA = 4, 8, 12, 36, 40
sVM = 44
sT = list(range(23, 36))
P_AX, P_LRE, P_LIM, P_BRE, P_BIM, P_CRE, P_CIM, P_LDT = 64, 66, 68, 70, 72, 74, 76, 78
P_DSK, P_WO, P_OUT = 80, 84, 86
sXCC = 46
sSPIN = 47
vL = 1
VSTAMP = 167

def gen(stamps=False, force_safe=False, opts=None):
    opts = opts or {}
    A = Asm()
    uid = [0]
    def lab(p):
        uid[0] += 1
        return "L_%s%d" % (p, uid[0])
    def stamp(k):
        if stamps:
            A("s_memrealtime s[98:99]\ns_waitcnt lgkmcnt(0)\nv_writelane_b32 v%d, s98, %d" % (VSTAMP, k))
    def stamp_out():
        if stamps:
            A("""s_mul_i32 s98, s2, 12
                 s_add_u32 s98, s98, s%d
                 s_lshl_b32 s98, s98, 6
                 s_add_u32 s98, s98, %d
                 v_lshlrev_b32 v166, 2, v%d
                 s_mov_b64 exec, 0xffff
                 buffer_store_dword v%d, v166, s[12:15], s98 offen
                 s_mov_b64 exec, -1""" % (sW, WS_DBG, vL, VSTAMP))
    def wait(vm=None, lg=None):
        p = []
        if vm is not None: p.append("vmcnt(%d)" % vm)
        if lg is not None: p.append("lgkmcnt(%d)" % lg)
        A("s_waitcnt " + " ".join(p))
    def bar(): A("s_barrier")
    def mode_stores(lines):
        a, b = lab("safe"), lab("done")
        A("s_cmp_eq_u32 s%d, 0\ns_cbranch_scc1 %s" % (sFAST, a))
        for l in lines: A(l)
        A("s_branch %s" % b); A.label(a)
        for l in lines: A(l + " sc1")
        A.label(b)
    def one_lane(lines):
        A("s_mov_b64 exec, 1")
        for l in lines: A(l)
        A("s_mov_b64 exec, -1")
    def slot_load(dst, tmp):
        A("""v_and_b32 v%d, 31, v%d
             v_lshlrev_b32 v%d, 3, v%d
             s_lshl_b32 s23, s%d, 8
             s_add_u32 s23, s23, %d
             buffer_load_dwordx2 %s, v%d, s[12:15], s23 offen sc1""" % (tmp, vL, tmp, tmp, sJ, WS_XCC, v(dst, 2), tmp))
    def slot_eval(dst):
        A("""v_cmp_eq_u32 s[24:25], s%d, v%d
             v_cmp_eq_u32 vcc, s%d, v%d
             s_nop 1
             s_and_b64 vcc, vcc, s[24:25]
             s_cmp_eq_u64 vcc, -1
             s_cselect_b32 s%d, %d, 0""" % (sTAG, dst, sXCC, dst + 1, sFAST, 0 if force_safe else 1))
    def poll_all(addr_v, soff, tmp):
        l, d = lab("poll"), lab("pd")
        A("s_mov_b32 s%d, 0" % sSPIN)
        A.label(l)
        A("""buffer_load_dword v%d, v%d, s[12:15], %s offen sc1
             s_add_u32 s%d, s%d, 1
             s_cmp_gt_u32 s%d, %d
             s_cbranch_scc1 %s
             s_waitcnt vmcnt(0)
             v_cmp_ne_u32 vcc, s%d, v%d
             s_nop 1
             s_cbranch_vccnz %s""" % (tmp, addr_v, soff, sSPIN, sSPIN, sSPIN, SPIN, d, sTAG, tmp, l))
        A.label(d)
    def params(lre, lim, ldt, lr, li, t0, t1, t2):
        A("""v_lshlrev_b32 v{lre}, 16, v{lre}
             v_lshlrev_b32 v{lim}, 16, v{lim}
             v_lshlrev_b32 v{ldt}, 16, v{ldt}
             v_mul_f32 v{ldt}, 0x3fb8aa3b, v{ldt}
             v_exp_f32 v{ldt}, v{ldt}
             s_nop 0
             v_cvt_pk_bf16_f32 v{ldt}, v{ldt}, v{ldt}
             v_and_b32 v{ldt}, 0xffff0000, v{ldt}
             v_mul_f32 v{t0}, v{ldt}, v{lre}
             v_mul_f32 v{t1}, v{ldt}, v{lim}
             v_mul_f32 v{t0}, 0x3fb8aa3b, v{t0}
             v_mul_f32 v{t1}, 0.15915494, v{t1}
             v_exp_f32 v{t0}, v{t0}
             v_rndne_f32 v{t2}, v{t1}
             v_sub_f32 v{t1}, v{t1}, v{t2}
             v_cos_f32 v{lr}, v{t1}
             v_sin_f32 v{li}, v{t1}
             s_nop 0
             v_mul_f32 v{lr}, v{lr}, v{t0}
             v_mul_f32 v{li}, v{li}, v{t0}""".format(lre=lre, lim=lim, ldt=ldt, lr=lr, li=li, t0=t0, t1=t1, t2=t2))
    def param_loads(lre, lim, ldt, tmp):
        A("""v_and_b32 v{t}, 31, v{L}
             s_lshr_b32 s23, s{i}, 1
             s_lshl_b32 s23, s23, 6
             v_lshl_add_u32 v{t}, v{t}, 1, s23
             global_load_ushort v{a}, v{t}, s[{pa}:{pa1}]
             global_load_ushort v{b}, v{t}, s[{pb}:{pb1}]
             global_load_ushort v{c}, v{t}, s[{pc}:{pc1}]""".format(t=tmp, L=vL, i=sI, a=lre, b=lim, c=ldt,
             pa=P_LRE, pa1=P_LRE+1, pb=P_LIM, pb1=P_LIM+1, pc=P_LDT, pc1=P_LDT+1))
    def tag_from_epoch():
        A("s_mul_i32 s%d, s%d, 0x9E3779B1\ns_add_u32 s%d, s%d, 0x7F4A7C15" % (sTAG, sEP, sTAG, sTAG))
    def dma_lane_regs(sidx, piece, rho):
        A("""v_lshrrev_b32 v{rho}, 3, v{L}
             v_lshrrev_b32 v{p}, 4, v{L}
             s_and_b32 s23, s{si}, 1
             s_lshl_b32 s23, s23, 2
             v_add_u32 v{p}, s23, v{p}
             v_xor_b32 v{p}, v{p}, v{L}
             v_and_b32 v{p}, 7, v{p}
             v_lshlrev_b32 v{p}, 4, v{p}""".format(rho=rho, p=piece, L=vL, si=sidx))
    def frag_addr(dst4, t0, t1):
        A("""v_and_b32 v{t0}, 31, v{L}
             v_lshrrev_b32 v{t1}, 1, v{t0}
             v_lshrrev_b32 v{d}, 5, v{L}
             v_xor_b32 v{t1}, v{t1}, v{d}
             v_and_b32 v{t1}, 7, v{t1}
             v_lshlrev_b32 v{t1}, 4, v{t1}
             v_lshl_add_u32 v{d}, v{t0}, 7, v{t1}""".format(t0=t0, t1=t1, L=vL, d=dst4))
        for ks in (1, 2, 3):
            A("v_xor_b32 v%d, %d, v%d" % (dst4 + ks, 32 * ks, dst4))

    A(".p2align 8\n.type %s_kernel,@function" % NAME)
    A.label(NAME + "_kernel")
    A.label("L_START")
    if stamps:
        A("v_mov_b32 v%d, 0" % VSTAMP)
        stamp(0)
    A("""s_cmp_ge_u32 s2, 0x100
         s_cbranch_scc1 L_END
         s_load_dwordx2 s[4:5], s[0:1], 72
         s_load_dwordx2 s[8:9], s[0:1], 80
         s_load_dwordx2 s[12:13], s[0:1], 112
         s_load_dwordx16 s[64:79], s[0:1], 0
         s_load_dwordx2 s[80:81], s[0:1], 64
         s_load_dwordx4 s[84:87], s[0:1], 88
         v_lshrrev_b32 v2, 6, v0
         v_and_b32 v1, 63, v0
         s_and_b32 s16, s2, 7
         v_readfirstlane_b32 s3, v2
         s_lshr_b32 s17, s2, 3
         s_and_b32 s18, s17, 3
         s_lshr_b32 s19, s17, 2
         s_mov_b32 s6, 0x200000
         s_mov_b32 s7, 0x20000
         s_mov_b32 s10, 0x180000
         s_mov_b32 s11, 0x20000
         s_mov_b32 s14, %d
         s_mov_b32 s15, 0x20000
         s_getreg_b32 s%d, hwreg(HW_REG_XCC_ID, 0, 4)""" % (WS_SIZE, sXCC))
    A("s_cmp_ge_u32 s3, 8\ns_cbranch_scc0 L_ATT")

    sS = 48
    vXB, vXB2, vWo_, vW2 = 2, 3, 4, 5
    LRE, LIM, LDT = 6, 7, 8
    LAM, MU, NU, RHO, RHO8 = 10, 12, 14, 16, 18
    NLI, NMI, NNI, NRI, NR8I = 20, 21, 22, 23, 24
    A("s_sub_u32 s%d, s3, 8\ns_setprio 3" % sS)
    dma_lane_regs(sS, vXB, 9)
    A("""v_lshl_add_u32 v{xb}, v9, 10, v{xb}
         v_add_u32 v{xb2}, {d1}, v{xb}
         v_lshrrev_b32 v10, 4, v{L}
         v_and_b32 v10, 1, v10
         v_lshlrev_b32 v10, 2, v10
         v_xor_b32 v10, v10, v{L}
         v_and_b32 v10, 7, v10
         v_lshlrev_b32 v10, 4, v10
         v_mul_u32_u24 v{w}, 3072, v9
         v_add_u32 v{w}, v{w}, v10
         v_add_u32 v{w2}, {d2}, v{w}""".format(xb=vXB, xb2=vXB2, w=vWo_, w2=vW2, L=vL, d1=16384-2048, d2=16*3072-2048))
    sN0, sXO, sWO_, sM = 49, 50, 51, 52
    A("""s_and_b32 s23, s{S}, 1
         s_lshr_b32 s24, s{S}, 1
         s_lshl_b32 s24, s24, 2
         s_add_u32 s{n0}, s23, s24
         s_lshl_b32 s23, s{J}, 2
         s_add_u32 s23, s23, s{TQ}
         s_lshl_b32 s23, s23, 16
         s_lshl_b32 s24, s{n0}, 13
         s_add_u32 s{xo}, s23, s24
         s_mul_i32 s23, s{n0}, 24576
         s_lshl_b32 s24, s{HG}, 7
         s_add_u32 s{wo}, s23, s24
         s_lshl_b32 s{m}, s{n0}, 10
         s_waitcnt lgkmcnt(0)
         s_load_dword s{ep}, s[12:13], 0""".format(S=sS, n0=sN0, J=sJ, TQ=sTQ, HG=sHG, xo=sXO, wo=sWO_, m=sM, ep=sEP))
    param_loads(LRE, LIM, LDT, 9)
    def dma_x(c_expr_m0, soff):
        A("""%s
             s_nop 0
             buffer_load_dwordx4 v%d, s[4:7], %s offen lds
             buffer_load_dwordx4 v%d, s[4:7], %s offen offset:2048 lds""" % (c_expr_m0, vXB, soff, vXB2, soff))
    def dma_w(c_expr_m0, soff):
        A("""%s
             s_nop 0
             buffer_load_dwordx4 v%d, s[8:11], %s offen lds
             buffer_load_dwordx4 v%d, s[8:11], %s offen offset:2048 lds""" % (c_expr_m0, vWo_, soff, vW2, soff))
    A("""s_mov_b32 s53, s{xo}
         s_add_u32 s54, s{wo}, 1024
         s_add_u32 s55, s{wo}, 2048
         s_mov_b32 s56, s{m}
         s_add_u32 s57, s{m}, {ring}
         s_mov_b32 s58, 0""".format(xo=sXO, wo=sWO_, m=sM, ring=L_RING))
    def kv_unit():
        dma_x("s_mov_b32 m0, s56", "s53")
        dma_w("s_mov_b32 m0, s57", "s54")
        dma_w("s_add_u32 m0, s57, 8192", "s55")
        A("""s_add_u32 s53, s53, 128
             s_add_u32 s54, s54, 196608
             s_add_u32 s55, s55, 196608
             s_add_u32 s56, s56, 8192
             s_add_u32 s57, s57, 16384""")
    A.label("L_HB")
    kv_unit()
    A("s_add_u32 s58, s58, 1\ns_cmp_lt_u32 s58, 6\ns_cbranch_scc1 L_HB")
    A("s_sub_u32 s57, s57, 98304")
    wait(vm=30); bar()
    stamp(1)
    params(LRE, LIM, LDT, LAM, LAM + 1, 25, 26, 27)
    wait(vm=24); bar()
    kv_unit()
    def csq(d, a):
        A("""v_mul_f32 v25, v{a1}, v{a1}
             v_mul_f32 v26, v{a}, v{a1}
             v_fma_f32 v{d}, v{a}, v{a}, -v25
             v_add_f32 v{d1}, v26, v26""".format(a=a, a1=a+1, d=d, d1=d+1))
    csq(MU, LAM); csq(MU, MU); csq(MU, MU); csq(MU, MU)
    wait(vm=24); bar()
    kv_unit()
    csq(NU, MU); csq(RHO, NU); csq(RHO, RHO); csq(RHO8, RHO); csq(RHO8, RHO8); csq(RHO8, RHO8)
    for n_, p_ in ((NLI, LAM), (NMI, MU), (NNI, NU), (NRI, RHO), (NR8I, RHO8)):
        A("v_xor_b32 v%d, 0x80000000, v%d" % (n_, p_ + 1))
    wait(vm=24); bar()
    A("s_mov_b32 s54, s%d" % sWO_)
    for q, nxt in zip(range(4), (22, 20, 18, 16)):
        dma_w("s_mov_b32 m0, s57", "s54")
        A("s_add_u32 s54, s54, 196608")
        dma_w("s_add_u32 m0, s57, 8192", "s54")
        A("s_add_u32 s54, s54, 196608\ns_add_u32 s57, s57, 16384")
        if q == 0:
            wait(lg=0); tag_from_epoch()
        if q == 1:
            frag_addr(32, 25, 26)
        wait(vm=nxt); bar()
    for nxt in (12, 8, 4, 0):
        wait(vm=nxt); bar()
    slot_load(28, 25)
    URE, UIM = 96, 112
    for r in range(32): A("v_mov_b32 v%d, 0" % (URE + r))
    A("""s_mov_b32 s58, 0
         s_mov_b32 s56, %d
         s_lshl_b32 s57, s%d, 12
         s_add_u32 s57, s57, 8192""" % (L_RING, sS))
    A.label("L_U")
    bar()
    A("s_add_u32 s23, s56, s57")
    for ks in range(4):
        A("v_add_u32 v%d, s23, v%d\nv_add_u32 v%d, s56, v%d" % (36 + ks, 32 + ks, 40 + ks, 32 + ks))
    for ks in range(4):
        A("""ds_read_b128 %s, v%d
             ds_read_b128 %s, v%d
             ds_read_b128 %s, v%d offset:4096""" % (v(48 + 12*ks, 4), 36 + ks, v(52 + 12*ks, 4), 40 + ks, v(56 + 12*ks, 4), 40 + ks))
    A("s_cmp_lg_u32 s%d, 0\ns_cbranch_scc1 L_UF" % sS)
    A("s_cmp_eq_u32 s58, 2\ns_cbranch_scc0 L_UF3")
    A("""s_lshl_b32 s23, s{HG}, 5
         s_lshl_b32 s24, s{J}, 2
         s_add_u32 s23, s23, s24
         s_add_u32 s23, s23, s{TQ}
         s_lshl_b32 s23, s23, 2
         s_add_u32 s23, s23, {f1}
         s_lshl_b32 s24, s{J}, 5
         s_add_u32 s24, s24, s{I}
         s_lshl_b32 s24, s24, 2
         s_add_u32 s25, s24, {f2}
         v_mov_b32 v25, s{TAG}""".format(HG=sHG, J=sJ, TQ=sTQ, I=sI, TAG=sTAG, f1=WS_FKVG, f2=WS_FP))
    one_lane(["buffer_store_dword v25, off, s[12:15], s23 sc1", "buffer_store_dword v25, off, s[12:15], s25 sc1"])
    A.label("L_UF3")
    A("s_cmp_eq_u32 s58, 3\ns_cbranch_scc0 L_UF")
    wait(vm=2)
    slot_eval(28)
    A("""s_lshl_b32 s24, s{J}, 5
         s_add_u32 s24, s24, s{I}
         s_lshl_b32 s24, s24, 2
         s_add_u32 s26, s24, {f}
         s_mov_b64 exec, 1""".format(J=sJ, I=sI, f=WS_FL))
    mode_stores(["buffer_store_dword v25, off, s[12:15], s26"])
    A("s_mov_b64 exec, -1")
    A.label("L_UF")
    for ks in range(4):
        wait(lg=9 - 3*ks)
        A("v_mfma_f32_32x32x16_bf16 %s, %s, %s, %s" % (v(URE, 16), v(48 + 12*ks, 4), v(52 + 12*ks, 4), v(URE, 16)))
        A("v_mfma_f32_32x32x16_bf16 %s, %s, %s, %s" % (v(UIM, 16), v(48 + 12*ks, 4), v(56 + 12*ks, 4), v(UIM, 16)))
    A("""s_add_u32 s56, s56, 24576
         s_cmp_eq_u32 s56, 163840
         s_cselect_b32 s56, 16384, s56
         s_add_u32 s58, s58, 1
         s_cmp_lt_u32 s58, 8
         s_cbranch_scc1 L_U""")
    stamp(2)
    wait(vm=0)
    slot_eval(28)
    vFA, vLin, vOne, vCA = 25, 26, 27, 28
    sOKlo = 59
    A("""v_and_b32 v{fa}, 31, v{L}
         v_lshlrev_b32 v{fa}, 2, v{fa}
         v_lshlrev_b32 v{lin}, 4, v{L}
         v_mov_b32 v{one}, 1
         v_mov_b32 v{ca}, {cnt}
         s_lshl_b32 s60, s{HG}, 7
         s_add_u32 s60, s60, {f}
         s_mov_b32 s{ok}, 0
         s_lshl_b32 s61, s{I}, 17
         s_lshl_b32 s23, s{S}, 12
         s_add_u32 s61, s61, s23
         s_add_u32 s61, s61, {kvg}
         s_add_u32 s62, s23, 16384
         s_mov_b32 s63, 1""".format(fa=vFA, lin=vLin, one=vOne, ca=vCA, cnt=L_CNT, L=vL, HG=sHG, f=WS_FKVG, ok=sOKlo, I=sI, S=sS, kvg=WS_KVG))
    def remote_blocks(pend, lbl):
        A.label(lbl)
        A("""s_add_u32 s24, s{J}, s63
             s_and_b32 s24, s24, 7
             s_lshl_b32 s25, s24, 2
             s_mov_b32 s{sp}, 0""".format(J=sJ, sp=sSPIN))
        A.label(lbl + "c")
        A("""s_lshr_b32 s26, s{ok}, s25
             s_and_b32 s26, s26, 15
             s_cmp_eq_u32 s26, 15
             s_cbranch_scc1 {l}g
             buffer_load_dword v29, v{fa}, s[12:15], s60 offen sc1
             s_add_u32 s{sp}, s{sp}, 1
             s_cmp_gt_u32 s{sp}, {SP}
             s_cbranch_scc1 {l}g
             s_waitcnt vmcnt(0)
             v_cmp_eq_u32 vcc, s{TAG}, v29
             s_nop 1
             s_mov_b32 s{ok}, vcc_lo
             s_branch {l}c""".format(ok=sOKlo, l=lbl, fa=vFA, sp=sSPIN, SP=SPIN, TAG=sTAG))
        A.label(lbl + "g")
        A("""s_lshl_b32 s24, s24, 14
             s_add_u32 s24, s24, s61
             s_mov_b32 m0, s62
             s_add_u32 s62, s62, 16384
             buffer_load_dwordx4 v{lin}, s[12:15], s24 offen sc1 lds
             buffer_load_dwordx4 v{lin}, s[12:15], s24 offen offset:1024 sc1 lds
             buffer_load_dwordx4 v{lin}, s[12:15], s24 offen offset:2048 sc1 lds
             buffer_load_dwordx4 v{lin}, s[12:15], s24 offen offset:3072 sc1 lds
             s_add_u32 s63, s63, 1
             s_cmp_lt_u32 s63, {pend}
             s_cbranch_scc1 {l}""".format(lin=vLin, pend=pend, l=lbl))
    def signal(p):
        one_lane(["ds_add_u32 v%d, v%d offset:%d" % (vCA, vOne, 4 * p)])
    remote_blocks(5, "L_RA")
    stamp(3)
    a, b = 30, 32
    A("v_mov_b32 v30, v%d\nv_mov_b32 v31, v%d" % (URE, UIM))
    for r in range(1, 16):
        A("""v_fma_f32 v{b}, v{lr}, v{a}, v{dr}
             v_fma_f32 v{b1}, v{lr}, v{a1}, v{di}
             v_fmac_f32 v{b}, v{nli}, v{a1}
             v_fmac_f32 v{b1}, v{li}, v{a}""".format(a=a, a1=a+1, b=b, b1=b+1, lr=LAM, li=LAM+1, nli=NLI, dr=URE+r, di=UIM+r))
        a, b = b, a
    A("""v_mov_b32 v34, v{a}
         v_mov_b32 v35, v{a1}
         v_mov_b32 v36, v{a}
         v_mov_b32 v37, v{a1}
         s_nop 1
         v_permlane32_swap_b32 v34, v36
         v_permlane32_swap_b32 v35, v37""".format(a=a, a1=a+1))
    def cacc(d, p, npi, x):
        A("""v_fmac_f32 v{d}, v{p}, v{x}
             v_fmac_f32 v{d1}, v{p}, v{x1}
             v_fmac_f32 v{d}, v{n}, v{x1}
             v_fmac_f32 v{d1}, v{p1}, v{x}""".format(d=d, d1=d+1, p=p, p1=p+1, n=npi, x=x, x1=x+1))
    cacc(36, MU, NMI, 34)
    A("""v_and_b32 v38, 31, v{L}
         v_lshlrev_b32 v38, 3, v38
         v_add_u32 v38, {xw}, v38
         s_lshl_b32 s23, s{S}, 8
         v_add_u32 v39, s23, v38
         ds_write_b64 v39, v[36:37]""".format(L=vL, xw=L_XW, S=sS))
    wait(vm=12, lg=0)
    signal(1)
    signal(10)
    A("s_mov_b32 s%d, 0" % sSPIN)
    A.label("L_XS")
    A("""ds_read_b32 v39, v{ca} offset:40
         s_add_u32 s{sp}, s{sp}, 1
         s_cmp_gt_u32 s{sp}, {SP}
         s_cbranch_scc1 L_XG
         s_waitcnt lgkmcnt(0)
         v_cmp_ne_u32 vcc, 4, v39
         s_nop 1
         s_cbranch_vccnz L_XS""".format(ca=vCA, sp=sSPIN, SP=SPIN))
    A.label("L_XG")
    WX = 40
    for k in range(4):
        A("ds_read_b64 %s, v38 offset:%d" % (v(WX + 2*k, 2), 256 * k))
    A("""s_add_u32 s4, s12, {e}
         s_addc_u32 s5, s13, 0
         s_mov_b32 s6, 0x20000
         s_mov_b32 s7, 0x20000
         s_lshl_b32 s27, s{J}, 1
         s_and_b32 s23, s{I}, 1
         s_add_u32 s27, s27, s23
         s_lshr_b32 s23, s{I}, 1
         s_lshl_b32 s23, s23, 9
         v_and_b32 v39, 31, v{L}
         v_lshl_add_u32 v39, v39, 4, s23""".format(e=WS_E, J=sJ, I=sI, L=vL))
    wait(lg=0)
    A("v_mov_b32 v48, v42\nv_mov_b32 v49, v43")
    cacc(48, NU, NNI, 40)
    A("v_mov_b32 v50, v44\nv_mov_b32 v51, v45")
    cacc(50, NU, NNI, 48)
    cacc(46, NU, NNI, 50)
    A("""v_mov_b32 v52, v46
         v_mov_b32 v53, s{TAG}
         v_mov_b32 v54, v47
         v_mov_b32 v55, s{TAG}
         s_lshl_b32 s23, s27, 13
         s_lshl_b32 s24, s{S}, 3
         s_lshl_b64 s[24:25], 0xff, s24
         s_mov_b64 exec, s[24:25]
         buffer_store_dwordx4 v[52:55], v39, s[4:7], s23 offen sc1
         s_mov_b64 exec, -1""".format(TAG=sTAG, S=sS))
    remote_blocks(8, "L_RB")
    wait(vm=21); signal(2)
    wait(vm=17); signal(3)
    wait(vm=13); signal(4)
    EX = 48
    A("""s_sub_u32 s23, s27, 1
         s_lshl_b32 s23, s23, 13
         v_lshrrev_b32 v29, 5, v{L}
         v_lshlrev_b32 v29, 16, v29
         v_sub_u32 v29, v39, v29
         v_add_u32 v80, s23, v29""".format(L=vL))
    for n in range(1, 8):
        A("v_subrev_u32 v%d, 8192, v%d" % (80 + n, 80 + n - 1))
    def e_loads():
        for n in range(8):
            A("buffer_load_dwordx4 %s, v%d, s[4:7], 0 offen sc1" % (v(EX + 4*n, 4), 80 + n))
    e_loads()
    wait(vm=16); signal(5)
    wait(vm=12); signal(6)
    wait(vm=8); signal(7)
    stamp(4)
    A("s_mov_b32 s%d, 0" % sSPIN)
    A.label("L_EC")
    wait(vm=0)
    A("s_mov_b64 s[30:31], -1")
    for n in range(8):
        A("""v_cmp_eq_u32 s[24:25], s{TAG}, v{t1}
             v_cmp_eq_u32 vcc, s{TAG}, v{t2}
             s_cmp_le_u32 s27, {n}
             s_cselect_b32 s28, -1, 0
             s_cmp_le_u32 s27, {n8}
             s_cselect_b32 s29, -1, 0
             s_and_b64 vcc, vcc, s[24:25]
             s_or_b64 vcc, vcc, s[28:29]
             s_and_b64 s[30:31], s[30:31], vcc""".format(TAG=sTAG, t1=EX+4*n+1, t2=EX+4*n+3, n=n, n8=n+8))
    A("""s_cmp_eq_u64 s[30:31], -1
         s_cbranch_scc1 L_EG
         s_add_u32 s{sp}, s{sp}, 1
         s_cmp_gt_u32 s{sp}, {SP}
         s_cbranch_scc1 L_EG""".format(sp=sSPIN, SP=SPIN))
    e_loads()
    A("s_branch L_EC")
    A.label("L_EG")
    def cacc2(dr, di, p, npi, xr, xi):
        A("""v_fmac_f32 v{dr}, v{p}, v{xr}
             v_fmac_f32 v{di}, v{p}, v{xi}
             v_fmac_f32 v{dr}, v{n}, v{xi}
             v_fmac_f32 v{di}, v{p1}, v{xr}""".format(dr=dr, di=di, p=p, p1=p+1, n=npi, xr=xr, xi=xi))
    for n in range(6, -1, -1):
        cacc2(EX + 4*n, EX + 4*n + 2, RHO, NRI, EX + 4*n + 4, EX + 4*n + 6)
    A("""v_mov_b32 v30, v{r}
         v_mov_b32 v31, v{i}
         v_mov_b32 v32, v{r}
         v_mov_b32 v33, v{i}
         s_nop 1
         v_permlane32_swap_b32 v30, v32
         v_permlane32_swap_b32 v31, v33""".format(r=EX, i=EX+2))
    cacc(30, RHO8, NR8I, 32)
    for k in range(3):
        A("s_cmp_le_u32 s%d, %d\ns_cbranch_scc1 L_PG" % (sS, k))
        cacc(WX + 2*k, NU, NNI, 30)
        A("v_mov_b32 v30, v%d\nv_mov_b32 v31, v%d" % (WX + 2*k, WX + 2*k + 1))
    A.label("L_PG")
    A("s_mov_b32 exec_lo, 0")
    cacc(34, MU, NMI, 30)
    A("v_mov_b32 v30, v34\nv_mov_b32 v31, v35\ns_mov_b32 exec_lo, -1")
    cacc2(URE, UIM, LAM, NLI, 30, 31)
    for r in range(1, 16):
        cacc2(URE + r, UIM + r, LAM, NLI, URE + r - 1, UIM + r - 1)
    for k in range(8):
        A("v_cvt_pk_bf16_f32 v%d, v%d, v%d" % (48 + k, URE + 2*k, URE + 2*k + 1))
    for k in range(8):
        A("v_cvt_pk_bf16_f32 v%d, v%d, v%d" % (56 + k, UIM + 2*k, UIM + 2*k + 1))
    A("""s_lshl_b32 s23, s{S}, 12
         s_add_u32 s34, s23, {scr}
         v_and_b32 v30, 31, v{L}
         v_lshrrev_b32 v31, 5, v{L}
         v_lshlrev_b32 v32, 5, v31
         v_lshl_add_u32 v30, v30, 6, v32
         v_add_u32 v30, s34, v30
         ds_write_b128 v30, v[48:51]
         ds_write_b128 v30, v[52:55] offset:16
         ds_write_b128 v30, v[56:59] offset:2048
         ds_write_b128 v30, v[60:63] offset:2064
         v_bfe_u32 v32, v{L}, 2, 2
         v_lshl_add_u32 v32, v31, 3, v32
         v_lshlrev_b32 v32, 6, v32
         v_bfe_u32 v33, v{L}, 4, 1
         v_lshl_add_u32 v32, v33, 5, v32
         v_and_b32 v33, 3, v{L}
         v_lshl_add_u32 v32, v33, 3, v32
         v_add_u32 v32, s34, v32""".format(S=sS, scr=L_SCR, L=vL))
    wait(lg=0)
    for f in range(4):
        for rd in range(2):
            A("ds_read_b64_tr_b16 %s, v32 offset:%d" % (v(64 + 4*f + 2*rd, 2), f * 1024 + rd * 256))
    A("""s_lshl_b32 s23, s27, 2
         s_add_u32 s35, s23, s{S}
         s_lshl_b32 s23, s35, 16
         s_lshr_b32 s24, s{I}, 1
         s_lshl_b32 s24, s24, 12
         s_add_u32 s23, s23, s24
         s_add_u32 s26, s23, {g}""".format(S=sS, I=sI, g=WS_G))
    wait(lg=0)
    mode_stores(["buffer_store_dwordx4 %s, v%d, s[12:15], s26 offen offset:%d" % (v(64 + 4*f, 4), vLin, 1024*f) for f in range(4)])
    A("""s_lshl_b32 s28, s{HG}, 7
         s_add_u32 s28, s28, {fp}""".format(HG=sHG, fp=WS_FP))
    poll_all(vFA, "s28", 29)
    wait(vm=0)
    A("""s_lshl_b32 s23, s35, 4
         s_lshr_b32 s24, s{I}, 1
         s_add_u32 s23, s23, s24
         s_lshl_b32 s23, s23, 2
         s_add_u32 s26, s23, {fg}
         v_mov_b32 v29, s{TAG}
         s_mov_b64 exec, 1""".format(I=sI, fg=WS_FG, TAG=sTAG))
    mode_stores(["buffer_store_dword v29, off, s[12:15], s26"])
    A("s_mov_b64 exec, -1")
    stamp(5)
    A("""s_lshl_b32 s23, s{J}, 2
         s_add_u32 s23, s23, s{TQ}
         s_lshl_b32 s23, s23, 1
         s_and_b32 s24, s{S}, 1
         s_add_u32 s35, s23, s24
         s_lshl_b32 s28, s35, 6
         s_add_u32 s28, s28, {fg}
         v_and_b32 v30, 15, v{L}
         v_lshlrev_b32 v30, 2, v30
         s_lshl_b32 s23, s{HG}, 1
         s_lshr_b32 s24, s{S}, 1
         s_add_u32 s33, s23, s24
         s_lshl_b32 s53, s33, 16
         s_add_u32 s53, s53, {c}
         s_lshl_b32 s54, s35, 16
         s_add_u32 s54, s54, {g}
         s_add_u32 s55, s53, 4096
         s_add_u32 s56, s54, 4096""".format(J=sJ, TQ=sTQ, S=sS, fg=WS_FG, L=vL, HG=sHG, c=WS_C, g=WS_G))
    poll_all(30, "s28", 29)
    stamp(6)
    YR, YACC = 32, 128
    def yload(k):
        A("buffer_load_dwordx4 %s, v%d, s[12:15], s%d offen offset:%d sc1" % (v(YR + 8*k, 4), vLin, 53 if k < 4 else 55, 1024 * (k & 3)))
        A("buffer_load_dwordx4 %s, v%d, s[12:15], s%d offen offset:%d sc1" % (v(YR + 8*k + 4, 4), vLin, 54 if k < 4 else 56, 1024 * (k & 3)))
    def ystep():
        A("s_add_u32 s53, s53, 8192\ns_add_u32 s54, s54, 8192\ns_add_u32 s55, s55, 8192\ns_add_u32 s56, s56, 8192")
    for k in range(8): yload(k)
    for r in range(16): A("v_mov_b32 v%d, 0" % (YACC + r))
    A("s_mov_b32 s58, 0")
    A.label("L_Y")
    ystep()
    for k in range(8):
        wait(vm=14)
        A("v_mfma_f32_32x32x16_bf16 %s, %s, %s, %s" % (v(YACC, 16), v(YR + 8*k, 4), v(YR + 8*k + 4, 4), v(YACC, 16)))
        yload(k)
    A("s_add_u32 s58, s58, 1\ns_cmp_lt_u32 s58, 7\ns_cbranch_scc1 L_Y")
    A("""v_lshrrev_b32 v2, 3, v{L}
         v_and_b32 v3, 7, v{L}
         s_lshl_b32 s23, s35, 15
         s_lshl_b32 s24, s33, 6
         s_add_u32 s23, s23, s24
         v_lshlrev_b32 v4, 10, v2
         v_lshl_add_u32 v4, v3, 3, v4
         v_add_u32 v4, s23, v4
         v_lshl_add_u32 v5, v3, 3, s24
         global_load_dwordx2 v[6:7], v5, s[{dk}:{dk1}]""".format(L=vL, dk=P_DSK, dk1=P_DSK+1))
    for n in range(4):
        A("global_load_dwordx2 %s, v4, s[%d:%d]" % (v(8 + 2*n, 2), P_AX, P_AX + 1))
        if n < 3: A("v_add_u32 v4, 8192, v4")
    for k in range(8):
        wait(vm=14 - 2*k + 5)
        A("v_mfma_f32_32x32x16_bf16 %s, %s, %s, %s" % (v(YACC, 16), v(YR + 8*k, 4), v(YR + 8*k + 4, 4), v(YACC, 16)))
    A("""s_mov_b32 s36, s{po}
         s_mov_b32 s37, s{po1}
         s_mov_b32 s38, 0x800000
         s_mov_b32 s39, 0x20000
         v_and_b32 v16, 31, v{L}
         v_lshrrev_b32 v17, 5, v{L}
         v_xor_b32 v17, v17, v16
         v_and_b32 v17, 7, v17
         v_lshlrev_b32 v17, 4, v17
         v_lshl_add_u32 v16, v16, 7, v17
         v_add_u32 v16, s34, v16
         v_xor_b32 v17, 32, v16
         v_xor_b32 v18, 64, v16
         v_xor_b32 v19, 96, v16
         v_xor_b32 v20, v2, v3
         v_lshlrev_b32 v20, 4, v20
         v_lshl_add_u32 v20, v2, 7, v20
         v_add_u32 v20, s34, v20
         v_lshlrev_b32 v21, 12, v2
         v_lshl_add_u32 v21, v3, 4, v21
         s_lshl_b32 s23, s35, 17
         s_lshl_b32 s24, s33, 7
         s_add_u32 s23, s23, s24""".format(po=P_OUT, po1=P_OUT+1, L=vL))
    for g in range(4):
        A("ds_write_b128 v%d, %s" % (16 + g, v(YACC + 4*g, 4)))
    wait(vm=0, lg=0)
    for n in range(4):
        A("ds_read_b128 %s, v20 offset:%d" % (v(32 + 4*n, 4), 1024*n))
    A("""v_lshlrev_b32 v22, 16, v6
         v_and_b32 v23, 0xffff0000, v6
         v_lshlrev_b32 v24, 16, v7
         v_and_b32 v25, 0xffff0000, v7""")
    for n in range(4):
        x = 8 + 2*n
        A("""v_lshlrev_b32 v26, 16, v{x}
             v_and_b32 v27, 0xffff0000, v{x}
             v_lshlrev_b32 v28, 16, v{x1}
             v_and_b32 v29, 0xffff0000, v{x1}""".format(x=x, x1=x+1))
        wait(lg=3 - n)
        for e in range(4):
            A("v_fmac_f32 v%d, v%d, v%d" % (32 + 4*n + e, 26 + e, 22 + e))
        A("buffer_store_dwordx4 %s, v21, s[36:39], s23 offen %s" % (v(32 + 4*n, 4), opts.get("ystore", "sc1")))
        if n < 3: A("s_add_u32 s23, s23, 32768")
    stamp(7)
    stamp_out()
    A("s_endpgm")

    A.label("L_ATT")
    vXa, vWa, vWc = 2, 6, 7
    XF, WF, XF2, WF2, ACC = 16, 32, 48, 64, 80
    sP, sTT = 48, 49
    A("""s_and_b32 s{p}, s3, 1
         s_lshr_b32 s{tt}, s3, 1
         s_and_b32 s{tt}, s{tt}, 1
         s_mov_b32 s{vm}, 0xffff
         s_mov_b32 s{vm1}, 0xffff""".format(p=sP, tt=sTT, vm=sVM, vm1=sVM+1))
    if opts.get("codepf", True):
        A("""s_cmp_eq_u32 s3, 6
             s_cbranch_scc0 L_NOPF
             s_getpc_b64 s[24:25]
             L_PC:
             s_sub_u32 s24, s24, L_PC-L_START
             s_subb_u32 s25, s25, 0
             v_lshlrev_b32 v8, 7, v1
             global_load_dword v160, v8, s[24:25]
             v_add_u32 v8, 8192, v8
             v_min_u32 v8, L_CODE_END-L_START-4, v8
             global_load_dword v161, v8, s[24:25]""")
        A.label("L_NOPF")
    frag_addr(vXa, 8, 9)
    A("s_lshl_b32 s23, s%d, 12" % sTT)
    for ks in range(4):
        A("v_add_u32 v%d, s23, v%d" % (vXa + ks, vXa + ks))
    A("""v_bfe_u32 v8, v{L}, 2, 2
         v_lshrrev_b32 v9, 5, v{L}
         v_lshl_add_u32 v9, v9, 3, v8
         v_lshlrev_b32 v{wa}, 7, v9
         v_bfe_u32 v9, v{L}, 4, 1
         s_lshl_b32 s23, s{p}, 1
         v_add_u32 v9, s23, v9
         v_and_b32 v8, 2, v8
         v_xor_b32 v9, v9, v8
         v_lshl_add_u32 v{wa}, v9, 5, v{wa}
         v_and_b32 v8, 3, v{L}
         s_waitcnt lgkmcnt(0)
         s_load_dword s{ep}, s[12:13], 0
         s_cmp_ge_u32 s3, 4
         s_cbranch_scc1 L_VPRE""".format(L=vL, wa=vWa, p=sP, ep=sEP))
    param_loads(96, 97, 98, 9)
    A("""v_lshrrev_b32 v9, 1, v8
         v_lshlrev_b32 v10, 1, v8
         v_and_b32 v10, 2, v10
         v_or_b32 v9, v9, v10
         v_lshl_add_u32 v{wa}, v9, 3, v{wa}
         s_lshl_b32 s23, s{J}, 1
         s_and_b32 s24, s{I}, 1
         s_add_u32 s26, s23, s24
         s_lshl_b32 s23, s26, 15
         s_lshr_b32 s27, s{I}, 1
         s_lshl_b32 s24, s27, 6
         s_add_u32 s23, s23, s24
         s_lshl_b32 s24, s{p}, 5
         s_add_u32 s23, s23, s24
         v_and_b32 v9, 31, v{L}
         v_lshrrev_b32 v10, 5, v{L}
         v_lshlrev_b32 v11, 4, v10
         v_lshl_add_u32 v9, v9, 10, v11
         v_add_u32 v9, s23, v9
         global_load_dwordx4 v[100:103], v9, s[{cr}:{cr1}]
         global_load_dwordx4 v[104:107], v9, s[{ci}:{ci1}]
         v_lshlrev_b32 v10, 5, v10
         s_lshl_b32 s24, s{p}, 6
         v_add_u32 v10, s24, v10""".format(wa=vWa, J=sJ, I=sI, p=sP, L=vL, cr=P_CRE, cr1=P_CRE+1, ci=P_CIM, ci1=P_CIM+1))
    wait(vm=2)
    params(96, 97, 98, 108, 109, 110, 111, 112)
    A("""v_add_f32 v108, -1.0, v108
         v_mul_f32 v110, v96, v96
         v_fmac_f32 v110, v97, v97
         v_rcp_f32 v110, v110
         v_mul_f32 v111, v108, v96
         v_mul_f32 v112, v109, v96
         v_add_f32 v110, v110, v110
         v_fmac_f32 v111, v109, v97
         v_fma_f32 v112, -v108, v97, v112
         v_mul_f32 v111, v111, v110
         v_mul_f32 v112, v112, v110
         v_xor_b32 v112, 0x80000000, v112
         s_cmp_eq_u32 s{tt}, 0
         s_cbranch_scc1 L_CP0
         v_xor_b32 v110, 0x80000000, v111
         v_mov_b32 v111, v112
         v_mov_b32 v112, v110""".format(tt=sTT))
    A.label("L_CP0")
    for e in range(8):
        A("ds_bpermute_b32 v%d, v10, v111 offset:%d" % (116 + e, 4*e))
    wait(lg=0)
    for e in range(8):
        A("ds_bpermute_b32 v%d, v10, v112 offset:%d" % (124 + e, 4*e))
    wait(vm=0)
    for e in range(8):
        src = 100 + e // 2
        A(("v_lshlrev_b32 v110, 16, v%d" if e % 2 == 0 else "v_and_b32 v110, 0xffff0000, v%d") % src)
        A("v_mul_f32 v%d, v%d, v110" % (116 + e, 116 + e))
    wait(lg=0)
    for e in range(8):
        src = 104 + e // 2
        A(("v_lshlrev_b32 v110, 16, v%d" if e % 2 == 0 else "v_and_b32 v110, 0xffff0000, v%d") % src)
        A("v_fmac_f32 v%d, v%d, v110" % (116 + e, 124 + e))
    for q in range(4):
        A("v_cvt_pk_bf16_f32 v%d, v%d, v%d" % (100 + q, 116 + 2*q, 117 + 2*q))
    A("""s_lshl_b32 s23, s26, 16
         s_lshl_b32 s24, s27, 2
         s_add_u32 s24, s24, s3
         s_lshl_b32 s24, s24, 10
         s_add_u32 s23, s23, s24
         s_add_u32 s23, s23, {c}
         v_lshlrev_b32 v9, 4, v{L}
         buffer_store_dwordx4 v[100:103], v9, s[12:15], s23 offen sc1""".format(tt=sTT, p=sP, c=WS_C, L=vL))
    tag_from_epoch()
    for r in range(16): A("v_mov_b32 v%d, 0" % (ACC + r))
    def chunk_reads(xf, wf, xoff, woff):
        for ks in range(4):
            A("ds_read_b128 %s, v%d offset:%d" % (v(xf + 4*ks, 4), vXa + ks, xoff))
            A("ds_read_b64_tr_b16 %s, v%d offset:%d" % (v(wf + 4*ks, 2), vWc, woff + 2048*ks))
            A("ds_read_b64_tr_b16 %s, v%d offset:%d" % (v(wf + 4*ks + 2, 2), vWc, woff + 2048*ks + 512))
    def kv_loop(lbl, is_k):
        A("s_mov_b32 s58, 0\ns_mov_b32 s56, %d" % (L_RING + (0 if is_k else 8192)))
        A.label(lbl)
        bar()
        A("v_add_u32 v%d, s56, v%d" % (vWc, vWa))
        chunk_reads(XF, WF, 0, 0)
        A("""s_add_u32 s56, s56, 16384
             s_cmp_ge_u32 s56, 163840
             s_cselect_b32 s23, 98304, 0
             s_sub_u32 s56, s56, s23""")
        for ks in range(4):
            wait(lg=9 - 3*ks)
            a_, b_ = (WF, XF) if is_k else (XF, WF)
            A("v_mfma_f32_32x32x16_bf16 %s, %s, %s, %s" % (v(ACC, 16), v(a_ + 4*ks, 4), v(b_ + 4*ks, 4), v(ACC, 16)))
            A("v_add_u32 v%d, 8192, v%d" % (vXa + ks, vXa + ks))
        A("s_add_u32 s58, s58, 1\ns_cmp_lt_u32 s58, 8\ns_cbranch_scc1 %s" % lbl)
    def tile_base():
        A("""s_lshl_b32 s23, s{J}, 2
             s_add_u32 s23, s23, s{TQ}
             s_lshl_b32 s23, s23, 1
             s_add_u32 s51, s23, s{tt}
             s_lshl_b32 s23, s{HG}, 1
             s_add_u32 s23, s23, s{p}
             s_lshl_b32 s52, s23, 18
             s_lshl_b32 s24, s51, 11
             s_add_u32 s50, s52, s24""".format(J=sJ, TQ=sTQ, tt=sTT, HG=sHG, p=sP))
    kv_loop("L_K", True)
    stamp(1)
    slot_load(12, 8)
    tile_base()
    PK = 96
    A("""s_add_u32 s53, s50, {g}
         s_add_u32 s54, s53, 131072
         v_lshlrev_b32 v9, 4, v{L}
         s_nop 0""".format(g=WS_KVG, L=vL))
    for ks in range(4):
        A("v_subrev_u32 v%d, 65536, v%d" % (vXa + ks, vXa + ks))
    for q in range(8):
        A("v_cvt_pk_bf16_f32 v%d, v%d, v%d" % (PK + q, ACC + 2*q, ACC + 2*q + 1))
    A("""buffer_store_dwordx4 v[96:99], v9, s[12:15], s53 offen sc1
         buffer_store_dwordx4 v[100:103], v9, s[12:15], s54 offen sc1""")
    for r in range(16): A("v_mov_b32 v%d, 0" % (ACC + r))
    A("s_mov_b32 s58, 0\nv_add_u32 v%d, %d, v%d" % (vWc, L_RING + 4*8192, vWa))
    A.label("L_Q")
    bar()
    chunk_reads(XF, WF, 0, 0)
    for ks in range(4):
        wait(lg=9)
        A("v_mfma_f32_32x32x16_bf16 %s, %s, %s, %s" % (v(ACC, 16), v(WF + 4*ks, 4), v(XF + 4*ks, 4), v(ACC, 16)))
        A("ds_read_b128 %s, v%d offset:8192" % (v(XF2 + 4*ks, 4), vXa + ks))
        A("ds_read_b64_tr_b16 %s, v%d offset:%d" % (v(WF2 + 4*ks, 2), vWc, 8192 + 2048*ks))
        A("ds_read_b64_tr_b16 %s, v%d offset:%d" % (v(WF2 + 4*ks + 2, 2), vWc, 8192 + 2048*ks + 512))
    for ks in range(4):
        wait(lg=9 - 3*ks)
        A("v_mfma_f32_32x32x16_bf16 %s, %s, %s, %s" % (v(ACC, 16), v(WF2 + 4*ks, 4), v(XF2 + 4*ks, 4), v(ACC, 16)))
        A("v_add_u32 v%d, 16384, v%d" % (vXa + ks, vXa + ks))
    A("v_add_u32 v%d, 16384, v%d" % (vWc, vWc))
    A("s_add_u32 s58, s58, 1\ns_cmp_lt_u32 s58, 4\ns_cbranch_scc1 L_Q")
    bar()
    stamp(2)
    wait(vm=2)
    slot_eval(12)
    A("""s_add_u32 s53, s50, {l}
         s_add_u32 s54, s53, 131072
         s_lshr_b32 s55, s50, 1
         s_add_u32 s55, s55, {q}
         s_add_u32 s56, s55, 65536
         s_mov_b32 s23, 0x3eb8aa3b""".format(l=WS_KVL, q=WS_Q))
    for r in range(16):
        A("v_mul_f32 v%d, s23, v%d" % (ACC + r, ACC + r))
    for q in range(8):
        A("v_cvt_pk_bf16_f32 v%d, v%d, v%d" % (104 + q, ACC + 2*q, ACC + 2*q + 1))
    mode_stores(["buffer_store_dwordx4 v[104:107], v9, s[12:15], s55 offen", "buffer_store_dwordx4 v[108:111], v9, s[12:15], s56 offen",
                 "buffer_store_dwordx4 v[96:99], v9, s[12:15], s53 offen", "buffer_store_dwordx4 v[100:103], v9, s[12:15], s54 offen"])
    bar()
    wait(vm=4); bar()
    wait(vm=0); bar()
    bar()
    A("""v_and_b32 v8, 3, v{L}
         v_lshlrev_b32 v8, 2, v8
         s_lshl_b32 s23, s{J}, 3
         s_add_u32 s23, s23, s{HG}
         s_lshl_b32 s23, s23, 4
         s_add_u32 s28, s23, {fl}
         s_lshl_b32 s23, s{I}, 17
         s_lshl_b32 s24, s{J}, 14
         s_add_u32 s23, s23, s24
         s_lshl_b32 s25, s3, 12
         s_add_u32 s23, s23, s25
         s_add_u32 s29, s23, {kvl}""".format(L=vL, J=sJ, HG=sHG, I=sI, fl=WS_FL, kvl=WS_KVL))
    bar()
    poll_all(8, "s28", 10)
    A("s_mov_b32 m0, s25\ns_nop 0")
    for k in range(4):
        A("buffer_load_dwordx4 v9, s[12:15], s29 offen offset:%d sc1 lds" % (1024*k))
    bar()
    A("s_branch L_QLD")

    A.label("L_VPRE")
    A("v_lshl_add_u32 v%d, v8, 3, v%d" % (vWa, vWa))
    A("s_cmp_ge_u32 s3, 6\ns_cbranch_scc1 L_VP2")
    A("""s_and_b32 s23, s{I}, 30
         s_add_u32 s27, s23, s{p}
         s_lshl_b32 s23, s{J}, 1
         s_and_b32 s24, s{I}, 1
         s_add_u32 s26, s23, s24
         s_lshl_b32 s23, s27, 14
         s_lshl_b32 s24, s26, 6
         s_add_u32 s23, s23, s24
         v_and_b32 v9, 31, v{L}
         v_lshrrev_b32 v10, 5, v{L}
         v_lshlrev_b32 v10, 12, v10
         v_lshl_add_u32 v9, v9, 1, v10
         v_add_u32 v9, s23, v9
         v_add_u32 v10, 8192, v9""".format(I=sI, p=sP, J=sJ, L=vL))
    for e in range(8):
        A("global_load_ushort v%d, v%d, s[%d:%d] offset:%d" % (104 + e, 9 if e < 4 else 10, P_WO, P_WO + 1, 1024 * (e & 3)))
    A("""s_lshl_b32 s23, s26, 5
         s_add_u32 s23, s23, s27
         s_lshl_b32 s23, s23, 10
         s_add_u32 s23, s23, {wo}
         v_lshlrev_b32 v9, 4, v{L}""".format(wo=WS_WO, L=vL))
    wait(vm=0)
    for q in range(4):
        A("v_lshl_or_b32 v%d, v%d, 16, v%d" % (100 + q, 105 + 2*q, 104 + 2*q))
    A("buffer_store_dwordx4 v[100:103], v9, s[12:15], s23 offen sc1")
    A.label("L_VP2")
    wait(lg=0)
    tag_from_epoch()
    A("s_cmp_eq_u32 s3, 7\ns_cbranch_scc0 L_VP3")
    A("""v_mov_b32 v100, s{TAG}
         v_mov_b32 v101, s{X}
         s_lshl_b32 s23, s{J}, 5
         s_add_u32 s23, s23, s{I}
         s_lshl_b32 s23, s23, 3
         s_add_u32 s23, s23, {x}""".format(TAG=sTAG, X=sXCC, J=sJ, I=sI, x=WS_XCC))
    one_lane(["buffer_store_dwordx2 v[100:101], off, s[12:15], s23 sc1"])
    A.label("L_VP3")
    vXA, vXA2, vB, vB2 = 10, 11, 12, 13
    dma_lane_regs(sP, vB, 8)
    A("""v_lshrrev_b32 v9, 2, v8
         v_lshlrev_b32 v9, 4, v9
         v_and_b32 v{xa}, 3, v8
         v_add_u32 v9, v9, v{xa}
         v_lshl_add_u32 v{xa}, v9, 10, v{b}
         v_add_u32 v{xa2}, {d1}, v{xa}
         v_lshl_add_u32 v{b}, v8, 10, v{b}
         v_add_u32 v{b2}, {d2}, v{b}
         s_mov_b32 s40, s{ax}
         s_mov_b32 s41, s{ax1}
         s_mov_b32 s42, 0x200000
         s_mov_b32 s43, 0x20000
         s_cmp_eq_u32 s{tt}, 0
         s_cselect_b32 s36, s{br}, s{bi}
         s_cselect_b32 s37, s{br1}, s{bi1}
         s_mov_b32 s38, 0x80000
         s_mov_b32 s39, 0x20000
         s_lshl_b32 s23, s{J}, 1
         s_and_b32 s24, s{I}, 1
         s_add_u32 s23, s23, s24
         s_lshl_b32 s23, s23, 17
         s_lshl_b32 s24, s{tt}, 15
         s_add_u32 s23, s23, s24
         s_lshl_b32 s24, s{p}, 12
         s_add_u32 s59, s23, s24
         s_lshr_b32 s23, s{I}, 1
         s_lshl_b32 s23, s23, 15
         s_lshl_b32 s24, s{p}, 13
         s_add_u32 s60, s23, s24
         s_lshl_b32 s23, s{tt}, 2
         s_add_u32 s23, s23, s{p}
         s_lshl_b32 s61, s23, 10""".format(xa=vXA, xa2=vXA2, b=vB, b2=vB2, d1=8192-2048, d2=16384-2048, ax=P_AX, ax1=P_AX+1, tt=sTT,
                                          br=P_BRE, bi=P_BIM, br1=P_BRE+1, bi1=P_BIM+1, J=sJ, I=sI, p=sP))
    for r in range(16): A("v_mov_b32 v%d, 0" % (ACC + r))
    kv_loop("L_V", False)
    stamp(1)
    slot_load(14, 8)
    tile_base()
    A("""v_bfe_u32 v8, v{L}, 4, 1
         v_lshlrev_b32 v8, 17, v8
         v_lshrrev_b32 v9, 5, v{L}
         v_lshl_add_u32 v8, v9, 9, v8
         v_and_b32 v9, 15, v{L}
         v_lshl_add_u32 v8, v9, 4, v8
         s_add_u32 s53, s50, {g}
         s_add_u32 s54, s50, {l}""".format(L=vL, g=WS_KVG + 1024, l=WS_KVL + 1024))
    for q in range(8):
        A("v_cvt_pk_bf16_f32 v%d, v%d, v%d" % (PK + q, ACC + 2*q, ACC + 2*q + 1))
    A("""buffer_store_dwordx4 v[96:99], v8, s[12:15], s53 offen sc1
         buffer_store_dwordx4 v[100:103], v8, s[12:15], s53 offen offset:256 sc1""")
    def udma(c):
        base = 16384 + ((c + 2) % 6) * 24576
        A("""s_add_u32 m0, s61, {b0}
             s_add_u32 s23, s59, 65536
             buffer_load_dwordx4 v{b}, s[36:39], s60 offen lds
             buffer_load_dwordx4 v{b2}, s[36:39], s60 offen offset:2048 lds
             s_add_u32 m0, s61, {b1}
             s_add_u32 s60, s60, 128
             buffer_load_dwordx4 v{xa}, s[40:43], s59 offen lds
             buffer_load_dwordx4 v{xa2}, s[40:43], s59 offen offset:2048 lds
             s_add_u32 m0, s61, {b2_}
             s_add_u32 s59, s59, 128
             buffer_load_dwordx4 v{xa}, s[40:43], s23 offen lds
             buffer_load_dwordx4 v{xa2}, s[40:43], s23 offen offset:2048 lds""".format(b0=base, b1=base + 8192, b2_=base + 16384, b=vB, b2=vB2, xa=vXA, xa2=vXA2))
    bar(); udma(0)
    bar(); udma(1)
    wait(vm=14)
    slot_eval(14)
    mode_stores(["buffer_store_dwordx4 v[96:99], v8, s[12:15], s54 offen", "buffer_store_dwordx4 v[100:103], v8, s[12:15], s54 offen offset:256"])
    bar()
    bar(); udma(2)
    wait(vm=14); bar()
    stamp(2)
    udma(3); udma(4); udma(5)
    wait(vm=26); bar(); udma(6)
    wait(vm=24); bar(); udma(7)
    wait(vm=24); bar()
    wait(vm=18); bar()
    A("""v_lshlrev_b32 v8, 2, v{L}
         v_add_u32 v8, {cnt}, v8
         v_cmp_eq_u32 vcc, 8, v{L}
         v_mov_b32 v9, 0
         s_nop 0
         v_cndmask_b32 v9, v9, 4, vcc
         ds_write_b32 v8, v9""".format(L=vL, cnt=L_CNT))
    wait(vm=12, lg=0); bar()
    wait(vm=6); bar()
    A("v_lshlrev_b32 v9, 4, v%d" % vL)

    A.label("L_QLD")
    vKA, vCN, vCA2, Q, K, V0, V1, P, S0, S1, O = 2, 3, 28, 4, 8, 12, 16, 20, 32, 48, 64
    A("""s_lshl_b32 s23, s{I}, 6
         s_lshl_b32 s24, s{J}, 3
         s_add_u32 s50, s24, s3
         s_add_u32 s23, s23, s50
         s_lshl_b32 s23, s23, 10
         s_add_u32 s23, s23, {q}
         buffer_load_dwordx4 {Q}, v9, s[12:15], s23 offen sc1
         v_mov_b32 v{ka}, v9
         v_mov_b32 v{ca}, {cnt}""".format(I=sI, J=sJ, q=WS_Q, Q=v(Q, 4), ka=vKA, ca=vCA2, cnt=L_CNT + 4))
    for r in range(8): A("v_mov_b32 v%d, 0x3f803f80" % (V0 + r))
    for r in range(16): A("v_mov_b32 v%d, 0" % (O + r))
    wait(vm=0); bar()
    stamp(3)
    def vreads(off):
        A("""s_mov_b64 exec, s[{m}:{m1}]
             ds_read_b128 {a}, v{ka} offset:{o0}
             ds_read_b128 {b}, v{ka} offset:{o1}
             s_mov_b64 exec, -1""".format(m=sVM, m1=sVM+1, a=v(V0, 4), b=v(V1, 4), ka=vKA, o0=off + 1024, o1=off + 1280))
    A("ds_read_b128 %s, v%d" % (v(K, 4), vKA))
    wait(lg=0)
    A("v_mfma_f32_32x32x16_bf16 %s, %s, %s, 0" % (v(S0, 16), v(K, 4), v(Q, 4)))
    A("ds_read_b128 %s, v%d offset:2048" % (v(K, 4), vKA))
    vreads(0)
    A("s_mov_b32 s58, 0\ns_nop 7")
    A("v_exp_f32 v%d, v%d\nv_exp_f32 v%d, v%d" % (S0, S0, S0 + 1, S0 + 1))
    PRIO = opts.get("prio")
    A(".p2align 6")
    A.label("L_A")
    for t in range(8):
        S, N = (S0, S1) if t % 2 == 0 else (S1, S0)
        for e in range(2, 8): A("v_exp_f32 v%d, v%d" % (S + e, S + e))
        wait(lg=0)
        A("v_mfma_f32_32x32x16_bf16 %s, %s, %s, 0" % (v(N, 16), v(K, 4), v(Q, 4)))
        for q in range(4): A("v_cvt_pk_bf16_f32 v%d, v%d, v%d" % (P + q, S + 2*q, S + 2*q + 1))
        for e in (8, 9): A("v_exp_f32 v%d, v%d" % (S + e, S + e))
        A("v_mfma_f32_32x32x16_bf16 %s, %s, %s, %s" % (v(O, 16), v(V0, 4), v(P, 4), v(O, 16)))
        for e in range(10, 16): A("v_exp_f32 v%d, v%d" % (S + e, S + e))
        if t == 5:
            A("v_readfirstlane_b32 s23, v%d" % vCN)
        for q in range(4, 8): A("v_cvt_pk_bf16_f32 v%d, v%d, v%d" % (P + q, S + 2*q, S + 2*q + 1))
        for e in (0, 1): A("v_exp_f32 v%d, v%d" % (N + e, N + e))
        A("v_mfma_f32_32x32x16_bf16 %s, %s, %s, %s" % (v(O, 16), v(V1, 4), v(P + 4, 4), v(O, 16)))
        if t == 5:
            A("s_cmp_lt_u32 s23, 4\ns_cbranch_scc1 L_AW")
            A.label("L_AR")
        A("ds_read_b128 %s, v%d offset:%d" % (v(K, 4), vKA, 2048 * (t + 2)))
        if t == 4:
            A("ds_read_b32 v%d, v%d" % (vCN, vCA2))
        vreads(2048 * (t + 1))
    A("""v_add_u32 v{ka}, 16384, v{ka}
         v_add_u32 v{ca}, 4, v{ca}
         s_add_u32 s58, s58, 1
         s_cmp_lt_u32 s58, 8
         s_cbranch_scc1 L_A""".format(ka=vKA, ca=vCA2))
    stamp(4)
    A("""s_nop 7
         s_mov_b32 s23, 0x33800000
         s_mov_b32 s24, 0x53800000
         s_mov_b32 s25, 0x7f800000
         v_max3_f32 v8, |v{o0}|, |v{o1}|, |v{o2}|
         v_max3_f32 v9, |v{o3}|, |v{o4}|, |v{o5}|
         v_max3_f32 v8, |v{o6}|, |v{o7}|, v8
         v_cmp_le_f32 s[26:27], s23, v{l}
         v_cmp_ge_f32 s[28:29], s24, v{l}
         v_max_f32 v8, v8, v9
         v_add_f32 v9, v{o0}, v{o1}
         v_add_f32 v10, v{o2}, v{o3}
         v_add_f32 v11, v{o4}, v{o5}
         v_add_f32 v29, v{o6}, v{o7}
         v_add_f32 v9, v9, v10
         v_add_f32 v11, v11, v29
         v_cmp_gt_f32 s[30:31], s25, v8
         v_cmp_o_f32 vcc, v9, v11
         s_and_b64 s[26:27], s[26:27], s[28:29]
         s_and_b64 s[30:31], s[30:31], vcc
         s_and_b64 s[26:27], s[26:27], s[30:31]
         s_cmp_eq_u64 s[26:27], -1
         s_cbranch_scc0 L_FB""".format(o0=O, o1=O+1, o2=O+2, o3=O+3, o4=O+4, o5=O+5, o6=O+6, o7=O+7, l=O+8))
    A.label("L_FBR")
    A("v_rcp_f32 v29, v%d\nv_lshlrev_b32 v2, 4, v%d" % (O + 8, vL))
    for r in range(8): A("v_mul_f32 v%d, v%d, v29" % (O + r, O + r))
    for q in range(4): A("v_cvt_pk_bf16_f32 v%d, v%d, v%d" % (8 + q, O + 2*q, O + 2*q + 1))
    A("""s_lshl_b32 s23, s50, 5
         s_add_u32 s51, s23, s{I}
         s_lshl_b32 s23, s51, 10
         s_add_u32 s26, s23, {o}""".format(I=sI, o=WS_O))
    mode_stores(["buffer_store_dwordx4 v[8:11], v2, s[12:15], s26 offen"])
    WOF, OF, WACC = 80, 16, 144
    A("""v_and_b32 v3, 31, v{L}
         v_lshlrev_b32 v3, 2, v3
         s_lshl_b32 s28, s{HG}, 7
         s_add_u32 s28, s28, {fp}
         s_lshr_b32 s52, s3, 2
         s_lshl_b32 s23, s{HG}, 1
         s_add_u32 s23, s23, s{tt}
         s_lshl_b32 s23, s23, 1
         s_add_u32 s23, s23, s52
         s_lshl_b32 s23, s23, 14
         s_add_u32 s53, s23, {wo}
         s_lshl_b32 s23, s{J}, 2
         s_add_u32 s23, s23, s{TQ}
         s_lshl_b32 s23, s23, 1
         s_add_u32 s23, s23, s{p}
         s_lshl_b32 s23, s23, 1
         s_add_u32 s23, s23, s52
         s_lshl_b32 s54, s23, 14
         s_add_u32 s54, s54, {o}
         s_lshl_b32 s55, s23, 6
         s_add_u32 s55, s55, {fo}
         s_lshl_b32 s26, s51, 2
         s_add_u32 s26, s26, {fo}""".format(L=vL, HG=sHG, fp=WS_FP, tt=sTT, wo=WS_WO, J=sJ, TQ=sTQ, p=sP, o=WS_O, fo=WS_FO))
    poll_all(3, "s28", 29)
    wait(vm=0)
    A("v_mov_b32 v29, s%d\ns_mov_b64 exec, 1" % sTAG)
    mode_stores(["buffer_store_dword v29, off, s[12:15], s26"])
    A("s_mov_b64 exec, -1")
    stamp(5)
    for k in range(16):
        A("buffer_load_dwordx4 %s, v2, s[12:15], s53 offen offset:%d sc1" % (v(WOF + 4*k, 4), 1024 * (k & 3)))
        if k & 3 == 3 and k < 15: A("s_add_u32 s53, s53, 4096")
    A("v_and_b32 v3, 15, v%d\nv_lshlrev_b32 v3, 2, v3" % vL)
    poll_all(3, "s55", 29)
    stamp(6)
    for k in range(16):
        A("buffer_load_dwordx4 %s, v2, s[12:15], s54 offen offset:%d sc1" % (v(OF + 4*k, 4), 1024 * (k & 3)))
        if k & 3 == 3 and k < 15: A("s_add_u32 s54, s54, 4096")
    A("""s_lshl_b32 s23, s52, 1
         s_add_u32 s23, s23, s{p}
         s_lshl_b32 s23, s23, 1
         s_add_u32 s23, s23, s{tt}
         s_lshl_b32 s23, s23, 12
         v_and_b32 v4, 31, v{L}
         v_lshrrev_b32 v5, 5, v{L}
         v_xor_b32 v5, v5, v4
         v_and_b32 v5, 7, v5
         v_lshlrev_b32 v5, 4, v5
         v_lshl_add_u32 v4, v4, 7, v5
         v_add_u32 v4, s23, v4
         v_xor_b32 v5, 32, v4
         v_xor_b32 v6, 64, v4
         v_xor_b32 v7, 96, v4
         v_lshrrev_b32 v12, 4, v{L}
         v_and_b32 v13, 7, v{L}
         v_xor_b32 v13, v13, v12
         v_lshlrev_b32 v13, 4, v13
         v_lshl_add_u32 v13, v12, 7, v13
         v_bfe_u32 v14, v{L}, 3, 1
         v_lshl_add_u32 v13, v14, 12, v13
         s_lshl_b32 s23, s52, 13
         s_and_b32 s24, s3, 3
         s_lshl_b32 s24, s24, 10
         s_add_u32 s23, s23, s24
         v_add_u32 v13, s23, v13
         v_xor_b32 v14, 64, v13
         v_and_b32 v15, 15, v{L}
         v_lshlrev_b32 v15, 4, v15
         v_lshl_add_u32 v15, v12, 12, v15
         s_lshl_b32 s23, s{J}, 2
         s_add_u32 s23, s23, s{TQ}
         s_lshl_b32 s23, s23, 3
         s_add_u32 s23, s23, s3
         s_lshl_b32 s23, s23, 15
         s_lshl_b32 s24, s{HG}, 8
         s_add_u32 s23, s23, s24
         s_add_u32 s56, s23, 2048
         s_add_u32 s57, s56, 16384
         s_mov_b32 s36, s{po}
         s_mov_b32 s37, s{po1}
         s_mov_b32 s38, 0x800000
         s_mov_b32 s39, 0x20000""".format(p=sP, tt=sTT, L=vL, J=sJ, TQ=sTQ, HG=sHG, po=P_OUT, po1=P_OUT+1))
    for k in range(16):
        wait(vm=15 - k)
        A("v_mfma_f32_32x32x16_bf16 %s, %s, %s, %s" % (v(WACC, 16), v(WOF + 4*k, 4), v(OF + 4*k, 4), "0" if k == 0 else v(WACC, 16)))
    bar()
    A("s_nop 7\ns_nop 3")
    for g in range(4):
        A("ds_write_b128 v%d, %s" % (4 + g, v(WACC + 4*g, 4)))
    wait(lg=0); bar()
    A("""ds_read_b128 v[16:19], v13
         ds_read_b128 v[20:23], v13 offset:16384
         ds_read_b128 v[24:27], v14 offset:512
         ds_read_b128 v[28:31], v14 offset:16896""")
    wait(lg=2)
    for e in range(4): A("v_add_f32 v%d, v%d, v%d" % (16 + e, 16 + e, 20 + e))
    A("buffer_store_dwordx4 v[16:19], v15, s[36:39], s56 offen %s" % opts.get("ostore", ""))
    wait(lg=0)
    for e in range(4): A("v_add_f32 v%d, v%d, v%d" % (24 + e, 24 + e, 28 + e))
    A("buffer_store_dwordx4 v[24:27], v15, s[36:39], s57 offen %s" % opts.get("ostore", ""))
    A("""s_or_b32 s23, s2, s3
         s_cmp_eq_u32 s23, 0
         s_cbranch_scc0 L_NE
         s_add_u32 s23, s{ep}, 1
         v_mov_b32 v3, s23""".format(ep=sEP))
    one_lane(["buffer_store_dword v3, off, s[12:15], 0 sc1"])
    A.label("L_NE")
    stamp(7)
    stamp_out()
    A.label("L_END")
    A("s_endpgm")
    A.label("L_AW")
    A("s_mov_b32 s%d, 0" % sSPIN)
    A.label("L_AW2")
    A("""ds_read_b32 v{cn}, v{ca}
         s_add_u32 s{sp}, s{sp}, 1
         s_cmp_gt_u32 s{sp}, {SP}
         s_cbranch_scc1 L_AR
         s_waitcnt lgkmcnt(0)
         v_cmp_gt_u32 vcc, 4, v{cn}
         s_nop 1
         s_cbranch_vccnz L_AW2
         s_branch L_AR""".format(cn=vCN, ca=vCA2, sp=sSPIN, SP=SPIN))
    A.label("L_FB")
    A("v_lshlrev_b32 v%d, 4, v%d\nv_mov_b32 v29, 0xff800000\ns_mov_b32 s58, 0" % (vKA, vL))
    wait(lg=0)
    A.label("L_FB1")
    A("ds_read_b128 %s, v%d" % (v(K, 4), vKA))
    wait(lg=0)
    A("v_mfma_f32_32x32x16_bf16 %s, %s, %s, 0\ns_nop 7\ns_nop 3" % (v(S0, 16), v(K, 4), v(Q, 4)))
    for q in range(8): A("v_max3_f32 v29, v29, v%d, v%d" % (S0 + 2*q, S0 + 2*q + 1))
    A("""v_add_u32 v{ka}, 2048, v{ka}
         s_add_u32 s58, s58, 1
         s_cmp_lt_u32 s58, 64
         s_cbranch_scc1 L_FB1
         v_mov_b32 v30, v29
         s_nop 1
         v_permlane32_swap_b32 v29, v30
         v_max_f32 v29, v29, v30
         v_lshlrev_b32 v{ka}, 4, v{L}
         s_mov_b32 s58, 0""".format(ka=vKA, L=vL))
    for r in range(16): A("v_xor_b32 v%d, 0x80000000, v29\nv_mov_b32 v%d, 0" % (S1 + r, O + r))
    A.label("L_FB2")
    A("ds_read_b128 %s, v%d" % (v(K, 4), vKA))
    vreads(0)
    wait(lg=0)
    A("v_mfma_f32_32x32x16_bf16 %s, %s, %s, %s\ns_nop 7\ns_nop 3" % (v(S0, 16), v(K, 4), v(Q, 4), v(S1, 16)))
    for e in range(16): A("v_exp_f32 v%d, v%d" % (S0 + e, S0 + e))
    A("s_nop 0")
    for q in range(8): A("v_cvt_pk_bf16_f32 v%d, v%d, v%d" % (P + q, S0 + 2*q, S0 + 2*q + 1))
    A("s_nop 1")
    A("v_mfma_f32_32x32x16_bf16 %s, %s, %s, %s" % (v(O, 16), v(V0, 4), v(P, 4), v(O, 16)))
    A("v_mfma_f32_32x32x16_bf16 %s, %s, %s, %s" % (v(O, 16), v(V1, 4), v(P + 4, 4), v(O, 16)))
    A("""v_add_u32 v{ka}, 2048, v{ka}
         s_add_u32 s58, s58, 1
         s_nop 7
         s_cmp_lt_u32 s58, 64
         s_cbranch_scc1 L_FB2
         s_nop 7
         s_branch L_FBR""".format(ka=vKA))
    A.label("L_CODE_END")
    return A

HEADER = """; fused S5 SSM + multi-head attention block, one persistent launch: 256 workgroups x 12 waves
; @launch grid=(256,1,1) block=(768,1,1) lds=%d
.amdgcn_target "amdgcn-amd-amdhsa--gfx950"
.text
.globl %s_kernel
""" % (LDS_BYTES, NAME)
FOOTER = """.section .rodata,"a"
.p2align 6
.amdhsa_kernel %s_kernel
  .amdhsa_next_free_vgpr 168
  .amdhsa_next_free_sgpr 102
  .amdhsa_accum_offset 168
  .amdhsa_group_segment_fixed_size 0
  .amdhsa_kernarg_size 120
  .amdhsa_user_sgpr_count 2
  .amdhsa_user_sgpr_kernarg_segment_ptr 1
  .amdhsa_system_sgpr_workgroup_id_x 1
.end_amdhsa_kernel
""" % NAME

def build(path, **kw):
    A = gen(**kw)
    probs = lint(A.lines)
    for p in probs: print("HAZARD:", p)
    body = A.text()
    pre = ""
    open(path, "w").write(HEADER + body + pre + FOOTER)
    return probs

if __name__ == "__main__":
    out = sys.argv[1] if len(sys.argv) > 1 else "cdna_kernels/%s.s" % NAME
    kw = {}
    if "stamps" in sys.argv: kw["stamps"] = True
    if "safe" in sys.argv: kw["force_safe"] = True
    build(out, **kw)
```

```python
import sys
from asmlib import Asm, v, s, lint

NAME = "concat_heads__ssm_conv_s5__mha_block__prompt"
WS_XCC, WS_FKVG, WS_FL, WS_FP, WS_FG, WS_FO, WS_E = 0x1000, 0x2000, 0x2800, 0x3000, 0x4000, 0x6000, 0x10000
MB = 1 << 20
WS_KVG, WS_KVL, WS_Q, WS_G, WS_O, WS_C, WS_WO, WS_DBG = 1*MB, 5*MB, 9*MB, 11*MB, 15*MB, 17*MB, 18*MB, 19*MB
WS_SIZE = 20 * MB
L_RING = 65536
L_SCR = 131072
L_XW = 147456
L_CNT = L_XW + 1024
LDS_BYTES = 163840
SPIN = 1 << 18

sW, sJ, sI, sTQ, sHG, sTAG, sEP, sFAST = 3, 16, 17, 18, 19, 20, 21, 22
S_XB, S_WQ, S_WS, S_OUT, S_XA = 4, 8, 12, 36, 40
sVM = 44
sT = list(range(23, 36))
P_AX, P_LRE, P_LIM, P_BRE, P_BIM, P_CRE, P_CIM, P_LDT = 64, 66, 68, 70, 72, 74, 76, 78
P_DSK, P_WO, P_OUT = 80, 84, 86
sXCC = 46
sSPIN = 47
vL = 1
VSTAMP = 167

def gen(stamps=False, force_safe=False, opts=None):
    opts = opts or {}
    A = Asm()
    uid = [0]
    def lab(p):
        uid[0] += 1
        return "L_%s%d" % (p, uid[0])
    def stamp(k):
        if stamps:
            A("s_memrealtime s[98:99]\ns_waitcnt lgkmcnt(0)\nv_writelane_b32 v%d, s98, %d" % (VSTAMP, k))
    def cstamp(k):
        if stamps:
            A("s_memtime s[98:99]\ns_waitcnt lgkmcnt(0)\nv_writelane_b32 v%d, s98, %d" % (VSTAMP, k))
    def stamp_out():
        if stamps == "dbg":
            A("""s_load_dwordx2 s[92:93], s[0:1], 104
                 s_mov_b32 s94, 256
                 s_mov_b32 s95, 0x20000
                 v_readlane_b32 s98, v%d, 0
                 s_not_b32 s98, s98
                 s_cmp_ge_u32 s3, 8
                 s_cselect_b32 s99, 28, 0
                 v_lshlrev_b32 v166, 2, v%d
                 s_waitcnt lgkmcnt(0)
                 s_mov_b64 exec, 0xfe
                 buffer_atomic_umax v%d, v166, s[92:95], s99 offen
                 s_mov_b64 exec, 1
                 v_mov_b32 v165, s98
                 buffer_atomic_umax v165, off, s[92:95], 0 offset:60
                 buffer_atomic_umax v%d, off, s[92:95], 0
                 s_mov_b64 exec, -1""" % (VSTAMP, vL, VSTAMP, VSTAMP))
        elif stamps:
            A("""s_mul_i32 s98, s2, 12
                 s_add_u32 s98, s98, s%d
                 s_lshl_b32 s98, s98, 6
                 s_add_u32 s98, s98, %d
                 v_lshlrev_b32 v166, 2, v%d
                 s_mov_b64 exec, 0xffff
                 buffer_store_dword v%d, v166, s[12:15], s98 offen
                 s_mov_b64 exec, -1""" % (sW, WS_DBG, vL, VSTAMP))
    def wait(vm=None, lg=None):
        p = []
        if vm is not None: p.append("vmcnt(%d)" % vm)
        if lg is not None: p.append("lgkmcnt(%d)" % lg)
        A("s_waitcnt " + " ".join(p))
    def bar(): A("s_barrier")
    def mode_stores(lines):
        a, b = lab("safe"), lab("done")
        A("s_cmp_eq_u32 s%d, 0\ns_cbranch_scc1 %s" % (sFAST, a))
        for l in lines: A(l)
        A("s_branch %s" % b); A.label(a)
        for l in lines: A(l + " sc1")
        A.label(b)
    def one_lane(lines):
        A("s_mov_b64 exec, 1")
        for l in lines: A(l)
        A("s_mov_b64 exec, -1")
    def slot_load(dst, tmp):
        A("""v_and_b32 v%d, 31, v%d
             v_lshlrev_b32 v%d, 3, v%d
             s_lshl_b32 s23, s%d, 8
             s_add_u32 s23, s23, %d
             buffer_load_dwordx2 %s, v%d, s[12:15], s23 offen sc1""" % (tmp, vL, tmp, tmp, sJ, WS_XCC, v(dst, 2), tmp))
    def slot_eval(dst):
        A("""v_cmp_eq_u32 s[24:25], s%d, v%d
             v_cmp_eq_u32 vcc, s%d, v%d
             s_nop 1
             s_and_b64 vcc, vcc, s[24:25]
             s_cmp_eq_u64 vcc, -1
             s_cselect_b32 s%d, %d, 0""" % (sTAG, dst, sXCC, dst + 1, sFAST, 0 if force_safe else 1))
    def poll_all(addr_v, soff, tmp):
        l, d = lab("poll"), lab("pd")
        A("s_mov_b32 s%d, 0" % sSPIN)
        A.label(l)
        A("""buffer_load_dword v%d, v%d, s[12:15], %s offen sc1
             s_add_u32 s%d, s%d, 1
             s_cmp_gt_u32 s%d, %d
             s_cbranch_scc1 %s
             s_waitcnt vmcnt(0)
             v_cmp_ne_u32 vcc, s%d, v%d
             s_nop 1
             s_cbranch_vccnz %s""" % (tmp, addr_v, soff, sSPIN, sSPIN, sSPIN, SPIN, d, sTAG, tmp, l))
        A.label(d)
    def params(lre, lim, ldt, lr, li, t0, t1, t2):
        A("""v_lshlrev_b32 v{lre}, 16, v{lre}
             v_lshlrev_b32 v{lim}, 16, v{lim}
             v_lshlrev_b32 v{ldt}, 16, v{ldt}
             v_mul_f32 v{ldt}, 0x3fb8aa3b, v{ldt}
             v_exp_f32 v{ldt}, v{ldt}
             s_nop 0
             v_cvt_pk_bf16_f32 v{ldt}, v{ldt}, v{ldt}
             v_and_b32 v{ldt}, 0xffff0000, v{ldt}
             v_mul_f32 v{t0}, v{ldt}, v{lre}
             v_mul_f32 v{t1}, v{ldt}, v{lim}
             v_mul_f32 v{t0}, 0x3fb8aa3b, v{t0}
             v_mul_f32 v{t1}, 0.15915494, v{t1}
             v_exp_f32 v{t0}, v{t0}
             v_rndne_f32 v{t2}, v{t1}
             v_sub_f32 v{t1}, v{t1}, v{t2}
             v_cos_f32 v{lr}, v{t1}
             v_sin_f32 v{li}, v{t1}
             s_nop 0
             v_mul_f32 v{lr}, v{lr}, v{t0}
             v_mul_f32 v{li}, v{li}, v{t0}""".format(lre=lre, lim=lim, ldt=ldt, lr=lr, li=li, t0=t0, t1=t1, t2=t2))
    def param_loads(lre, lim, ldt, tmp):
        A("""v_and_b32 v{t}, 31, v{L}
             s_lshr_b32 s23, s{i}, 1
             s_lshl_b32 s23, s23, 6
             v_lshl_add_u32 v{t}, v{t}, 1, s23
             global_load_ushort v{a}, v{t}, s[{pa}:{pa1}]
             global_load_ushort v{b}, v{t}, s[{pb}:{pb1}]
             global_load_ushort v{c}, v{t}, s[{pc}:{pc1}]""".format(t=tmp, L=vL, i=sI, a=lre, b=lim, c=ldt,
             pa=P_LRE, pa1=P_LRE+1, pb=P_LIM, pb1=P_LIM+1, pc=P_LDT, pc1=P_LDT+1))
    def tag_from_epoch():
        A("s_mul_i32 s%d, s%d, 0x9E3779B1\ns_add_u32 s%d, s%d, 0x7F4A7C15" % (sTAG, sEP, sTAG, sTAG))
    def dma_lane_regs(sidx, piece, rho):
        A("""v_lshrrev_b32 v{rho}, 3, v{L}
             v_lshrrev_b32 v{p}, 4, v{L}
             s_and_b32 s23, s{si}, 1
             s_lshl_b32 s23, s23, 2
             v_add_u32 v{p}, s23, v{p}
             v_xor_b32 v{p}, v{p}, v{L}
             v_and_b32 v{p}, 7, v{p}
             v_lshlrev_b32 v{p}, 4, v{p}""".format(rho=rho, p=piece, L=vL, si=sidx))
    def frag_addr(dst4, t0, t1):
        A("""v_and_b32 v{t0}, 31, v{L}
             v_lshrrev_b32 v{t1}, 1, v{t0}
             v_lshrrev_b32 v{d}, 5, v{L}
             v_xor_b32 v{t1}, v{t1}, v{d}
             v_and_b32 v{t1}, 7, v{t1}
             v_lshlrev_b32 v{t1}, 4, v{t1}
             v_lshl_add_u32 v{d}, v{t0}, 7, v{t1}""".format(t0=t0, t1=t1, L=vL, d=dst4))
        for ks in (1, 2, 3):
            A("v_xor_b32 v%d, %d, v%d" % (dst4 + ks, 32 * ks, dst4))

    A(".p2align 8\n.type %s_kernel,@function" % NAME)
    A.label(NAME + "_kernel")
    A.label("L_START")
    if stamps:
        A("v_mov_b32 v%d, 0" % VSTAMP)
        stamp(0)
    A("""s_cmp_ge_u32 s2, 0x100
         s_cbranch_scc1 L_END
         s_load_dwordx2 s[4:5], s[0:1], 72
         s_load_dwordx2 s[8:9], s[0:1], 80
         s_load_dwordx2 s[12:13], s[0:1], 112
         s_load_dwordx16 s[64:79], s[0:1], 0
         s_load_dwordx2 s[80:81], s[0:1], 64
         s_load_dwordx4 s[84:87], s[0:1], 88
         v_lshrrev_b32 v2, 6, v0
         v_and_b32 v1, 63, v0
         s_and_b32 s16, s2, 7
         v_readfirstlane_b32 s3, v2
         s_lshr_b32 s17, s2, 3
         s_and_b32 s18, s17, 3
         s_lshr_b32 s19, s17, 2
         s_mov_b32 s6, 0x200000
         s_mov_b32 s7, 0x20000
         s_mov_b32 s10, 0x180000
         s_mov_b32 s11, 0x20000
         s_mov_b32 s14, %d
         s_mov_b32 s15, 0x20000
         s_getreg_b32 s%d, hwreg(HW_REG_XCC_ID, 0, 4)""" % (WS_SIZE, sXCC))
    A("s_cmp_ge_u32 s3, 8\ns_cbranch_scc0 L_ATT")

    sS = 48
    vXB, vXB2, vWo_, vW2 = 2, 3, 4, 5
    LRE, LIM, LDT = 6, 7, 8
    LAM, MU, NU, RHO, RHO8 = 10, 12, 14, 16, 18
    NLI, NMI, NNI, NRI, NR8I = 20, 21, 22, 23, 24
    A("s_sub_u32 s%d, s3, 8\ns_setprio 3" % sS)
    dma_lane_regs(sS, vXB, 9)
    A("""v_lshl_add_u32 v{xb}, v9, 10, v{xb}
         v_add_u32 v{xb2}, {d1}, v{xb}
         v_lshrrev_b32 v10, 4, v{L}
         v_and_b32 v10, 1, v10
         v_lshlrev_b32 v10, 2, v10
         v_xor_b32 v10, v10, v{L}
         v_and_b32 v10, 7, v10
         v_lshlrev_b32 v10, 4, v10
         v_mul_u32_u24 v{w}, 3072, v9
         v_add_u32 v{w}, v{w}, v10
         v_add_u32 v{w2}, {d2}, v{w}""".format(xb=vXB, xb2=vXB2, w=vWo_, w2=vW2, L=vL, d1=16384-2048, d2=16*3072-2048))
    sN0, sXO, sWO_, sM = 49, 50, 51, 52
    A("""s_and_b32 s23, s{S}, 1
         s_lshr_b32 s24, s{S}, 1
         s_lshl_b32 s24, s24, 2
         s_add_u32 s{n0}, s23, s24
         s_lshl_b32 s23, s{J}, 2
         s_add_u32 s23, s23, s{TQ}
         s_lshl_b32 s23, s23, 16
         s_lshl_b32 s24, s{n0}, 13
         s_add_u32 s{xo}, s23, s24
         s_mul_i32 s23, s{n0}, 24576
         s_lshl_b32 s24, s{HG}, 7
         s_add_u32 s{wo}, s23, s24
         s_lshl_b32 s{m}, s{n0}, 10
         s_waitcnt lgkmcnt(0)
         s_load_dword s{ep}, s[12:13], 0""".format(S=sS, n0=sN0, J=sJ, TQ=sTQ, HG=sHG, xo=sXO, wo=sWO_, m=sM, ep=sEP))
    if stamps:
        A("s_memrealtime s[96:97]")
    param_loads(LRE, LIM, LDT, 9)
    def dma_x(c_expr_m0, soff):
        A("""%s
             s_nop 0
             buffer_load_dwordx4 v%d, s[4:7], %s offen lds
             buffer_load_dwordx4 v%d, s[4:7], %s offen offset:2048 lds""" % (c_expr_m0, vXB, soff, vXB2, soff))
    def dma_w(c_expr_m0, soff):
        A("""%s
             s_nop 0
             buffer_load_dwordx4 v%d, s[8:11], %s offen lds
             buffer_load_dwordx4 v%d, s[8:11], %s offen offset:2048 lds""" % (c_expr_m0, vWo_, soff, vW2, soff))
    A("""s_mov_b32 s53, s{xo}
         s_add_u32 s54, s{wo}, 1024
         s_add_u32 s55, s{wo}, 2048
         s_mov_b32 s56, s{m}
         s_add_u32 s57, s{m}, {ring}
         s_mov_b32 s58, 0""".format(xo=sXO, wo=sWO_, m=sM, ring=L_RING))
    def kv_unit():
        dma_x("s_mov_b32 m0, s56", "s53")
        dma_w("s_mov_b32 m0, s57", "s54")
        dma_w("s_add_u32 m0, s57, 8192", "s55")
        A("""s_add_u32 s53, s53, 128
             s_add_u32 s54, s54, 196608
             s_add_u32 s55, s55, 196608
             s_add_u32 s56, s56, 8192
             s_add_u32 s57, s57, 16384""")
    A.label("L_HB")
    kv_unit()
    A("s_add_u32 s58, s58, 1\ns_cmp_lt_u32 s58, 6\ns_cbranch_scc1 L_HB")
    A("s_sub_u32 s57, s57, 98304")
    stamp(9)
    if stamps:
        A("v_writelane_b32 v%d, s96, 8" % VSTAMP)
    wait(vm=36); stamp(10)
    wait(vm=30); stamp(11); bar()
    stamp(1)
    params(LRE, LIM, LDT, LAM, LAM + 1, 25, 26, 27)
    wait(vm=24); bar()
    kv_unit()
    def csq(d, a):
        A("""v_mul_f32 v25, v{a1}, v{a1}
             v_mul_f32 v26, v{a}, v{a1}
             v_fma_f32 v{d}, v{a}, v{a}, -v25
             v_add_f32 v{d1}, v26, v26""".format(a=a, a1=a+1, d=d, d1=d+1))
    csq(MU, LAM); csq(MU, MU); csq(MU, MU); csq(MU, MU)
    wait(vm=24); bar()
    kv_unit()
    csq(NU, MU); csq(RHO, NU); csq(RHO, RHO); csq(RHO8, RHO); csq(RHO8, RHO8); csq(RHO8, RHO8)
    for n_, p_ in ((NLI, LAM), (NMI, MU), (NNI, NU), (NRI, RHO), (NR8I, RHO8)):
        A("v_xor_b32 v%d, 0x80000000, v%d" % (n_, p_ + 1))
    wait(vm=24); bar()
    A("s_mov_b32 s54, s%d" % sWO_)
    for q, nxt in zip(range(4), (22, 20, 18, 16)):
        dma_w("s_mov_b32 m0, s57", "s54")
        A("s_add_u32 s54, s54, 196608")
        dma_w("s_add_u32 m0, s57, 8192", "s54")
        A("s_add_u32 s54, s54, 196608\ns_add_u32 s57, s57, 16384")
        if q == 0:
            wait(lg=0); tag_from_epoch()
        if q == 1:
            frag_addr(32, 25, 26)
        wait(vm=nxt); bar()
    for nxt in (12, 8, 4, 0):
        wait(vm=nxt); bar()
    slot_load(28, 25)
    URE, UIM = 96, 112
    for r in range(32): A("v_mov_b32 v%d, 0" % (URE + r))
    A("""s_mov_b32 s58, 0
         s_mov_b32 s56, %d
         s_lshl_b32 s57, s%d, 12
         s_add_u32 s57, s57, 8192""" % (L_RING, sS))
    A.label("L_U")
    bar()
    A("s_add_u32 s23, s56, s57")
    for ks in range(4):
        A("v_add_u32 v%d, s23, v%d\nv_add_u32 v%d, s56, v%d" % (36 + ks, 32 + ks, 40 + ks, 32 + ks))
    for ks in range(4):
        A("""ds_read_b128 %s, v%d
             ds_read_b128 %s, v%d
             ds_read_b128 %s, v%d offset:4096""" % (v(48 + 12*ks, 4), 36 + ks, v(52 + 12*ks, 4), 40 + ks, v(56 + 12*ks, 4), 40 + ks))
    A("s_cmp_lg_u32 s%d, 0\ns_cbranch_scc1 L_UF" % sS)
    A("s_cmp_eq_u32 s58, 2\ns_cbranch_scc0 L_UF3")
    A("""s_lshl_b32 s23, s{HG}, 5
         s_lshl_b32 s24, s{J}, 2
         s_add_u32 s23, s23, s24
         s_add_u32 s23, s23, s{TQ}
         s_lshl_b32 s23, s23, 2
         s_add_u32 s23, s23, {f1}
         s_lshl_b32 s24, s{J}, 5
         s_add_u32 s24, s24, s{I}
         s_lshl_b32 s24, s24, 2
         s_add_u32 s25, s24, {f2}
         v_mov_b32 v25, s{TAG}""".format(HG=sHG, J=sJ, TQ=sTQ, I=sI, TAG=sTAG, f1=WS_FKVG, f2=WS_FP))
    one_lane(["buffer_store_dword v25, off, s[12:15], s23 sc1", "buffer_store_dword v25, off, s[12:15], s25 sc1"])
    A.label("L_UF3")
    A("s_cmp_eq_u32 s58, 3\ns_cbranch_scc0 L_UF")
    wait(vm=2)
    slot_eval(28)
    A("""s_lshl_b32 s24, s{J}, 5
         s_add_u32 s24, s24, s{I}
         s_lshl_b32 s24, s24, 2
         s_add_u32 s26, s24, {f}
         s_mov_b64 exec, 1""".format(J=sJ, I=sI, f=WS_FL))
    mode_stores(["buffer_store_dword v25, off, s[12:15], s26"])
    A("s_mov_b64 exec, -1")
    A.label("L_UF")
    for ks in range(4):
        wait(lg=9 - 3*ks)
        A("v_mfma_f32_32x32x16_bf16 %s, %s, %s, %s" % (v(URE, 16), v(48 + 12*ks, 4), v(52 + 12*ks, 4), v(URE, 16)))
        A("v_mfma_f32_32x32x16_bf16 %s, %s, %s, %s" % (v(UIM, 16), v(48 + 12*ks, 4), v(56 + 12*ks, 4), v(UIM, 16)))
    A("""s_add_u32 s56, s56, 24576
         s_cmp_eq_u32 s56, 163840
         s_cselect_b32 s56, 16384, s56
         s_add_u32 s58, s58, 1
         s_cmp_lt_u32 s58, 8
         s_cbranch_scc1 L_U""")
    stamp(2)
    wait(vm=0)
    slot_eval(28)
    vFA, vLin, vOne, vCA = 25, 26, 27, 28
    sOKlo = 59
    A("""v_and_b32 v{fa}, 31, v{L}
         v_lshlrev_b32 v{fa}, 2, v{fa}
         v_lshlrev_b32 v{lin}, 4, v{L}
         v_mov_b32 v{one}, 1
         v_mov_b32 v{ca}, {cnt}
         s_lshl_b32 s60, s{HG}, 7
         s_add_u32 s60, s60, {f}
         s_mov_b32 s{ok}, 0
         s_lshl_b32 s61, s{I}, 17
         s_lshl_b32 s23, s{S}, 12
         s_add_u32 s61, s61, s23
         s_add_u32 s61, s61, {kvg}
         s_add_u32 s62, s23, 16384
         s_mov_b32 s63, 1""".format(fa=vFA, lin=vLin, one=vOne, ca=vCA, cnt=L_CNT, L=vL, HG=sHG, f=WS_FKVG, ok=sOKlo, I=sI, S=sS, kvg=WS_KVG))
    def remote_blocks(pend, lbl):
        A.label(lbl)
        A("""s_add_u32 s24, s{J}, s63
             s_and_b32 s24, s24, 7
             s_lshl_b32 s25, s24, 2
             s_mov_b32 s{sp}, 0""".format(J=sJ, sp=sSPIN))
        A.label(lbl + "c")
        A("""s_lshr_b32 s26, s{ok}, s25
             s_and_b32 s26, s26, 15
             s_cmp_eq_u32 s26, 15
             s_cbranch_scc1 {l}g
             buffer_load_dword v29, v{fa}, s[12:15], s60 offen sc1
             s_add_u32 s{sp}, s{sp}, 1
             s_cmp_gt_u32 s{sp}, {SP}
             s_cbranch_scc1 {l}g
             s_waitcnt vmcnt(0)
             v_cmp_eq_u32 vcc, s{TAG}, v29
             s_nop 1
             s_mov_b32 s{ok}, vcc_lo
             s_branch {l}c""".format(ok=sOKlo, l=lbl, fa=vFA, sp=sSPIN, SP=SPIN, TAG=sTAG))
        A.label(lbl + "g")
        A("""s_lshl_b32 s24, s24, 14
             s_add_u32 s24, s24, s61
             s_mov_b32 m0, s62
             s_add_u32 s62, s62, 16384
             buffer_load_dwordx4 v{lin}, s[12:15], s24 offen sc1 lds
             buffer_load_dwordx4 v{lin}, s[12:15], s24 offen offset:1024 sc1 lds
             buffer_load_dwordx4 v{lin}, s[12:15], s24 offen offset:2048 sc1 lds
             buffer_load_dwordx4 v{lin}, s[12:15], s24 offen offset:3072 sc1 lds
             s_add_u32 s63, s63, 1
             s_cmp_lt_u32 s63, {pend}
             s_cbranch_scc1 {l}""".format(lin=vLin, pend=pend, l=lbl))
    def signal(p):
        one_lane(["ds_add_u32 v%d, v%d offset:%d" % (vCA, vOne, 4 * p)])
    remote_blocks(5, "L_RA")
    stamp(3)
    a, b = 30, 32
    A("v_mov_b32 v30, v%d\nv_mov_b32 v31, v%d" % (URE, UIM))
    for r in range(1, 16):
        A("""v_fma_f32 v{b}, v{lr}, v{a}, v{dr}
             v_fma_f32 v{b1}, v{lr}, v{a1}, v{di}
             v_fmac_f32 v{b}, v{nli}, v{a1}
             v_fmac_f32 v{b1}, v{li}, v{a}""".format(a=a, a1=a+1, b=b, b1=b+1, lr=LAM, li=LAM+1, nli=NLI, dr=URE+r, di=UIM+r))
        a, b = b, a
    A("""v_mov_b32 v34, v{a}
         v_mov_b32 v35, v{a1}
         v_mov_b32 v36, v{a}
         v_mov_b32 v37, v{a1}
         s_nop 1
         v_permlane32_swap_b32 v34, v36
         v_permlane32_swap_b32 v35, v37""".format(a=a, a1=a+1))
    def cacc(d, p, npi, x):
        A("""v_fmac_f32 v{d}, v{p}, v{x}
             v_fmac_f32 v{d1}, v{p}, v{x1}
             v_fmac_f32 v{d}, v{n}, v{x1}
             v_fmac_f32 v{d1}, v{p1}, v{x}""".format(d=d, d1=d+1, p=p, p1=p+1, n=npi, x=x, x1=x+1))
    cacc(36, MU, NMI, 34)
    A("""v_and_b32 v38, 31, v{L}
         v_lshlrev_b32 v38, 3, v38
         v_add_u32 v38, {xw}, v38
         s_lshl_b32 s23, s{S}, 8
         v_add_u32 v39, s23, v38
         ds_write_b64 v39, v[36:37]""".format(L=vL, xw=L_XW, S=sS))
    wait(vm=12, lg=0)
    signal(1)
    signal(10)
    A("s_mov_b32 s%d, 0" % sSPIN)
    A.label("L_XS")
    A("""ds_read_b32 v39, v{ca} offset:40
         s_add_u32 s{sp}, s{sp}, 1
         s_cmp_gt_u32 s{sp}, {SP}
         s_cbranch_scc1 L_XG
         s_waitcnt lgkmcnt(0)
         v_cmp_ne_u32 vcc, 4, v39
         s_nop 1
         s_cbranch_vccnz L_XS""".format(ca=vCA, sp=sSPIN, SP=SPIN))
    A.label("L_XG")
    WX = 40
    for k in range(4):
        A("ds_read_b64 %s, v38 offset:%d" % (v(WX + 2*k, 2), 256 * k))
    A("""s_add_u32 s4, s12, {e}
         s_addc_u32 s5, s13, 0
         s_mov_b32 s6, 0x20000
         s_mov_b32 s7, 0x20000
         s_lshl_b32 s27, s{J}, 1
         s_and_b32 s23, s{I}, 1
         s_add_u32 s27, s27, s23
         s_lshr_b32 s23, s{I}, 1
         s_lshl_b32 s23, s23, 9
         v_and_b32 v39, 31, v{L}
         v_lshl_add_u32 v39, v39, 4, s23""".format(e=WS_E, J=sJ, I=sI, L=vL))
    wait(lg=0)
    A("v_mov_b32 v48, v42\nv_mov_b32 v49, v43")
    cacc(48, NU, NNI, 40)
    A("v_mov_b32 v50, v44\nv_mov_b32 v51, v45")
    cacc(50, NU, NNI, 48)
    cacc(46, NU, NNI, 50)
    A("""v_mov_b32 v52, v46
         v_mov_b32 v53, s{TAG}
         v_mov_b32 v54, v47
         v_mov_b32 v55, s{TAG}
         s_lshl_b32 s23, s27, 13
         s_lshl_b32 s24, s{S}, 3
         s_lshl_b64 s[24:25], 0xff, s24
         s_mov_b64 exec, s[24:25]
         buffer_store_dwordx4 v[52:55], v39, s[4:7], s23 offen sc1
         s_mov_b64 exec, -1""".format(TAG=sTAG, S=sS))
    remote_blocks(8, "L_RB")
    wait(vm=21); signal(2)
    wait(vm=17); signal(3)
    wait(vm=13); signal(4)
    EX = 48
    A("""s_sub_u32 s23, s27, 1
         s_lshl_b32 s23, s23, 13
         v_lshrrev_b32 v29, 5, v{L}
         v_lshlrev_b32 v29, 16, v29
         v_sub_u32 v29, v39, v29
         v_add_u32 v80, s23, v29""".format(L=vL))
    for n in range(1, 8):
        A("v_subrev_u32 v%d, 8192, v%d" % (80 + n, 80 + n - 1))
    def e_loads():
        for n in range(8):
            A("buffer_load_dwordx4 %s, v%d, s[4:7], 0 offen sc1" % (v(EX + 4*n, 4), 80 + n))
    e_loads()
    wait(vm=16); signal(5)
    wait(vm=12); signal(6)
    wait(vm=8); signal(7)
    stamp(4)
    A("s_mov_b32 s%d, 0" % sSPIN)
    A.label("L_EC")
    wait(vm=0)
    A("s_mov_b64 s[30:31], -1")
    for n in range(8):
        A("""v_cmp_eq_u32 s[24:25], s{TAG}, v{t1}
             v_cmp_eq_u32 vcc, s{TAG}, v{t2}
             s_cmp_le_u32 s27, {n}
             s_cselect_b32 s28, -1, 0
             s_cmp_le_u32 s27, {n8}
             s_cselect_b32 s29, -1, 0
             s_and_b64 vcc, vcc, s[24:25]
             s_or_b64 vcc, vcc, s[28:29]
             s_and_b64 s[30:31], s[30:31], vcc""".format(TAG=sTAG, t1=EX+4*n+1, t2=EX+4*n+3, n=n, n8=n+8))
    A("""s_cmp_eq_u64 s[30:31], -1
         s_cbranch_scc1 L_EG
         s_add_u32 s{sp}, s{sp}, 1
         s_cmp_gt_u32 s{sp}, {SP}
         s_cbranch_scc1 L_EG""".format(sp=sSPIN, SP=SPIN))
    e_loads()
    A("s_branch L_EC")
    A.label("L_EG")
    def cacc2(dr, di, p, npi, xr, xi):
        A("""v_fmac_f32 v{dr}, v{p}, v{xr}
             v_fmac_f32 v{di}, v{p}, v{xi}
             v_fmac_f32 v{dr}, v{n}, v{xi}
             v_fmac_f32 v{di}, v{p1}, v{xr}""".format(dr=dr, di=di, p=p, p1=p+1, n=npi, xr=xr, xi=xi))
    for n in range(6, -1, -1):
        cacc2(EX + 4*n, EX + 4*n + 2, RHO, NRI, EX + 4*n + 4, EX + 4*n + 6)
    A("""v_mov_b32 v30, v{r}
         v_mov_b32 v31, v{i}
         v_mov_b32 v32, v{r}
         v_mov_b32 v33, v{i}
         s_nop 1
         v_permlane32_swap_b32 v30, v32
         v_permlane32_swap_b32 v31, v33""".format(r=EX, i=EX+2))
    cacc(30, RHO8, NR8I, 32)
    for k in range(3):
        A("s_cmp_le_u32 s%d, %d\ns_cbranch_scc1 L_PG" % (sS, k))
        cacc(WX + 2*k, NU, NNI, 30)
        A("v_mov_b32 v30, v%d\nv_mov_b32 v31, v%d" % (WX + 2*k, WX + 2*k + 1))
    A.label("L_PG")
    A("s_mov_b32 exec_lo, 0")
    cacc(34, MU, NMI, 30)
    A("v_mov_b32 v30, v34\nv_mov_b32 v31, v35\ns_mov_b32 exec_lo, -1")
    cacc2(URE, UIM, LAM, NLI, 30, 31)
    for r in range(1, 16):
        cacc2(URE + r, UIM + r, LAM, NLI, URE + r - 1, UIM + r - 1)
    for k in range(8):
        A("v_cvt_pk_bf16_f32 v%d, v%d, v%d" % (48 + k, URE + 2*k, URE + 2*k + 1))
    for k in range(8):
        A("v_cvt_pk_bf16_f32 v%d, v%d, v%d" % (56 + k, UIM + 2*k, UIM + 2*k + 1))
    A("""s_lshl_b32 s23, s{S}, 12
         s_add_u32 s34, s23, {scr}
         v_and_b32 v30, 31, v{L}
         v_lshrrev_b32 v31, 5, v{L}
         v_lshlrev_b32 v32, 5, v31
         v_lshl_add_u32 v30, v30, 6, v32
         v_add_u32 v30, s34, v30
         ds_write_b128 v30, v[48:51]
         ds_write_b128 v30, v[52:55] offset:16
         ds_write_b128 v30, v[56:59] offset:2048
         ds_write_b128 v30, v[60:63] offset:2064
         v_bfe_u32 v32, v{L}, 2, 2
         v_lshl_add_u32 v32, v31, 3, v32
         v_lshlrev_b32 v32, 6, v32
         v_bfe_u32 v33, v{L}, 4, 1
         v_lshl_add_u32 v32, v33, 5, v32
         v_and_b32 v33, 3, v{L}
         v_lshl_add_u32 v32, v33, 3, v32
         v_add_u32 v32, s34, v32""".format(S=sS, scr=L_SCR, L=vL))
    wait(lg=0)
    for f in range(4):
        for rd in range(2):
            A("ds_read_b64_tr_b16 %s, v32 offset:%d" % (v(64 + 4*f + 2*rd, 2), f * 1024 + rd * 256))
    A("""s_lshl_b32 s23, s27, 2
         s_add_u32 s35, s23, s{S}
         s_lshl_b32 s23, s35, 16
         s_lshr_b32 s24, s{I}, 1
         s_lshl_b32 s24, s24, 12
         s_add_u32 s23, s23, s24
         s_add_u32 s26, s23, {g}""".format(S=sS, I=sI, g=WS_G))
    wait(lg=0)
    mode_stores(["buffer_store_dwordx4 %s, v%d, s[12:15], s26 offen offset:%d" % (v(64 + 4*f, 4), vLin, 1024*f) for f in range(4)])
    A("""s_lshl_b32 s28, s{HG}, 7
         s_add_u32 s28, s28, {fp}""".format(HG=sHG, fp=WS_FP))
    poll_all(vFA, "s28", 29)
    wait(vm=0)
    A("""s_lshl_b32 s23, s35, 4
         s_lshr_b32 s24, s{I}, 1
         s_add_u32 s23, s23, s24
         s_lshl_b32 s23, s23, 2
         s_add_u32 s26, s23, {fg}
         v_mov_b32 v29, s{TAG}
         s_mov_b64 exec, 1""".format(I=sI, fg=WS_FG, TAG=sTAG))
    mode_stores(["buffer_store_dword v29, off, s[12:15], s26"])
    A("s_mov_b64 exec, -1")
    stamp(5)
    A("""s_lshl_b32 s23, s{J}, 2
         s_add_u32 s23, s23, s{TQ}
         s_lshl_b32 s23, s23, 1
         s_and_b32 s24, s{S}, 1
         s_add_u32 s35, s23, s24
         s_lshl_b32 s28, s35, 6
         s_add_u32 s28, s28, {fg}
         v_and_b32 v30, 15, v{L}
         v_lshlrev_b32 v30, 2, v30
         s_lshl_b32 s23, s{HG}, 1
         s_lshr_b32 s24, s{S}, 1
         s_add_u32 s33, s23, s24
         s_lshl_b32 s53, s33, 16
         s_add_u32 s53, s53, {c}
         s_lshl_b32 s54, s35, 16
         s_add_u32 s54, s54, {g}
         s_add_u32 s55, s53, 4096
         s_add_u32 s56, s54, 4096""".format(J=sJ, TQ=sTQ, S=sS, fg=WS_FG, L=vL, HG=sHG, c=WS_C, g=WS_G))
    poll_all(30, "s28", 29)
    stamp(6)
    YR, YACC = 32, 128
    def yload(k):
        A("buffer_load_dwordx4 %s, v%d, s[12:15], s%d offen offset:%d sc1" % (v(YR + 8*k, 4), vLin, 53 if k < 4 else 55, 1024 * (k & 3)))
        A("buffer_load_dwordx4 %s, v%d, s[12:15], s%d offen offset:%d sc1" % (v(YR + 8*k + 4, 4), vLin, 54 if k < 4 else 56, 1024 * (k & 3)))
    def ystep():
        A("s_add_u32 s53, s53, 8192\ns_add_u32 s54, s54, 8192\ns_add_u32 s55, s55, 8192\ns_add_u32 s56, s56, 8192")
    for k in range(8): yload(k)
    for r in range(16): A("v_mov_b32 v%d, 0" % (YACC + r))
    A("s_mov_b32 s58, 0")
    A.label("L_Y")
    ystep()
    for k in range(8):
        wait(vm=14)
        A("v_mfma_f32_32x32x16_bf16 %s, %s, %s, %s" % (v(YACC, 16), v(YR + 8*k, 4), v(YR + 8*k + 4, 4), v(YACC, 16)))
        yload(k)
    A("s_add_u32 s58, s58, 1\ns_cmp_lt_u32 s58, 7\ns_cbranch_scc1 L_Y")
    A("""v_lshrrev_b32 v2, 3, v{L}
         v_and_b32 v3, 7, v{L}
         s_lshl_b32 s23, s35, 15
         s_lshl_b32 s24, s33, 6
         s_add_u32 s23, s23, s24
         v_lshlrev_b32 v4, 10, v2
         v_lshl_add_u32 v4, v3, 3, v4
         v_add_u32 v4, s23, v4
         v_lshl_add_u32 v5, v3, 3, s24
         global_load_dwordx2 v[6:7], v5, s[{dk}:{dk1}]""".format(L=vL, dk=P_DSK, dk1=P_DSK+1))
    for n in range(4):
        A("global_load_dwordx2 %s, v4, s[%d:%d]" % (v(8 + 2*n, 2), P_AX, P_AX + 1))
        if n < 3: A("v_add_u32 v4, 8192, v4")
    for k in range(8):
        wait(vm=14 - 2*k + 5)
        A("v_mfma_f32_32x32x16_bf16 %s, %s, %s, %s" % (v(YACC, 16), v(YR + 8*k, 4), v(YR + 8*k + 4, 4), v(YACC, 16)))
    A("""s_mov_b32 s36, s{po}
         s_mov_b32 s37, s{po1}
         s_mov_b32 s38, 0x800000
         s_mov_b32 s39, 0x20000
         v_and_b32 v16, 31, v{L}
         v_lshrrev_b32 v17, 5, v{L}
         v_xor_b32 v17, v17, v16
         v_and_b32 v17, 7, v17
         v_lshlrev_b32 v17, 4, v17
         v_lshl_add_u32 v16, v16, 7, v17
         v_add_u32 v16, s34, v16
         v_xor_b32 v17, 32, v16
         v_xor_b32 v18, 64, v16
         v_xor_b32 v19, 96, v16
         v_xor_b32 v20, v2, v3
         v_lshlrev_b32 v20, 4, v20
         v_lshl_add_u32 v20, v2, 7, v20
         v_add_u32 v20, s34, v20
         v_lshlrev_b32 v21, 12, v2
         v_lshl_add_u32 v21, v3, 4, v21
         s_lshl_b32 s23, s35, 17
         s_lshl_b32 s24, s33, 7
         s_add_u32 s23, s23, s24""".format(po=P_OUT, po1=P_OUT+1, L=vL))
    for g in range(4):
        A("ds_write_b128 v%d, %s" % (16 + g, v(YACC + 4*g, 4)))
    wait(vm=0, lg=0)
    for n in range(4):
        A("ds_read_b128 %s, v20 offset:%d" % (v(32 + 4*n, 4), 1024*n))
    A("""v_lshlrev_b32 v22, 16, v6
         v_and_b32 v23, 0xffff0000, v6
         v_lshlrev_b32 v24, 16, v7
         v_and_b32 v25, 0xffff0000, v7""")
    for n in range(4):
        x = 8 + 2*n
        A("""v_lshlrev_b32 v26, 16, v{x}
             v_and_b32 v27, 0xffff0000, v{x}
             v_lshlrev_b32 v28, 16, v{x1}
             v_and_b32 v29, 0xffff0000, v{x1}""".format(x=x, x1=x+1))
        wait(lg=3 - n)
        for e in range(4):
            A("v_fmac_f32 v%d, v%d, v%d" % (32 + 4*n + e, 26 + e, 22 + e))
        A("buffer_store_dwordx4 %s, v21, s[36:39], s23 offen %s" % (v(32 + 4*n, 4), opts.get("ystore", "sc1")))
        if n < 3: A("s_add_u32 s23, s23, 32768")
    stamp(7)
    stamp_out()
    A("s_endpgm")

    A.label("L_ATT")
    vXa, vWa, vWc = 2, 6, 7
    XF, WF, XF2, WF2, ACC = 16, 32, 48, 64, 80
    sP, sTT = 48, 49
    A("""s_and_b32 s{p}, s3, 1
         s_lshr_b32 s{tt}, s3, 1
         s_and_b32 s{tt}, s{tt}, 1
         s_mov_b32 s{vm}, 0xffff
         s_mov_b32 s{vm1}, 0xffff""".format(p=sP, tt=sTT, vm=sVM, vm1=sVM+1))
    if opts.get("codepf", True):
        A("""s_cmp_eq_u32 s3, 6
             s_cbranch_scc0 L_NOPF
             s_getpc_b64 s[24:25]
             L_PC:
             s_sub_u32 s24, s24, L_PC-L_START
             s_subb_u32 s25, s25, 0
             v_lshlrev_b32 v8, 7, v1
             global_load_dword v160, v8, s[24:25]
             v_add_u32 v8, 8192, v8
             v_min_u32 v8, L_CODE_END-L_START-4, v8
             global_load_dword v161, v8, s[24:25]""")
        A.label("L_NOPF")
    frag_addr(vXa, 8, 9)
    A("s_lshl_b32 s23, s%d, 12" % sTT)
    for ks in range(4):
        A("v_add_u32 v%d, s23, v%d" % (vXa + ks, vXa + ks))
    A("""v_bfe_u32 v8, v{L}, 2, 2
         v_lshrrev_b32 v9, 5, v{L}
         v_lshl_add_u32 v9, v9, 3, v8
         v_lshlrev_b32 v{wa}, 7, v9
         v_bfe_u32 v9, v{L}, 4, 1
         s_lshl_b32 s23, s{p}, 1
         v_add_u32 v9, s23, v9
         v_and_b32 v8, 2, v8
         v_xor_b32 v9, v9, v8
         v_lshl_add_u32 v{wa}, v9, 5, v{wa}
         v_and_b32 v8, 3, v{L}
         s_waitcnt lgkmcnt(0)
         s_load_dword s{ep}, s[12:13], 0
         s_cmp_ge_u32 s3, 4
         s_cbranch_scc1 L_VPRE""".format(L=vL, wa=vWa, p=sP, ep=sEP))
    param_loads(96, 97, 98, 9)
    A("""v_lshrrev_b32 v9, 1, v8
         v_lshlrev_b32 v10, 1, v8
         v_and_b32 v10, 2, v10
         v_or_b32 v9, v9, v10
         v_lshl_add_u32 v{wa}, v9, 3, v{wa}
         s_lshl_b32 s23, s{J}, 1
         s_and_b32 s24, s{I}, 1
         s_add_u32 s26, s23, s24
         s_lshl_b32 s23, s26, 15
         s_lshr_b32 s27, s{I}, 1
         s_lshl_b32 s24, s27, 6
         s_add_u32 s23, s23, s24
         s_lshl_b32 s24, s{p}, 5
         s_add_u32 s23, s23, s24
         v_and_b32 v9, 31, v{L}
         v_lshrrev_b32 v10, 5, v{L}
         v_lshlrev_b32 v11, 4, v10
         v_lshl_add_u32 v9, v9, 10, v11
         v_add_u32 v9, s23, v9
         global_load_dwordx4 v[100:103], v9, s[{cr}:{cr1}]
         global_load_dwordx4 v[104:107], v9, s[{ci}:{ci1}]
         v_lshlrev_b32 v10, 5, v10
         s_lshl_b32 s24, s{p}, 6
         v_add_u32 v10, s24, v10""".format(wa=vWa, J=sJ, I=sI, p=sP, L=vL, cr=P_CRE, cr1=P_CRE+1, ci=P_CIM, ci1=P_CIM+1))
    wait(vm=2)
    params(96, 97, 98, 108, 109, 110, 111, 112)
    A("""v_add_f32 v108, -1.0, v108
         v_mul_f32 v110, v96, v96
         v_fmac_f32 v110, v97, v97
         v_rcp_f32 v110, v110
         v_mul_f32 v111, v108, v96
         v_mul_f32 v112, v109, v96
         v_add_f32 v110, v110, v110
         v_fmac_f32 v111, v109, v97
         v_fma_f32 v112, -v108, v97, v112
         v_mul_f32 v111, v111, v110
         v_mul_f32 v112, v112, v110
         v_xor_b32 v112, 0x80000000, v112
         s_cmp_eq_u32 s{tt}, 0
         s_cbranch_scc1 L_CP0
         v_xor_b32 v110, 0x80000000, v111
         v_mov_b32 v111, v112
         v_mov_b32 v112, v110""".format(tt=sTT))
    A.label("L_CP0")
    for e in range(8):
        A("ds_bpermute_b32 v%d, v10, v111 offset:%d" % (116 + e, 4*e))
    wait(lg=0)
    for e in range(8):
        A("ds_bpermute_b32 v%d, v10, v112 offset:%d" % (124 + e, 4*e))
    wait(vm=0)
    for e in range(8):
        src = 100 + e // 2
        A(("v_lshlrev_b32 v110, 16, v%d" if e % 2 == 0 else "v_and_b32 v110, 0xffff0000, v%d") % src)
        A("v_mul_f32 v%d, v%d, v110" % (116 + e, 116 + e))
    wait(lg=0)
    for e in range(8):
        src = 104 + e // 2
        A(("v_lshlrev_b32 v110, 16, v%d" if e % 2 == 0 else "v_and_b32 v110, 0xffff0000, v%d") % src)
        A("v_fmac_f32 v%d, v%d, v110" % (116 + e, 124 + e))
    for q in range(4):
        A("v_cvt_pk_bf16_f32 v%d, v%d, v%d" % (100 + q, 116 + 2*q, 117 + 2*q))
    A("""s_lshl_b32 s23, s26, 16
         s_lshl_b32 s24, s27, 2
         s_add_u32 s24, s24, s3
         s_lshl_b32 s24, s24, 10
         s_add_u32 s23, s23, s24
         s_add_u32 s23, s23, {c}
         v_lshlrev_b32 v9, 4, v{L}
         buffer_store_dwordx4 v[100:103], v9, s[12:15], s23 offen sc1""".format(tt=sTT, p=sP, c=WS_C, L=vL))
    tag_from_epoch()
    for r in range(16): A("v_mov_b32 v%d, 0" % (ACC + r))
    def chunk_reads(xf, wf, xoff, woff):
        for ks in range(4):
            A("ds_read_b128 %s, v%d offset:%d" % (v(xf + 4*ks, 4), vXa + ks, xoff))
            A("ds_read_b64_tr_b16 %s, v%d offset:%d" % (v(wf + 4*ks, 2), vWc, woff + 2048*ks))
            A("ds_read_b64_tr_b16 %s, v%d offset:%d" % (v(wf + 4*ks + 2, 2), vWc, woff + 2048*ks + 512))
    def kv_loop(lbl, is_k):
        A("s_mov_b32 s58, 0\ns_mov_b32 s56, %d" % (L_RING + (0 if is_k else 8192)))
        A.label(lbl)
        bar()
        A("v_add_u32 v%d, s56, v%d" % (vWc, vWa))
        chunk_reads(XF, WF, 0, 0)
        A("""s_add_u32 s56, s56, 16384
             s_cmp_ge_u32 s56, 163840
             s_cselect_b32 s23, 98304, 0
             s_sub_u32 s56, s56, s23""")
        for ks in range(4):
            wait(lg=9 - 3*ks)
            a_, b_ = (WF, XF) if is_k else (XF, WF)
            A("v_mfma_f32_32x32x16_bf16 %s, %s, %s, %s" % (v(ACC, 16), v(a_ + 4*ks, 4), v(b_ + 4*ks, 4), v(ACC, 16)))
            A("v_add_u32 v%d, 8192, v%d" % (vXa + ks, vXa + ks))
        A("s_add_u32 s58, s58, 1\ns_cmp_lt_u32 s58, 8\ns_cbranch_scc1 %s" % lbl)
    def tile_base():
        A("""s_lshl_b32 s23, s{J}, 2
             s_add_u32 s23, s23, s{TQ}
             s_lshl_b32 s23, s23, 1
             s_add_u32 s51, s23, s{tt}
             s_lshl_b32 s23, s{HG}, 1
             s_add_u32 s23, s23, s{p}
             s_lshl_b32 s52, s23, 18
             s_lshl_b32 s24, s51, 11
             s_add_u32 s50, s52, s24""".format(J=sJ, TQ=sTQ, tt=sTT, HG=sHG, p=sP))
    kv_loop("L_K", True)
    stamp(1)
    slot_load(12, 8)
    tile_base()
    PK = 96
    A("""s_add_u32 s53, s50, {g}
         s_add_u32 s54, s53, 131072
         v_lshlrev_b32 v9, 4, v{L}
         s_nop 0""".format(g=WS_KVG, L=vL))
    for ks in range(4):
        A("v_subrev_u32 v%d, 65536, v%d" % (vXa + ks, vXa + ks))
    for q in range(8):
        A("v_cvt_pk_bf16_f32 v%d, v%d, v%d" % (PK + q, ACC + 2*q, ACC + 2*q + 1))
    A("""buffer_store_dwordx4 v[96:99], v9, s[12:15], s53 offen sc1
         buffer_store_dwordx4 v[100:103], v9, s[12:15], s54 offen sc1""")
    for r in range(16): A("v_mov_b32 v%d, 0" % (ACC + r))
    A("s_mov_b32 s58, 0\nv_add_u32 v%d, %d, v%d" % (vWc, L_RING + 4*8192, vWa))
    A.label("L_Q")
    bar()
    chunk_reads(XF, WF, 0, 0)
    for ks in range(4):
        wait(lg=9)
        A("v_mfma_f32_32x32x16_bf16 %s, %s, %s, %s" % (v(ACC, 16), v(WF + 4*ks, 4), v(XF + 4*ks, 4), v(ACC, 16)))
        A("ds_read_b128 %s, v%d offset:8192" % (v(XF2 + 4*ks, 4), vXa + ks))
        A("ds_read_b64_tr_b16 %s, v%d offset:%d" % (v(WF2 + 4*ks, 2), vWc, 8192 + 2048*ks))
        A("ds_read_b64_tr_b16 %s, v%d offset:%d" % (v(WF2 + 4*ks + 2, 2), vWc, 8192 + 2048*ks + 512))
    for ks in range(4):
        wait(lg=9 - 3*ks)
        A("v_mfma_f32_32x32x16_bf16 %s, %s, %s, %s" % (v(ACC, 16), v(WF2 + 4*ks, 4), v(XF2 + 4*ks, 4), v(ACC, 16)))
        A("v_add_u32 v%d, 16384, v%d" % (vXa + ks, vXa + ks))
    A("v_add_u32 v%d, 16384, v%d" % (vWc, vWc))
    A("s_add_u32 s58, s58, 1\ns_cmp_lt_u32 s58, 4\ns_cbranch_scc1 L_Q")
    bar()
    stamp(2)
    wait(vm=2)
    slot_eval(12)
    A("""s_add_u32 s53, s50, {l}
         s_add_u32 s54, s53, 131072
         s_lshr_b32 s55, s50, 1
         s_add_u32 s55, s55, {q}
         s_add_u32 s56, s55, 65536
         s_mov_b32 s23, 0x3eb8aa3b""".format(l=WS_KVL, q=WS_Q))
    for r in range(16):
        A("v_mul_f32 v%d, s23, v%d" % (ACC + r, ACC + r))
    for q in range(8):
        A("v_cvt_pk_bf16_f32 v%d, v%d, v%d" % (104 + q, ACC + 2*q, ACC + 2*q + 1))
    mode_stores(["buffer_store_dwordx4 v[104:107], v9, s[12:15], s55 offen", "buffer_store_dwordx4 v[108:111], v9, s[12:15], s56 offen",
                 "buffer_store_dwordx4 v[96:99], v9, s[12:15], s53 offen", "buffer_store_dwordx4 v[100:103], v9, s[12:15], s54 offen"])
    bar()
    wait(vm=4); bar()
    wait(vm=0); bar()
    bar()
    A("""v_and_b32 v8, 3, v{L}
         v_lshlrev_b32 v8, 2, v8
         s_lshl_b32 s23, s{J}, 3
         s_add_u32 s23, s23, s{HG}
         s_lshl_b32 s23, s23, 4
         s_add_u32 s28, s23, {fl}
         s_lshl_b32 s23, s{I}, 17
         s_lshl_b32 s24, s{J}, 14
         s_add_u32 s23, s23, s24
         s_lshl_b32 s25, s3, 12
         s_add_u32 s23, s23, s25
         s_add_u32 s29, s23, {kvl}""".format(L=vL, J=sJ, HG=sHG, I=sI, fl=WS_FL, kvl=WS_KVL))
    bar()
    poll_all(8, "s28", 10)
    A("s_mov_b32 m0, s25\ns_nop 0")
    for k in range(4):
        A("buffer_load_dwordx4 v9, s[12:15], s29 offen offset:%d sc1 lds" % (1024*k))
    bar()
    A("s_branch L_QLD")

    A.label("L_VPRE")
    A("v_lshl_add_u32 v%d, v8, 3, v%d" % (vWa, vWa))
    A("s_cmp_ge_u32 s3, 6\ns_cbranch_scc1 L_VP2")
    A("""s_and_b32 s23, s{I}, 30
         s_add_u32 s27, s23, s{p}
         s_lshl_b32 s23, s{J}, 1
         s_and_b32 s24, s{I}, 1
         s_add_u32 s26, s23, s24
         s_lshl_b32 s23, s27, 14
         s_lshl_b32 s24, s26, 6
         s_add_u32 s23, s23, s24
         v_and_b32 v9, 31, v{L}
         v_lshrrev_b32 v10, 5, v{L}
         v_lshlrev_b32 v10, 12, v10
         v_lshl_add_u32 v9, v9, 1, v10
         v_add_u32 v9, s23, v9
         v_add_u32 v10, 8192, v9""".format(I=sI, p=sP, J=sJ, L=vL))
    for e in range(8):
        A("global_load_ushort v%d, v%d, s[%d:%d] offset:%d" % (104 + e, 9 if e < 4 else 10, P_WO, P_WO + 1, 1024 * (e & 3)))
    A("""s_lshl_b32 s23, s26, 5
         s_add_u32 s23, s23, s27
         s_lshl_b32 s23, s23, 10
         s_add_u32 s23, s23, {wo}
         v_lshlrev_b32 v9, 4, v{L}""".format(wo=WS_WO, L=vL))
    wait(vm=0)
    for q in range(4):
        A("v_lshl_or_b32 v%d, v%d, 16, v%d" % (100 + q, 105 + 2*q, 104 + 2*q))
    A("buffer_store_dwordx4 v[100:103], v9, s[12:15], s23 offen sc1")
    A.label("L_VP2")
    wait(lg=0)
    tag_from_epoch()
    A("s_cmp_eq_u32 s3, 7\ns_cbranch_scc0 L_VP3")
    A("""v_mov_b32 v100, s{TAG}
         v_mov_b32 v101, s{X}
         s_lshl_b32 s23, s{J}, 5
         s_add_u32 s23, s23, s{I}
         s_lshl_b32 s23, s23, 3
         s_add_u32 s23, s23, {x}""".format(TAG=sTAG, X=sXCC, J=sJ, I=sI, x=WS_XCC))
    one_lane(["buffer_store_dwordx2 v[100:101], off, s[12:15], s23 sc1"])
    A.label("L_VP3")
    vXA, vXA2, vB, vB2 = 10, 11, 12, 13
    dma_lane_regs(sP, vB, 8)
    A("""v_lshrrev_b32 v9, 2, v8
         v_lshlrev_b32 v9, 4, v9
         v_and_b32 v{xa}, 3, v8
         v_add_u32 v9, v9, v{xa}
         v_lshl_add_u32 v{xa}, v9, 10, v{b}
         v_add_u32 v{xa2}, {d1}, v{xa}
         v_lshl_add_u32 v{b}, v8, 10, v{b}
         v_add_u32 v{b2}, {d2}, v{b}
         s_mov_b32 s40, s{ax}
         s_mov_b32 s41, s{ax1}
         s_mov_b32 s42, 0x200000
         s_mov_b32 s43, 0x20000
         s_cmp_eq_u32 s{tt}, 0
         s_cselect_b32 s36, s{br}, s{bi}
         s_cselect_b32 s37, s{br1}, s{bi1}
         s_mov_b32 s38, 0x80000
         s_mov_b32 s39, 0x20000
         s_lshl_b32 s23, s{J}, 1
         s_and_b32 s24, s{I}, 1
         s_add_u32 s23, s23, s24
         s_lshl_b32 s23, s23, 17
         s_lshl_b32 s24, s{tt}, 15
         s_add_u32 s23, s23, s24
         s_lshl_b32 s24, s{p}, 12
         s_add_u32 s59, s23, s24
         s_lshr_b32 s23, s{I}, 1
         s_lshl_b32 s23, s23, 15
         s_lshl_b32 s24, s{p}, 13
         s_add_u32 s60, s23, s24
         s_lshl_b32 s23, s{tt}, 2
         s_add_u32 s23, s23, s{p}
         s_lshl_b32 s61, s23, 10""".format(xa=vXA, xa2=vXA2, b=vB, b2=vB2, d1=8192-2048, d2=16384-2048, ax=P_AX, ax1=P_AX+1, tt=sTT,
                                          br=P_BRE, bi=P_BIM, br1=P_BRE+1, bi1=P_BIM+1, J=sJ, I=sI, p=sP))
    for r in range(16): A("v_mov_b32 v%d, 0" % (ACC + r))
    kv_loop("L_V", False)
    stamp(1)
    slot_load(14, 8)
    tile_base()
    A("""v_bfe_u32 v8, v{L}, 4, 1
         v_lshlrev_b32 v8, 17, v8
         v_lshrrev_b32 v9, 5, v{L}
         v_lshl_add_u32 v8, v9, 9, v8
         v_and_b32 v9, 15, v{L}
         v_lshl_add_u32 v8, v9, 4, v8
         s_add_u32 s53, s50, {g}
         s_add_u32 s54, s50, {l}""".format(L=vL, g=WS_KVG + 1024, l=WS_KVL + 1024))
    for q in range(8):
        A("v_cvt_pk_bf16_f32 v%d, v%d, v%d" % (PK + q, ACC + 2*q, ACC + 2*q + 1))
    A("""buffer_store_dwordx4 v[96:99], v8, s[12:15], s53 offen sc1
         buffer_store_dwordx4 v[100:103], v8, s[12:15], s53 offen offset:256 sc1""")
    def udma(c):
        base = 16384 + ((c + 2) % 6) * 24576
        A("""s_add_u32 m0, s61, {b0}
             s_add_u32 s23, s59, 65536
             buffer_load_dwordx4 v{b}, s[36:39], s60 offen lds
             buffer_load_dwordx4 v{b2}, s[36:39], s60 offen offset:2048 lds
             s_add_u32 m0, s61, {b1}
             s_add_u32 s60, s60, 128
             buffer_load_dwordx4 v{xa}, s[40:43], s59 offen lds
             buffer_load_dwordx4 v{xa2}, s[40:43], s59 offen offset:2048 lds
             s_add_u32 m0, s61, {b2_}
             s_add_u32 s59, s59, 128
             buffer_load_dwordx4 v{xa}, s[40:43], s23 offen lds
             buffer_load_dwordx4 v{xa2}, s[40:43], s23 offen offset:2048 lds""".format(b0=base, b1=base + 8192, b2_=base + 16384, b=vB, b2=vB2, xa=vXA, xa2=vXA2))
    bar(); udma(0)
    bar(); udma(1)
    wait(vm=14)
    slot_eval(14)
    mode_stores(["buffer_store_dwordx4 v[96:99], v8, s[12:15], s54 offen", "buffer_store_dwordx4 v[100:103], v8, s[12:15], s54 offen offset:256"])
    bar()
    bar(); udma(2)
    wait(vm=14); bar()
    stamp(2)
    udma(3); udma(4); udma(5)
    wait(vm=26); bar(); udma(6)
    wait(vm=24); bar(); udma(7)
    wait(vm=24); bar()
    wait(vm=18); bar()
    A("""v_lshlrev_b32 v8, 2, v{L}
         v_add_u32 v8, {cnt}, v8
         v_cmp_eq_u32 vcc, 8, v{L}
         v_mov_b32 v9, 0
         s_nop 0
         v_cndmask_b32 v9, v9, 4, vcc
         ds_write_b32 v8, v9""".format(L=vL, cnt=L_CNT))
    wait(vm=12, lg=0); bar()
    wait(vm=6); bar()
    A("v_lshlrev_b32 v9, 4, v%d" % vL)

    A.label("L_QLD")
    vKA, vCN, vCA2, Q, K, V0, V1, P, S0, S1, O = 2, 3, 28, 4, 8, 12, 16, 20, 32, 48, 64
    A("""s_lshl_b32 s23, s{I}, 6
         s_lshl_b32 s24, s{J}, 3
         s_add_u32 s50, s24, s3
         s_add_u32 s23, s23, s50
         s_lshl_b32 s23, s23, 10
         s_add_u32 s23, s23, {q}
         buffer_load_dwordx4 {Q}, v9, s[12:15], s23 offen sc1
         v_mov_b32 v{ka}, v9
         v_mov_b32 v{ca}, {cnt}""".format(I=sI, J=sJ, q=WS_Q, Q=v(Q, 4), ka=vKA, ca=vCA2, cnt=L_CNT + 4))
    for r in range(8): A("v_mov_b32 v%d, 0x3f803f80" % (V0 + r))
    for r in range(16): A("v_mov_b32 v%d, 0" % (O + r))
    wait(vm=0); bar()
    stamp(3); cstamp(14)
    def vreads(off):
        A("""s_mov_b64 exec, s[{m}:{m1}]
             ds_read_b128 {a}, v{ka} offset:{o0}
             ds_read_b128 {b}, v{ka} offset:{o1}
             s_mov_b64 exec, -1""".format(m=sVM, m1=sVM+1, a=v(V0, 4), b=v(V1, 4), ka=vKA, o0=off + 1024, o1=off + 1280))
    A("ds_read_b128 %s, v%d" % (v(K, 4), vKA))
    wait(lg=0)
    A("v_mfma_f32_32x32x16_bf16 %s, %s, %s, 0" % (v(S0, 16), v(K, 4), v(Q, 4)))
    A("ds_read_b128 %s, v%d offset:2048" % (v(K, 4), vKA))
    vreads(0)
    A("s_mov_b32 s58, 0\ns_nop 7")
    A("v_exp_f32 v%d, v%d\nv_exp_f32 v%d, v%d" % (S0, S0, S0 + 1, S0 + 1))
    PRIO = opts.get("prio")
    A(".p2align 6")
    A.label("L_A")
    for t in range(8):
        S, N = (S0, S1) if t % 2 == 0 else (S1, S0)
        for e in range(2, 8): A("v_exp_f32 v%d, v%d" % (S + e, S + e))
        wait(lg=0)
        A("v_mfma_f32_32x32x16_bf16 %s, %s, %s, 0" % (v(N, 16), v(K, 4), v(Q, 4)))
        for q in range(4): A("v_cvt_pk_bf16_f32 v%d, v%d, v%d" % (P + q, S + 2*q, S + 2*q + 1))
        for e in (8, 9): A("v_exp_f32 v%d, v%d" % (S + e, S + e))
        A("v_mfma_f32_32x32x16_bf16 %s, %s, %s, %s" % (v(O, 16), v(V0, 4), v(P, 4), v(O, 16)))
        for e in range(10, 16): A("v_exp_f32 v%d, v%d" % (S + e, S + e))
        if t == 5:
            A("v_readfirstlane_b32 s23, v%d" % vCN)
        for q in range(4, 8): A("v_cvt_pk_bf16_f32 v%d, v%d, v%d" % (P + q, S + 2*q, S + 2*q + 1))
        for e in (0, 1): A("v_exp_f32 v%d, v%d" % (N + e, N + e))
        A("v_mfma_f32_32x32x16_bf16 %s, %s, %s, %s" % (v(O, 16), v(V1, 4), v(P + 4, 4), v(O, 16)))
        if t == 5:
            A("s_cmp_lt_u32 s23, 4\ns_cbranch_scc1 L_AW")
            A.label("L_AR")
        A("ds_read_b128 %s, v%d offset:%d" % (v(K, 4), vKA, 2048 * (t + 2)))
        if t == 4:
            A("ds_read_b32 v%d, v%d" % (vCN, vCA2))
        vreads(2048 * (t + 1))
    A("""v_add_u32 v{ka}, 16384, v{ka}
         v_add_u32 v{ca}, 4, v{ca}
         s_add_u32 s58, s58, 1
         s_cmp_lt_u32 s58, 8
         s_cbranch_scc1 L_A""".format(ka=vKA, ca=vCA2))
    stamp(4); cstamp(15)
    A("""s_nop 7
         s_mov_b32 s23, 0x33800000
         s_mov_b32 s24, 0x53800000
         s_mov_b32 s25, 0x7f800000
         v_max3_f32 v8, |v{o0}|, |v{o1}|, |v{o2}|
         v_max3_f32 v9, |v{o3}|, |v{o4}|, |v{o5}|
         v_max3_f32 v8, |v{o6}|, |v{o7}|, v8
         v_cmp_le_f32 s[26:27], s23, v{l}
         v_cmp_ge_f32 s[28:29], s24, v{l}
         v_max_f32 v8, v8, v9
         v_add_f32 v9, v{o0}, v{o1}
         v_add_f32 v10, v{o2}, v{o3}
         v_add_f32 v11, v{o4}, v{o5}
         v_add_f32 v29, v{o6}, v{o7}
         v_add_f32 v9, v9, v10
         v_add_f32 v11, v11, v29
         v_cmp_gt_f32 s[30:31], s25, v8
         v_cmp_o_f32 vcc, v9, v11
         s_and_b64 s[26:27], s[26:27], s[28:29]
         s_and_b64 s[30:31], s[30:31], vcc
         s_and_b64 s[26:27], s[26:27], s[30:31]
         s_cmp_eq_u64 s[26:27], -1
         s_cbranch_scc0 L_FB""".format(o0=O, o1=O+1, o2=O+2, o3=O+3, o4=O+4, o5=O+5, o6=O+6, o7=O+7, l=O+8))
    A.label("L_FBR")
    A("v_rcp_f32 v29, v%d\nv_lshlrev_b32 v2, 4, v%d" % (O + 8, vL))
    for r in range(8): A("v_mul_f32 v%d, v%d, v29" % (O + r, O + r))
    for q in range(4): A("v_cvt_pk_bf16_f32 v%d, v%d, v%d" % (8 + q, O + 2*q, O + 2*q + 1))
    A("""s_lshl_b32 s23, s50, 5
         s_add_u32 s51, s23, s{I}
         s_lshl_b32 s23, s51, 10
         s_add_u32 s26, s23, {o}""".format(I=sI, o=WS_O))
    mode_stores(["buffer_store_dwordx4 v[8:11], v2, s[12:15], s26 offen"])
    WOF, OF, WACC = 80, 16, 144
    A("""v_and_b32 v3, 31, v{L}
         v_lshlrev_b32 v3, 2, v3
         s_lshl_b32 s28, s{HG}, 7
         s_add_u32 s28, s28, {fp}
         s_lshr_b32 s52, s3, 2
         s_lshl_b32 s23, s{HG}, 1
         s_add_u32 s23, s23, s{tt}
         s_lshl_b32 s23, s23, 1
         s_add_u32 s23, s23, s52
         s_lshl_b32 s23, s23, 14
         s_add_u32 s53, s23, {wo}
         s_lshl_b32 s23, s{J}, 2
         s_add_u32 s23, s23, s{TQ}
         s_lshl_b32 s23, s23, 1
         s_add_u32 s23, s23, s{p}
         s_lshl_b32 s23, s23, 1
         s_add_u32 s23, s23, s52
         s_lshl_b32 s54, s23, 14
         s_add_u32 s54, s54, {o}
         s_lshl_b32 s55, s23, 6
         s_add_u32 s55, s55, {fo}
         s_lshl_b32 s26, s51, 2
         s_add_u32 s26, s26, {fo}""".format(L=vL, HG=sHG, fp=WS_FP, tt=sTT, wo=WS_WO, J=sJ, TQ=sTQ, p=sP, o=WS_O, fo=WS_FO))
    poll_all(3, "s28", 29)
    wait(vm=0)
    A("v_mov_b32 v29, s%d\ns_mov_b64 exec, 1" % sTAG)
    mode_stores(["buffer_store_dword v29, off, s[12:15], s26"])
    A("s_mov_b64 exec, -1")
    stamp(5)
    for k in range(16):
        A("buffer_load_dwordx4 %s, v2, s[12:15], s53 offen offset:%d sc1" % (v(WOF + 4*k, 4), 1024 * (k & 3)))
        if k & 3 == 3 and k < 15: A("s_add_u32 s53, s53, 4096")
    A("v_and_b32 v3, 15, v%d\nv_lshlrev_b32 v3, 2, v3" % vL)
    poll_all(3, "s55", 29)
    stamp(6)
    for k in range(16):
        A("buffer_load_dwordx4 %s, v2, s[12:15], s54 offen offset:%d sc1" % (v(OF + 4*k, 4), 1024 * (k & 3)))
        if k & 3 == 3 and k < 15: A("s_add_u32 s54, s54, 4096")
    A("""s_lshl_b32 s23, s52, 1
         s_add_u32 s23, s23, s{p}
         s_lshl_b32 s23, s23, 1
         s_add_u32 s23, s23, s{tt}
         s_lshl_b32 s23, s23, 12
         v_and_b32 v4, 31, v{L}
         v_lshrrev_b32 v5, 5, v{L}
         v_xor_b32 v5, v5, v4
         v_and_b32 v5, 7, v5
         v_lshlrev_b32 v5, 4, v5
         v_lshl_add_u32 v4, v4, 7, v5
         v_add_u32 v4, s23, v4
         v_xor_b32 v5, 32, v4
         v_xor_b32 v6, 64, v4
         v_xor_b32 v7, 96, v4
         v_lshrrev_b32 v12, 4, v{L}
         v_and_b32 v13, 7, v{L}
         v_xor_b32 v13, v13, v12
         v_lshlrev_b32 v13, 4, v13
         v_lshl_add_u32 v13, v12, 7, v13
         v_bfe_u32 v14, v{L}, 3, 1
         v_lshl_add_u32 v13, v14, 12, v13
         s_lshl_b32 s23, s52, 13
         s_and_b32 s24, s3, 3
         s_lshl_b32 s24, s24, 10
         s_add_u32 s23, s23, s24
         v_add_u32 v13, s23, v13
         v_xor_b32 v14, 64, v13
         v_and_b32 v15, 15, v{L}
         v_lshlrev_b32 v15, 4, v15
         v_lshl_add_u32 v15, v12, 12, v15
         s_lshl_b32 s23, s{J}, 2
         s_add_u32 s23, s23, s{TQ}
         s_lshl_b32 s23, s23, 3
         s_add_u32 s23, s23, s3
         s_lshl_b32 s23, s23, 15
         s_lshl_b32 s24, s{HG}, 8
         s_add_u32 s23, s23, s24
         s_add_u32 s56, s23, 2048
         s_add_u32 s57, s56, 16384
         s_mov_b32 s36, s{po}
         s_mov_b32 s37, s{po1}
         s_mov_b32 s38, 0x800000
         s_mov_b32 s39, 0x20000""".format(p=sP, tt=sTT, L=vL, J=sJ, TQ=sTQ, HG=sHG, po=P_OUT, po1=P_OUT+1))
    for k in range(16):
        wait(vm=15 - k)
        A("v_mfma_f32_32x32x16_bf16 %s, %s, %s, %s" % (v(WACC, 16), v(WOF + 4*k, 4), v(OF + 4*k, 4), "0" if k == 0 else v(WACC, 16)))
    bar()
    A("s_nop 7\ns_nop 3")
    for g in range(4):
        A("ds_write_b128 v%d, %s" % (4 + g, v(WACC + 4*g, 4)))
    wait(lg=0); bar()
    A("""ds_read_b128 v[16:19], v13
         ds_read_b128 v[20:23], v13 offset:16384
         ds_read_b128 v[24:27], v14 offset:512
         ds_read_b128 v[28:31], v14 offset:16896""")
    wait(lg=2)
    for e in range(4): A("v_add_f32 v%d, v%d, v%d" % (16 + e, 16 + e, 20 + e))
    A("buffer_store_dwordx4 v[16:19], v15, s[36:39], s56 offen %s" % opts.get("ostore", ""))
    wait(lg=0)
    for e in range(4): A("v_add_f32 v%d, v%d, v%d" % (24 + e, 24 + e, 28 + e))
    A("buffer_store_dwordx4 v[24:27], v15, s[36:39], s57 offen %s" % opts.get("ostore", ""))
    A("""s_or_b32 s23, s2, s3
         s_cmp_eq_u32 s23, 0
         s_cbranch_scc0 L_NE
         s_add_u32 s23, s{ep}, 1
         v_mov_b32 v3, s23""".format(ep=sEP))
    one_lane(["buffer_store_dword v3, off, s[12:15], 0 sc1"])
    A.label("L_NE")
    stamp(7)
    stamp_out()
    A.label("L_END")
    A("s_endpgm")
    A.label("L_AW")
    A("s_mov_b32 s%d, 0" % sSPIN)
    A.label("L_AW2")
    A("""ds_read_b32 v{cn}, v{ca}
         s_add_u32 s{sp}, s{sp}, 1
         s_cmp_gt_u32 s{sp}, {SP}
         s_cbranch_scc1 L_AR
         s_waitcnt lgkmcnt(0)
         v_cmp_gt_u32 vcc, 4, v{cn}
         s_nop 1
         s_cbranch_vccnz L_AW2
         s_branch L_AR""".format(cn=vCN, ca=vCA2, sp=sSPIN, SP=SPIN))
    A.label("L_FB")
    A("v_lshlrev_b32 v%d, 4, v%d\nv_mov_b32 v29, 0xff800000\ns_mov_b32 s58, 0" % (vKA, vL))
    wait(lg=0)
    A.label("L_FB1")
    A("ds_read_b128 %s, v%d" % (v(K, 4), vKA))
    wait(lg=0)
    A("v_mfma_f32_32x32x16_bf16 %s, %s, %s, 0\ns_nop 7\ns_nop 3" % (v(S0, 16), v(K, 4), v(Q, 4)))
    for q in range(8): A("v_max3_f32 v29, v29, v%d, v%d" % (S0 + 2*q, S0 + 2*q + 1))
    A("""v_add_u32 v{ka}, 2048, v{ka}
         s_add_u32 s58, s58, 1
         s_cmp_lt_u32 s58, 64
         s_cbranch_scc1 L_FB1
         v_mov_b32 v30, v29
         s_nop 1
         v_permlane32_swap_b32 v29, v30
         v_max_f32 v29, v29, v30
         v_lshlrev_b32 v{ka}, 4, v{L}
         s_mov_b32 s58, 0""".format(ka=vKA, L=vL))
    for r in range(16): A("v_xor_b32 v%d, 0x80000000, v29\nv_mov_b32 v%d, 0" % (S1 + r, O + r))
    A.label("L_FB2")
    A("ds_read_b128 %s, v%d" % (v(K, 4), vKA))
    vreads(0)
    wait(lg=0)
    A("v_mfma_f32_32x32x16_bf16 %s, %s, %s, %s\ns_nop 7\ns_nop 3" % (v(S0, 16), v(K, 4), v(Q, 4), v(S1, 16)))
    for e in range(16): A("v_exp_f32 v%d, v%d" % (S0 + e, S0 + e))
    A("s_nop 0")
    for q in range(8): A("v_cvt_pk_bf16_f32 v%d, v%d, v%d" % (P + q, S0 + 2*q, S0 + 2*q + 1))
    A("s_nop 1")
    A("v_mfma_f32_32x32x16_bf16 %s, %s, %s, %s" % (v(O, 16), v(V0, 4), v(P, 4), v(O, 16)))
    A("v_mfma_f32_32x32x16_bf16 %s, %s, %s, %s" % (v(O, 16), v(V1, 4), v(P + 4, 4), v(O, 16)))
    A("""v_add_u32 v{ka}, 2048, v{ka}
         s_add_u32 s58, s58, 1
         s_nop 7
         s_cmp_lt_u32 s58, 64
         s_cbranch_scc1 L_FB2
         s_nop 7
         s_branch L_FBR""".format(ka=vKA))
    A.label("L_CODE_END")
    return A

HEADER = """; fused S5 SSM + multi-head attention block, one persistent launch: 256 workgroups x 12 waves
; @launch grid=(256,1,1) block=(768,1,1) lds=%d
.amdgcn_target "amdgcn-amd-amdhsa--gfx950"
.text
.globl %s_kernel
""" % (LDS_BYTES, NAME)
FOOTER = """.section .rodata,"a"
.p2align 6
.amdhsa_kernel %s_kernel
  .amdhsa_next_free_vgpr 168
  .amdhsa_next_free_sgpr 102
  .amdhsa_accum_offset 168
  .amdhsa_group_segment_fixed_size 0
  .amdhsa_kernarg_size 120
  .amdhsa_user_sgpr_count 2
  .amdhsa_user_sgpr_kernarg_segment_ptr 1
  .amdhsa_system_sgpr_workgroup_id_x 1
.end_amdhsa_kernel
""" % NAME

def build(path, **kw):
    A = gen(**kw)
    probs = lint(A.lines)
    for p in probs: print("HAZARD:", p)
    body = A.text()
    pre = ""
    open(path, "w").write(HEADER + body + pre + FOOTER)
    return probs

if __name__ == "__main__":
    out = sys.argv[1] if len(sys.argv) > 1 else "cdna_kernels/%s.s" % NAME
    kw = {}
    if "stamps" in sys.argv: kw["stamps"] = True
    if "dbg" in sys.argv: kw["stamps"] = "dbg"
    if "safe" in sys.argv: kw["force_safe"] = True
    build(out, **kw)
```

```python
import sys
from asmlib import Asm, v, s, lint

NAME = "concat_heads__ssm_conv_s5__mha_block__prompt"
WS_XCC, WS_FKVG, WS_FL, WS_FP, WS_FG, WS_FO, WS_E = 0x1000, 0x2000, 0x2800, 0x3000, 0x4000, 0x6000, 0x10000
MB = 1 << 20
WS_KVG, WS_KVL, WS_Q, WS_G, WS_O, WS_C, WS_WO, WS_DBG = 1*MB, 5*MB, 9*MB, 11*MB, 15*MB, 17*MB, 18*MB, 19*MB
WS_SIZE = 20 * MB
L_RING = 65536
L_SCR = 131072
L_XW = 147456
L_CNT = L_XW + 1024
LDS_BYTES = 163840
SPIN = 1 << 18

sW, sJ, sI, sTQ, sHG, sTAG, sEP, sFAST = 3, 16, 17, 18, 19, 20, 21, 22
S_XB, S_WQ, S_WS, S_OUT, S_XA = 4, 8, 12, 36, 40
sVM = 44
sT = list(range(23, 36))
P_AX, P_LRE, P_LIM, P_BRE, P_BIM, P_CRE, P_CIM, P_LDT = 64, 66, 68, 70, 72, 74, 76, 78
P_DSK, P_WO, P_OUT = 80, 84, 86
sXCC = 46
sSPIN = 47
vL = 1
VSTAMP = 167

def gen(stamps=False, force_safe=False, opts=None):
    opts = opts or {}
    A = Asm()
    uid = [0]
    def lab(p):
        uid[0] += 1
        return "L_%s%d" % (p, uid[0])
    def stamp(k):
        if stamps:
            A("s_memrealtime s[98:99]\ns_waitcnt lgkmcnt(0)\nv_writelane_b32 v%d, s98, %d" % (VSTAMP, k))
    def cstamp(k):
        if stamps:
            A("s_memtime s[98:99]\ns_waitcnt lgkmcnt(0)\nv_writelane_b32 v%d, s98, %d" % (VSTAMP, k))
    def stamp_out():
        if stamps == "pad":
            l = lab("pad")
            A("""v_readlane_b32 s96, v%d, %d
                 s_nop 3
                 s_add_u32 s96, s96, 10000""" % (VSTAMP, opts.get("padk", 0) if True else 0))
            A.label(l)
            A("""s_memrealtime s[98:99]
                 s_waitcnt lgkmcnt(0)
                 s_sub_u32 s98, s98, s96
                 s_cmp_lt_i32 s98, 0
                 s_cbranch_scc1 %s""" % l)
        elif stamps == "dbg":
            A("""s_load_dwordx2 s[92:93], s[0:1], 104
                 s_mov_b32 s94, 256
                 s_mov_b32 s95, 0x20000
                 v_readlane_b32 s98, v%d, 0
                 s_not_b32 s98, s98
                 s_cmp_ge_u32 s3, 8
                 s_cselect_b32 s99, 28, 0
                 v_lshlrev_b32 v166, 2, v%d
                 s_waitcnt lgkmcnt(0)
                 s_mov_b64 exec, 0xfe
                 buffer_atomic_umax v%d, v166, s[92:95], s99 offen
                 s_mov_b64 exec, 1
                 v_mov_b32 v165, s98
                 buffer_atomic_umax v165, off, s[92:95], 0 offset:60
                 buffer_atomic_umax v%d, off, s[92:95], 0
                 s_mov_b64 exec, -1""" % (VSTAMP, vL, VSTAMP, VSTAMP))
        elif stamps:
            A("""s_mul_i32 s98, s2, 12
                 s_add_u32 s98, s98, s%d
                 s_lshl_b32 s98, s98, 6
                 s_add_u32 s98, s98, %d
                 v_lshlrev_b32 v166, 2, v%d
                 s_mov_b64 exec, 0xffff
                 buffer_store_dword v%d, v166, s[12:15], s98 offen
                 s_mov_b64 exec, -1""" % (sW, WS_DBG, vL, VSTAMP))
    def wait(vm=None, lg=None):
        p = []
        if vm is not None: p.append("vmcnt(%d)" % vm)
        if lg is not None: p.append("lgkmcnt(%d)" % lg)
        A("s_waitcnt " + " ".join(p))
    def bar(): A("s_barrier")
    def mode_stores(lines):
        a, b = lab("safe"), lab("done")
        A("s_cmp_eq_u32 s%d, 0\ns_cbranch_scc1 %s" % (sFAST, a))
        for l in lines: A(l)
        A("s_branch %s" % b); A.label(a)
        for l in lines: A(l + " sc1")
        A.label(b)
    def one_lane(lines):
        A("s_mov_b64 exec, 1")
        for l in lines: A(l)
        A("s_mov_b64 exec, -1")
    def slot_load(dst, tmp):
        A("""v_and_b32 v%d, 31, v%d
             v_lshlrev_b32 v%d, 3, v%d
             s_lshl_b32 s23, s%d, 8
             s_add_u32 s23, s23, %d
             buffer_load_dwordx2 %s, v%d, s[12:15], s23 offen sc1""" % (tmp, vL, tmp, tmp, sJ, WS_XCC, v(dst, 2), tmp))
    def slot_eval(dst):
        A("""v_cmp_eq_u32 s[24:25], s%d, v%d
             v_cmp_eq_u32 vcc, s%d, v%d
             s_nop 1
             s_and_b64 vcc, vcc, s[24:25]
             s_cmp_eq_u64 vcc, -1
             s_cselect_b32 s%d, %d, 0""" % (sTAG, dst, sXCC, dst + 1, sFAST, 0 if force_safe else 1))
    def poll_all(addr_v, soff, tmp):
        l, d = lab("poll"), lab("pd")
        A("s_mov_b32 s%d, 0" % sSPIN)
        A.label(l)
        A("""buffer_load_dword v%d, v%d, s[12:15], %s offen sc1
             s_add_u32 s%d, s%d, 1
             s_cmp_gt_u32 s%d, %d
             s_cbranch_scc1 %s
             s_waitcnt vmcnt(0)
             v_cmp_ne_u32 vcc, s%d, v%d
             s_nop 1
             s_cbranch_vccnz %s""" % (tmp, addr_v, soff, sSPIN, sSPIN, sSPIN, SPIN, d, sTAG, tmp, l))
        A.label(d)
    def params(lre, lim, ldt, lr, li, t0, t1, t2):
        A("""v_lshlrev_b32 v{lre}, 16, v{lre}
             v_lshlrev_b32 v{lim}, 16, v{lim}
             v_lshlrev_b32 v{ldt}, 16, v{ldt}
             v_mul_f32 v{ldt}, 0x3fb8aa3b, v{ldt}
             v_exp_f32 v{ldt}, v{ldt}
             s_nop 0
             v_cvt_pk_bf16_f32 v{ldt}, v{ldt}, v{ldt}
             v_and_b32 v{ldt}, 0xffff0000, v{ldt}
             v_mul_f32 v{t0}, v{ldt}, v{lre}
             v_mul_f32 v{t1}, v{ldt}, v{lim}
             v_mul_f32 v{t0}, 0x3fb8aa3b, v{t0}
             v_mul_f32 v{t1}, 0.15915494, v{t1}
             v_exp_f32 v{t0}, v{t0}
             v_rndne_f32 v{t2}, v{t1}
             v_sub_f32 v{t1}, v{t1}, v{t2}
             v_cos_f32 v{lr}, v{t1}
             v_sin_f32 v{li}, v{t1}
             s_nop 0
             v_mul_f32 v{lr}, v{lr}, v{t0}
             v_mul_f32 v{li}, v{li}, v{t0}""".format(lre=lre, lim=lim, ldt=ldt, lr=lr, li=li, t0=t0, t1=t1, t2=t2))
    def param_loads(lre, lim, ldt, tmp):
        A("""v_and_b32 v{t}, 31, v{L}
             s_lshr_b32 s23, s{i}, 1
             s_lshl_b32 s23, s23, 6
             v_lshl_add_u32 v{t}, v{t}, 1, s23
             global_load_ushort v{a}, v{t}, s[{pa}:{pa1}]
             global_load_ushort v{b}, v{t}, s[{pb}:{pb1}]
             global_load_ushort v{c}, v{t}, s[{pc}:{pc1}]""".format(t=tmp, L=vL, i=sI, a=lre, b=lim, c=ldt,
             pa=P_LRE, pa1=P_LRE+1, pb=P_LIM, pb1=P_LIM+1, pc=P_LDT, pc1=P_LDT+1))
    def tag_from_epoch():
        A("s_mul_i32 s%d, s%d, 0x9E3779B1\ns_add_u32 s%d, s%d, 0x7F4A7C15" % (sTAG, sEP, sTAG, sTAG))
    def dma_lane_regs(sidx, piece, rho):
        A("""v_lshrrev_b32 v{rho}, 3, v{L}
             v_lshrrev_b32 v{p}, 4, v{L}
             s_and_b32 s23, s{si}, 1
             s_lshl_b32 s23, s23, 2
             v_add_u32 v{p}, s23, v{p}
             v_xor_b32 v{p}, v{p}, v{L}
             v_and_b32 v{p}, 7, v{p}
             v_lshlrev_b32 v{p}, 4, v{p}""".format(rho=rho, p=piece, L=vL, si=sidx))
    def frag_addr(dst4, t0, t1):
        A("""v_and_b32 v{t0}, 31, v{L}
             v_lshrrev_b32 v{t1}, 1, v{t0}
             v_lshrrev_b32 v{d}, 5, v{L}
             v_xor_b32 v{t1}, v{t1}, v{d}
             v_and_b32 v{t1}, 7, v{t1}
             v_lshlrev_b32 v{t1}, 4, v{t1}
             v_lshl_add_u32 v{d}, v{t0}, 7, v{t1}""".format(t0=t0, t1=t1, L=vL, d=dst4))
        for ks in (1, 2, 3):
            A("v_xor_b32 v%d, %d, v%d" % (dst4 + ks, 32 * ks, dst4))

    A(".p2align 8\n.type %s_kernel,@function" % NAME)
    A.label(NAME + "_kernel")
    A.label("L_START")
    if stamps:
        A("v_mov_b32 v%d, 0" % VSTAMP)
        stamp(0)
    A("""s_cmp_ge_u32 s2, 0x100
         s_cbranch_scc1 L_END
         s_load_dwordx2 s[4:5], s[0:1], 72
         s_load_dwordx2 s[8:9], s[0:1], 80
         s_load_dwordx2 s[12:13], s[0:1], 112
         s_load_dwordx16 s[64:79], s[0:1], 0
         s_load_dwordx2 s[80:81], s[0:1], 64
         s_load_dwordx4 s[84:87], s[0:1], 88
         v_lshrrev_b32 v2, 6, v0
         v_and_b32 v1, 63, v0
         s_and_b32 s16, s2, 7
         v_readfirstlane_b32 s3, v2
         s_lshr_b32 s17, s2, 3
         s_and_b32 s18, s17, 3
         s_lshr_b32 s19, s17, 2
         s_mov_b32 s6, 0x200000
         s_mov_b32 s7, 0x20000
         s_mov_b32 s10, 0x180000
         s_mov_b32 s11, 0x20000
         s_mov_b32 s14, %d
         s_mov_b32 s15, 0x20000
         s_getreg_b32 s%d, hwreg(HW_REG_XCC_ID, 0, 4)""" % (WS_SIZE, sXCC))
    A("s_cmp_ge_u32 s3, 8\ns_cbranch_scc0 L_ATT")

    sS = 48
    vXB, vXB2, vWo_, vW2 = 2, 3, 4, 5
    LRE, LIM, LDT = 6, 7, 8
    LAM, MU, NU, RHO, RHO8 = 10, 12, 14, 16, 18
    NLI, NMI, NNI, NRI, NR8I = 20, 21, 22, 23, 24
    A("s_sub_u32 s%d, s3, 8\ns_setprio 3" % sS)
    dma_lane_regs(sS, vXB, 9)
    A("""v_lshl_add_u32 v{xb}, v9, 10, v{xb}
         v_add_u32 v{xb2}, {d1}, v{xb}
         v_lshrrev_b32 v10, 4, v{L}
         v_and_b32 v10, 1, v10
         v_lshlrev_b32 v10, 2, v10
         v_xor_b32 v10, v10, v{L}
         v_and_b32 v10, 7, v10
         v_lshlrev_b32 v10, 4, v10
         v_mul_u32_u24 v{w}, 3072, v9
         v_add_u32 v{w}, v{w}, v10
         v_add_u32 v{w2}, {d2}, v{w}""".format(xb=vXB, xb2=vXB2, w=vWo_, w2=vW2, L=vL, d1=16384-2048, d2=16*3072-2048))
    sN0, sXO, sWO_, sM = 49, 50, 51, 52
    A("""s_and_b32 s23, s{S}, 1
         s_lshr_b32 s24, s{S}, 1
         s_lshl_b32 s24, s24, 2
         s_add_u32 s{n0}, s23, s24
         s_lshl_b32 s23, s{J}, 2
         s_add_u32 s23, s23, s{TQ}
         s_lshl_b32 s23, s23, 16
         s_lshl_b32 s24, s{n0}, 13
         s_add_u32 s{xo}, s23, s24
         s_mul_i32 s23, s{n0}, 24576
         s_lshl_b32 s24, s{HG}, 7
         s_add_u32 s{wo}, s23, s24
         s_lshl_b32 s{m}, s{n0}, 10
         s_waitcnt lgkmcnt(0)
         s_load_dword s{ep}, s[12:13], 0""".format(S=sS, n0=sN0, J=sJ, TQ=sTQ, HG=sHG, xo=sXO, wo=sWO_, m=sM, ep=sEP))
    if stamps:
        A("s_memrealtime s[96:97]")
    param_loads(LRE, LIM, LDT, 9)
    def dma_x(c_expr_m0, soff):
        A("""%s
             s_nop 0
             buffer_load_dwordx4 v%d, s[4:7], %s offen lds
             buffer_load_dwordx4 v%d, s[4:7], %s offen offset:2048 lds""" % (c_expr_m0, vXB, soff, vXB2, soff))
    def dma_w(c_expr_m0, soff):
        A("""%s
             s_nop 0
             buffer_load_dwordx4 v%d, s[8:11], %s offen lds
             buffer_load_dwordx4 v%d, s[8:11], %s offen offset:2048 lds""" % (c_expr_m0, vWo_, soff, vW2, soff))
    A("""s_mov_b32 s53, s{xo}
         s_add_u32 s54, s{wo}, 1024
         s_add_u32 s55, s{wo}, 2048
         s_mov_b32 s56, s{m}
         s_add_u32 s57, s{m}, {ring}
         s_mov_b32 s58, 0""".format(xo=sXO, wo=sWO_, m=sM, ring=L_RING))
    def kv_unit():
        dma_x("s_mov_b32 m0, s56", "s53")
        dma_w("s_mov_b32 m0, s57", "s54")
        dma_w("s_add_u32 m0, s57, 8192", "s55")
        A("""s_add_u32 s53, s53, 128
             s_add_u32 s54, s54, 196608
             s_add_u32 s55, s55, 196608
             s_add_u32 s56, s56, 8192
             s_add_u32 s57, s57, 16384""")
    A.label("L_HB")
    kv_unit()
    A("s_add_u32 s58, s58, 1\ns_cmp_lt_u32 s58, 6\ns_cbranch_scc1 L_HB")
    A("s_sub_u32 s57, s57, 98304")
    stamp(9)
    if stamps:
        A("v_writelane_b32 v%d, s96, 8" % VSTAMP)
    wait(vm=36); stamp(10)
    wait(vm=30); stamp(11); bar()
    stamp(1)
    params(LRE, LIM, LDT, LAM, LAM + 1, 25, 26, 27)
    wait(vm=24); bar()
    kv_unit()
    def csq(d, a):
        A("""v_mul_f32 v25, v{a1}, v{a1}
             v_mul_f32 v26, v{a}, v{a1}
             v_fma_f32 v{d}, v{a}, v{a}, -v25
             v_add_f32 v{d1}, v26, v26""".format(a=a, a1=a+1, d=d, d1=d+1))
    csq(MU, LAM); csq(MU, MU); csq(MU, MU); csq(MU, MU)
    wait(vm=24); bar()
    kv_unit()
    csq(NU, MU); csq(RHO, NU); csq(RHO, RHO); csq(RHO8, RHO); csq(RHO8, RHO8); csq(RHO8, RHO8)
    for n_, p_ in ((NLI, LAM), (NMI, MU), (NNI, NU), (NRI, RHO), (NR8I, RHO8)):
        A("v_xor_b32 v%d, 0x80000000, v%d" % (n_, p_ + 1))
    wait(vm=24); bar()
    A("s_mov_b32 s54, s%d" % sWO_)
    for q, nxt in zip(range(4), (22, 20, 18, 16)):
        dma_w("s_mov_b32 m0, s57", "s54")
        A("s_add_u32 s54, s54, 196608")
        dma_w("s_add_u32 m0, s57, 8192", "s54")
        A("s_add_u32 s54, s54, 196608\ns_add_u32 s57, s57, 16384")
        if q == 0:
            wait(lg=0); tag_from_epoch()
        if q == 1:
            frag_addr(32, 25, 26)
        wait(vm=nxt); bar()
    for nxt in (12, 8, 4, 0):
        wait(vm=nxt); bar()
    slot_load(28, 25)
    URE, UIM = 96, 112
    for r in range(32): A("v_mov_b32 v%d, 0" % (URE + r))
    A("""s_mov_b32 s58, 0
         s_mov_b32 s56, %d
         s_lshl_b32 s57, s%d, 12
         s_add_u32 s57, s57, 8192""" % (L_RING, sS))
    A.label("L_U")
    bar()
    A("s_add_u32 s23, s56, s57")
    for ks in range(4):
        A("v_add_u32 v%d, s23, v%d\nv_add_u32 v%d, s56, v%d" % (36 + ks, 32 + ks, 40 + ks, 32 + ks))
    for ks in range(4):
        A("""ds_read_b128 %s, v%d
             ds_read_b128 %s, v%d
             ds_read_b128 %s, v%d offset:4096""" % (v(48 + 12*ks, 4), 36 + ks, v(52 + 12*ks, 4), 40 + ks, v(56 + 12*ks, 4), 40 + ks))
    A("s_cmp_lg_u32 s%d, 0\ns_cbranch_scc1 L_UF" % sS)
    A("s_cmp_eq_u32 s58, 2\ns_cbranch_scc0 L_UF3")
    A("""s_lshl_b32 s23, s{HG}, 5
         s_lshl_b32 s24, s{J}, 2
         s_add_u32 s23, s23, s24
         s_add_u32 s23, s23, s{TQ}
         s_lshl_b32 s23, s23, 2
         s_add_u32 s23, s23, {f1}
         s_lshl_b32 s24, s{J}, 5
         s_add_u32 s24, s24, s{I}
         s_lshl_b32 s24, s24, 2
         s_add_u32 s25, s24, {f2}
         v_mov_b32 v25, s{TAG}""".format(HG=sHG, J=sJ, TQ=sTQ, I=sI, TAG=sTAG, f1=WS_FKVG, f2=WS_FP))
    one_lane(["buffer_store_dword v25, off, s[12:15], s23 sc1", "buffer_store_dword v25, off, s[12:15], s25 sc1"])
    A.label("L_UF3")
    A("s_cmp_eq_u32 s58, 3\ns_cbranch_scc0 L_UF")
    wait(vm=2)
    slot_eval(28)
    A("""s_lshl_b32 s24, s{J}, 5
         s_add_u32 s24, s24, s{I}
         s_lshl_b32 s24, s24, 2
         s_add_u32 s26, s24, {f}
         s_mov_b64 exec, 1""".format(J=sJ, I=sI, f=WS_FL))
    mode_stores(["buffer_store_dword v25, off, s[12:15], s26"])
    A("s_mov_b64 exec, -1")
    A.label("L_UF")
    for ks in range(4):
        wait(lg=9 - 3*ks)
        A("v_mfma_f32_32x32x16_bf16 %s, %s, %s, %s" % (v(URE, 16), v(48 + 12*ks, 4), v(52 + 12*ks, 4), v(URE, 16)))
        A("v_mfma_f32_32x32x16_bf16 %s, %s, %s, %s" % (v(UIM, 16), v(48 + 12*ks, 4), v(56 + 12*ks, 4), v(UIM, 16)))
    A("""s_add_u32 s56, s56, 24576
         s_cmp_eq_u32 s56, 163840
         s_cselect_b32 s56, 16384, s56
         s_add_u32 s58, s58, 1
         s_cmp_lt_u32 s58, 8
         s_cbranch_scc1 L_U""")
    stamp(2)
    wait(vm=0)
    slot_eval(28)
    vFA, vLin, vOne, vCA = 25, 26, 27, 28
    sOKlo = 59
    A("""v_and_b32 v{fa}, 31, v{L}
         v_lshlrev_b32 v{fa}, 2, v{fa}
         v_lshlrev_b32 v{lin}, 4, v{L}
         v_mov_b32 v{one}, 1
         v_mov_b32 v{ca}, {cnt}
         s_lshl_b32 s60, s{HG}, 7
         s_add_u32 s60, s60, {f}
         s_mov_b32 s{ok}, 0
         s_lshl_b32 s61, s{I}, 17
         s_lshl_b32 s23, s{S}, 12
         s_add_u32 s61, s61, s23
         s_add_u32 s61, s61, {kvg}
         s_add_u32 s62, s23, 16384
         s_mov_b32 s63, 1""".format(fa=vFA, lin=vLin, one=vOne, ca=vCA, cnt=L_CNT, L=vL, HG=sHG, f=WS_FKVG, ok=sOKlo, I=sI, S=sS, kvg=WS_KVG))
    def remote_blocks(pend, lbl):
        A.label(lbl)
        A("""s_add_u32 s24, s{J}, s63
             s_and_b32 s24, s24, 7
             s_lshl_b32 s25, s24, 2
             s_mov_b32 s{sp}, 0""".format(J=sJ, sp=sSPIN))
        A.label(lbl + "c")
        A("""s_lshr_b32 s26, s{ok}, s25
             s_and_b32 s26, s26, 15
             s_cmp_eq_u32 s26, 15
             s_cbranch_scc1 {l}g
             buffer_load_dword v29, v{fa}, s[12:15], s60 offen sc1
             s_add_u32 s{sp}, s{sp}, 1
             s_cmp_gt_u32 s{sp}, {SP}
             s_cbranch_scc1 {l}g
             s_waitcnt vmcnt(0)
             v_cmp_eq_u32 vcc, s{TAG}, v29
             s_nop 1
             s_mov_b32 s{ok}, vcc_lo
             s_branch {l}c""".format(ok=sOKlo, l=lbl, fa=vFA, sp=sSPIN, SP=SPIN, TAG=sTAG))
        A.label(lbl + "g")
        A("""s_lshl_b32 s24, s24, 14
             s_add_u32 s24, s24, s61
             s_mov_b32 m0, s62
             s_add_u32 s62, s62, 16384
             buffer_load_dwordx4 v{lin}, s[12:15], s24 offen sc1 lds
             buffer_load_dwordx4 v{lin}, s[12:15], s24 offen offset:1024 sc1 lds
             buffer_load_dwordx4 v{lin}, s[12:15], s24 offen offset:2048 sc1 lds
             buffer_load_dwordx4 v{lin}, s[12:15], s24 offen offset:3072 sc1 lds
             s_add_u32 s63, s63, 1
             s_cmp_lt_u32 s63, {pend}
             s_cbranch_scc1 {l}""".format(lin=vLin, pend=pend, l=lbl))
    def signal(p):
        one_lane(["ds_add_u32 v%d, v%d offset:%d" % (vCA, vOne, 4 * p)])
    remote_blocks(5, "L_RA")
    stamp(3)
    a, b = 30, 32
    A("v_mov_b32 v30, v%d\nv_mov_b32 v31, v%d" % (URE, UIM))
    for r in range(1, 16):
        A("""v_fma_f32 v{b}, v{lr}, v{a}, v{dr}
             v_fma_f32 v{b1}, v{lr}, v{a1}, v{di}
             v_fmac_f32 v{b}, v{nli}, v{a1}
             v_fmac_f32 v{b1}, v{li}, v{a}""".format(a=a, a1=a+1, b=b, b1=b+1, lr=LAM, li=LAM+1, nli=NLI, dr=URE+r, di=UIM+r))
        a, b = b, a
    A("""v_mov_b32 v34, v{a}
         v_mov_b32 v35, v{a1}
         v_mov_b32 v36, v{a}
         v_mov_b32 v37, v{a1}
         s_nop 1
         v_permlane32_swap_b32 v34, v36
         v_permlane32_swap_b32 v35, v37""".format(a=a, a1=a+1))
    def cacc(d, p, npi, x):
        A("""v_fmac_f32 v{d}, v{p}, v{x}
             v_fmac_f32 v{d1}, v{p}, v{x1}
             v_fmac_f32 v{d}, v{n}, v{x1}
             v_fmac_f32 v{d1}, v{p1}, v{x}""".format(d=d, d1=d+1, p=p, p1=p+1, n=npi, x=x, x1=x+1))
    cacc(36, MU, NMI, 34)
    A("""v_and_b32 v38, 31, v{L}
         v_lshlrev_b32 v38, 3, v38
         v_add_u32 v38, {xw}, v38
         s_lshl_b32 s23, s{S}, 8
         v_add_u32 v39, s23, v38
         ds_write_b64 v39, v[36:37]""".format(L=vL, xw=L_XW, S=sS))
    wait(vm=12, lg=0)
    signal(1)
    signal(10)
    A("s_mov_b32 s%d, 0" % sSPIN)
    A.label("L_XS")
    A("""ds_read_b32 v39, v{ca} offset:40
         s_add_u32 s{sp}, s{sp}, 1
         s_cmp_gt_u32 s{sp}, {SP}
         s_cbranch_scc1 L_XG
         s_waitcnt lgkmcnt(0)
         v_cmp_ne_u32 vcc, 4, v39
         s_nop 1
         s_cbranch_vccnz L_XS""".format(ca=vCA, sp=sSPIN, SP=SPIN))
    A.label("L_XG")
    WX = 40
    for k in range(4):
        A("ds_read_b64 %s, v38 offset:%d" % (v(WX + 2*k, 2), 256 * k))
    A("""s_add_u32 s4, s12, {e}
         s_addc_u32 s5, s13, 0
         s_mov_b32 s6, 0x20000
         s_mov_b32 s7, 0x20000
         s_lshl_b32 s27, s{J}, 1
         s_and_b32 s23, s{I}, 1
         s_add_u32 s27, s27, s23
         s_lshr_b32 s23, s{I}, 1
         s_lshl_b32 s23, s23, 9
         v_and_b32 v39, 31, v{L}
         v_lshl_add_u32 v39, v39, 4, s23""".format(e=WS_E, J=sJ, I=sI, L=vL))
    wait(lg=0)
    A("v_mov_b32 v48, v42\nv_mov_b32 v49, v43")
    cacc(48, NU, NNI, 40)
    A("v_mov_b32 v50, v44\nv_mov_b32 v51, v45")
    cacc(50, NU, NNI, 48)
    cacc(46, NU, NNI, 50)
    A("""v_mov_b32 v52, v46
         v_mov_b32 v53, s{TAG}
         v_mov_b32 v54, v47
         v_mov_b32 v55, s{TAG}
         s_lshl_b32 s23, s27, 13
         s_lshl_b32 s24, s{S}, 3
         s_lshl_b64 s[24:25], 0xff, s24
         s_mov_b64 exec, s[24:25]
         buffer_store_dwordx4 v[52:55], v39, s[4:7], s23 offen sc1
         s_mov_b64 exec, -1""".format(TAG=sTAG, S=sS))
    remote_blocks(8, "L_RB")
    wait(vm=21); signal(2)
    wait(vm=17); signal(3)
    wait(vm=13); signal(4)
    EX = 48
    A("""s_sub_u32 s23, s27, 1
         s_lshl_b32 s23, s23, 13
         v_lshrrev_b32 v29, 5, v{L}
         v_lshlrev_b32 v29, 16, v29
         v_sub_u32 v29, v39, v29
         v_add_u32 v80, s23, v29""".format(L=vL))
    for n in range(1, 8):
        A("v_subrev_u32 v%d, 8192, v%d" % (80 + n, 80 + n - 1))
    def e_loads():
        for n in range(8):
            A("buffer_load_dwordx4 %s, v%d, s[4:7], 0 offen sc1" % (v(EX + 4*n, 4), 80 + n))
    e_loads()
    wait(vm=16); signal(5)
    wait(vm=12); signal(6)
    wait(vm=8); signal(7)
    stamp(4)
    A("s_mov_b32 s%d, 0" % sSPIN)
    A.label("L_EC")
    wait(vm=0)
    A("s_mov_b64 s[30:31], -1")
    for n in range(8):
        A("""v_cmp_eq_u32 s[24:25], s{TAG}, v{t1}
             v_cmp_eq_u32 vcc, s{TAG}, v{t2}
             s_cmp_le_u32 s27, {n}
             s_cselect_b32 s28, -1, 0
             s_cmp_le_u32 s27, {n8}
             s_cselect_b32 s29, -1, 0
             s_and_b64 vcc, vcc, s[24:25]
             s_or_b64 vcc, vcc, s[28:29]
             s_and_b64 s[30:31], s[30:31], vcc""".format(TAG=sTAG, t1=EX+4*n+1, t2=EX+4*n+3, n=n, n8=n+8))
    A("""s_cmp_eq_u64 s[30:31], -1
         s_cbranch_scc1 L_EG
         s_add_u32 s{sp}, s{sp}, 1
         s_cmp_gt_u32 s{sp}, {SP}
         s_cbranch_scc1 L_EG""".format(sp=sSPIN, SP=SPIN))
    e_loads()
    A("s_branch L_EC")
    A.label("L_EG")
    def cacc2(dr, di, p, npi, xr, xi):
        A("""v_fmac_f32 v{dr}, v{p}, v{xr}
             v_fmac_f32 v{di}, v{p}, v{xi}
             v_fmac_f32 v{dr}, v{n}, v{xi}
             v_fmac_f32 v{di}, v{p1}, v{xr}""".format(dr=dr, di=di, p=p, p1=p+1, n=npi, xr=xr, xi=xi))
    for n in range(6, -1, -1):
        cacc2(EX + 4*n, EX + 4*n + 2, RHO, NRI, EX + 4*n + 4, EX + 4*n + 6)
    A("""v_mov_b32 v30, v{r}
         v_mov_b32 v31, v{i}
         v_mov_b32 v32, v{r}
         v_mov_b32 v33, v{i}
         s_nop 1
         v_permlane32_swap_b32 v30, v32
         v_permlane32_swap_b32 v31, v33""".format(r=EX, i=EX+2))
    cacc(30, RHO8, NR8I, 32)
    for k in range(3):
        A("s_cmp_le_u32 s%d, %d\ns_cbranch_scc1 L_PG" % (sS, k))
        cacc(WX + 2*k, NU, NNI, 30)
        A("v_mov_b32 v30, v%d\nv_mov_b32 v31, v%d" % (WX + 2*k, WX + 2*k + 1))
    A.label("L_PG")
    A("s_mov_b32 exec_lo, 0")
    cacc(34, MU, NMI, 30)
    A("v_mov_b32 v30, v34\nv_mov_b32 v31, v35\ns_mov_b32 exec_lo, -1")
    cacc2(URE, UIM, LAM, NLI, 30, 31)
    for r in range(1, 16):
        cacc2(URE + r, UIM + r, LAM, NLI, URE + r - 1, UIM + r - 1)
    for k in range(8):
        A("v_cvt_pk_bf16_f32 v%d, v%d, v%d" % (48 + k, URE + 2*k, URE + 2*k + 1))
    for k in range(8):
        A("v_cvt_pk_bf16_f32 v%d, v%d, v%d" % (56 + k, UIM + 2*k, UIM + 2*k + 1))
    A("""s_lshl_b32 s23, s{S}, 12
         s_add_u32 s34, s23, {scr}
         v_and_b32 v30, 31, v{L}
         v_lshrrev_b32 v31, 5, v{L}
         v_lshlrev_b32 v32, 5, v31
         v_lshl_add_u32 v30, v30, 6, v32
         v_add_u32 v30, s34, v30
         ds_write_b128 v30, v[48:51]
         ds_write_b128 v30, v[52:55] offset:16
         ds_write_b128 v30, v[56:59] offset:2048
         ds_write_b128 v30, v[60:63] offset:2064
         v_bfe_u32 v32, v{L}, 2, 2
         v_lshl_add_u32 v32, v31, 3, v32
         v_lshlrev_b32 v32, 6, v32
         v_bfe_u32 v33, v{L}, 4, 1
         v_lshl_add_u32 v32, v33, 5, v32
         v_and_b32 v33, 3, v{L}
         v_lshl_add_u32 v32, v33, 3, v32
         v_add_u32 v32, s34, v32""".format(S=sS, scr=L_SCR, L=vL))
    wait(lg=0)
    for f in range(4):
        for rd in range(2):
            A("ds_read_b64_tr_b16 %s, v32 offset:%d" % (v(64 + 4*f + 2*rd, 2), f * 1024 + rd * 256))
    A("""s_lshl_b32 s23, s27, 2
         s_add_u32 s35, s23, s{S}
         s_lshl_b32 s23, s35, 16
         s_lshr_b32 s24, s{I}, 1
         s_lshl_b32 s24, s24, 12
         s_add_u32 s23, s23, s24
         s_add_u32 s26, s23, {g}""".format(S=sS, I=sI, g=WS_G))
    wait(lg=0)
    mode_stores(["buffer_store_dwordx4 %s, v%d, s[12:15], s26 offen offset:%d" % (v(64 + 4*f, 4), vLin, 1024*f) for f in range(4)])
    A("""s_lshl_b32 s28, s{HG}, 7
         s_add_u32 s28, s28, {fp}""".format(HG=sHG, fp=WS_FP))
    poll_all(vFA, "s28", 29)
    wait(vm=0)
    A("""s_lshl_b32 s23, s35, 4
         s_lshr_b32 s24, s{I}, 1
         s_add_u32 s23, s23, s24
         s_lshl_b32 s23, s23, 2
         s_add_u32 s26, s23, {fg}
         v_mov_b32 v29, s{TAG}
         s_mov_b64 exec, 1""".format(I=sI, fg=WS_FG, TAG=sTAG))
    mode_stores(["buffer_store_dword v29, off, s[12:15], s26"])
    A("s_mov_b64 exec, -1")
    stamp(5)
    A("""s_lshl_b32 s23, s{J}, 2
         s_add_u32 s23, s23, s{TQ}
         s_lshl_b32 s23, s23, 1
         s_and_b32 s24, s{S}, 1
         s_add_u32 s35, s23, s24
         s_lshl_b32 s28, s35, 6
         s_add_u32 s28, s28, {fg}
         v_and_b32 v30, 15, v{L}
         v_lshlrev_b32 v30, 2, v30
         s_lshl_b32 s23, s{HG}, 1
         s_lshr_b32 s24, s{S}, 1
         s_add_u32 s33, s23, s24
         s_lshl_b32 s53, s33, 16
         s_add_u32 s53, s53, {c}
         s_lshl_b32 s54, s35, 16
         s_add_u32 s54, s54, {g}
         s_add_u32 s55, s53, 4096
         s_add_u32 s56, s54, 4096""".format(J=sJ, TQ=sTQ, S=sS, fg=WS_FG, L=vL, HG=sHG, c=WS_C, g=WS_G))
    poll_all(30, "s28", 29)
    stamp(6)
    YR, YACC = 32, 128
    def yload(k):
        A("buffer_load_dwordx4 %s, v%d, s[12:15], s%d offen offset:%d sc1" % (v(YR + 8*k, 4), vLin, 53 if k < 4 else 55, 1024 * (k & 3)))
        A("buffer_load_dwordx4 %s, v%d, s[12:15], s%d offen offset:%d sc1" % (v(YR + 8*k + 4, 4), vLin, 54 if k < 4 else 56, 1024 * (k & 3)))
    def ystep():
        A("s_add_u32 s53, s53, 8192\ns_add_u32 s54, s54, 8192\ns_add_u32 s55, s55, 8192\ns_add_u32 s56, s56, 8192")
    for k in range(8): yload(k)
    for r in range(16): A("v_mov_b32 v%d, 0" % (YACC + r))
    A("s_mov_b32 s58, 0")
    A.label("L_Y")
    ystep()
    for k in range(8):
        wait(vm=14)
        A("v_mfma_f32_32x32x16_bf16 %s, %s, %s, %s" % (v(YACC, 16), v(YR + 8*k, 4), v(YR + 8*k + 4, 4), v(YACC, 16)))
        yload(k)
    A("s_add_u32 s58, s58, 1\ns_cmp_lt_u32 s58, 7\ns_cbranch_scc1 L_Y")
    A("""v_lshrrev_b32 v2, 3, v{L}
         v_and_b32 v3, 7, v{L}
         s_lshl_b32 s23, s35, 15
         s_lshl_b32 s24, s33, 6
         s_add_u32 s23, s23, s24
         v_lshlrev_b32 v4, 10, v2
         v_lshl_add_u32 v4, v3, 3, v4
         v_add_u32 v4, s23, v4
         v_lshl_add_u32 v5, v3, 3, s24
         global_load_dwordx2 v[6:7], v5, s[{dk}:{dk1}]""".format(L=vL, dk=P_DSK, dk1=P_DSK+1))
    for n in range(4):
        A("global_load_dwordx2 %s, v4, s[%d:%d]" % (v(8 + 2*n, 2), P_AX, P_AX + 1))
        if n < 3: A("v_add_u32 v4, 8192, v4")
    for k in range(8):
        wait(vm=14 - 2*k + 5)
        A("v_mfma_f32_32x32x16_bf16 %s, %s, %s, %s" % (v(YACC, 16), v(YR + 8*k, 4), v(YR + 8*k + 4, 4), v(YACC, 16)))
    A("""s_mov_b32 s36, s{po}
         s_mov_b32 s37, s{po1}
         s_mov_b32 s38, 0x800000
         s_mov_b32 s39, 0x20000
         v_and_b32 v16, 31, v{L}
         v_lshrrev_b32 v17, 5, v{L}
         v_xor_b32 v17, v17, v16
         v_and_b32 v17, 7, v17
         v_lshlrev_b32 v17, 4, v17
         v_lshl_add_u32 v16, v16, 7, v17
         v_add_u32 v16, s34, v16
         v_xor_b32 v17, 32, v16
         v_xor_b32 v18, 64, v16
         v_xor_b32 v19, 96, v16
         v_xor_b32 v20, v2, v3
         v_lshlrev_b32 v20, 4, v20
         v_lshl_add_u32 v20, v2, 7, v20
         v_add_u32 v20, s34, v20
         v_lshlrev_b32 v21, 12, v2
         v_lshl_add_u32 v21, v3, 4, v21
         s_lshl_b32 s23, s35, 17
         s_lshl_b32 s24, s33, 7
         s_add_u32 s23, s23, s24""".format(po=P_OUT, po1=P_OUT+1, L=vL))
    for g in range(4):
        A("ds_write_b128 v%d, %s" % (16 + g, v(YACC + 4*g, 4)))
    wait(vm=0, lg=0)
    for n in range(4):
        A("ds_read_b128 %s, v20 offset:%d" % (v(32 + 4*n, 4), 1024*n))
    A("""v_lshlrev_b32 v22, 16, v6
         v_and_b32 v23, 0xffff0000, v6
         v_lshlrev_b32 v24, 16, v7
         v_and_b32 v25, 0xffff0000, v7""")
    for n in range(4):
        x = 8 + 2*n
        A("""v_lshlrev_b32 v26, 16, v{x}
             v_and_b32 v27, 0xffff0000, v{x}
             v_lshlrev_b32 v28, 16, v{x1}
             v_and_b32 v29, 0xffff0000, v{x1}""".format(x=x, x1=x+1))
        wait(lg=3 - n)
        for e in range(4):
            A("v_fmac_f32 v%d, v%d, v%d" % (32 + 4*n + e, 26 + e, 22 + e))
        A("buffer_store_dwordx4 %s, v21, s[36:39], s23 offen %s" % (v(32 + 4*n, 4), opts.get("ystore", "sc1")))
        if n < 3: A("s_add_u32 s23, s23, 32768")
    stamp(7)
    if stamps != "pad": stamp_out()
    A("s_endpgm")

    A.label("L_ATT")
    vXa, vWa, vWc = 2, 6, 7
    XF, WF, XF2, WF2, ACC = 16, 32, 48, 64, 80
    sP, sTT = 48, 49
    A("""s_and_b32 s{p}, s3, 1
         s_lshr_b32 s{tt}, s3, 1
         s_and_b32 s{tt}, s{tt}, 1
         s_mov_b32 s{vm}, 0xffff
         s_mov_b32 s{vm1}, 0xffff""".format(p=sP, tt=sTT, vm=sVM, vm1=sVM+1))
    if opts.get("codepf", True):
        A("""s_cmp_eq_u32 s3, 6
             s_cbranch_scc0 L_NOPF
             s_getpc_b64 s[24:25]
             L_PC:
             s_sub_u32 s24, s24, L_PC-L_START
             s_subb_u32 s25, s25, 0
             v_lshlrev_b32 v8, 7, v1
             global_load_dword v160, v8, s[24:25]
             v_add_u32 v8, 8192, v8
             v_min_u32 v8, L_CODE_END-L_START-4, v8
             global_load_dword v161, v8, s[24:25]""")
        A.label("L_NOPF")
    frag_addr(vXa, 8, 9)
    A("s_lshl_b32 s23, s%d, 12" % sTT)
    for ks in range(4):
        A("v_add_u32 v%d, s23, v%d" % (vXa + ks, vXa + ks))
    A("""v_bfe_u32 v8, v{L}, 2, 2
         v_lshrrev_b32 v9, 5, v{L}
         v_lshl_add_u32 v9, v9, 3, v8
         v_lshlrev_b32 v{wa}, 7, v9
         v_bfe_u32 v9, v{L}, 4, 1
         s_lshl_b32 s23, s{p}, 1
         v_add_u32 v9, s23, v9
         v_and_b32 v8, 2, v8
         v_xor_b32 v9, v9, v8
         v_lshl_add_u32 v{wa}, v9, 5, v{wa}
         v_and_b32 v8, 3, v{L}
         s_waitcnt lgkmcnt(0)
         s_load_dword s{ep}, s[12:13], 0
         s_cmp_ge_u32 s3, 4
         s_cbranch_scc1 L_VPRE""".format(L=vL, wa=vWa, p=sP, ep=sEP))
    param_loads(96, 97, 98, 9)
    A("""v_lshrrev_b32 v9, 1, v8
         v_lshlrev_b32 v10, 1, v8
         v_and_b32 v10, 2, v10
         v_or_b32 v9, v9, v10
         v_lshl_add_u32 v{wa}, v9, 3, v{wa}
         s_lshl_b32 s23, s{J}, 1
         s_and_b32 s24, s{I}, 1
         s_add_u32 s26, s23, s24
         s_lshl_b32 s23, s26, 15
         s_lshr_b32 s27, s{I}, 1
         s_lshl_b32 s24, s27, 6
         s_add_u32 s23, s23, s24
         s_lshl_b32 s24, s{p}, 5
         s_add_u32 s23, s23, s24
         v_and_b32 v9, 31, v{L}
         v_lshrrev_b32 v10, 5, v{L}
         v_lshlrev_b32 v11, 4, v10
         v_lshl_add_u32 v9, v9, 10, v11
         v_add_u32 v9, s23, v9
         global_load_dwordx4 v[100:103], v9, s[{cr}:{cr1}]
         global_load_dwordx4 v[104:107], v9, s[{ci}:{ci1}]
         v_lshlrev_b32 v10, 5, v10
         s_lshl_b32 s24, s{p}, 6
         v_add_u32 v10, s24, v10""".format(wa=vWa, J=sJ, I=sI, p=sP, L=vL, cr=P_CRE, cr1=P_CRE+1, ci=P_CIM, ci1=P_CIM+1))
    wait(vm=2)
    params(96, 97, 98, 108, 109, 110, 111, 112)
    A("""v_add_f32 v108, -1.0, v108
         v_mul_f32 v110, v96, v96
         v_fmac_f32 v110, v97, v97
         v_rcp_f32 v110, v110
         v_mul_f32 v111, v108, v96
         v_mul_f32 v112, v109, v96
         v_add_f32 v110, v110, v110
         v_fmac_f32 v111, v109, v97
         v_fma_f32 v112, -v108, v97, v112
         v_mul_f32 v111, v111, v110
         v_mul_f32 v112, v112, v110
         v_xor_b32 v112, 0x80000000, v112
         s_cmp_eq_u32 s{tt}, 0
         s_cbranch_scc1 L_CP0
         v_xor_b32 v110, 0x80000000, v111
         v_mov_b32 v111, v112
         v_mov_b32 v112, v110""".format(tt=sTT))
    A.label("L_CP0")
    for e in range(8):
        A("ds_bpermute_b32 v%d, v10, v111 offset:%d" % (116 + e, 4*e))
    wait(lg=0)
    for e in range(8):
        A("ds_bpermute_b32 v%d, v10, v112 offset:%d" % (124 + e, 4*e))
    wait(vm=0)
    for e in range(8):
        src = 100 + e // 2
        A(("v_lshlrev_b32 v110, 16, v%d" if e % 2 == 0 else "v_and_b32 v110, 0xffff0000, v%d") % src)
        A("v_mul_f32 v%d, v%d, v110" % (116 + e, 116 + e))
    wait(lg=0)
    for e in range(8):
        src = 104 + e // 2
        A(("v_lshlrev_b32 v110, 16, v%d" if e % 2 == 0 else "v_and_b32 v110, 0xffff0000, v%d") % src)
        A("v_fmac_f32 v%d, v%d, v110" % (116 + e, 124 + e))
    for q in range(4):
        A("v_cvt_pk_bf16_f32 v%d, v%d, v%d" % (100 + q, 116 + 2*q, 117 + 2*q))
    A("""s_lshl_b32 s23, s26, 16
         s_lshl_b32 s24, s27, 2
         s_add_u32 s24, s24, s3
         s_lshl_b32 s24, s24, 10
         s_add_u32 s23, s23, s24
         s_add_u32 s23, s23, {c}
         v_lshlrev_b32 v9, 4, v{L}
         buffer_store_dwordx4 v[100:103], v9, s[12:15], s23 offen sc1""".format(tt=sTT, p=sP, c=WS_C, L=vL))
    tag_from_epoch()
    for r in range(16): A("v_mov_b32 v%d, 0" % (ACC + r))
    def chunk_reads(xf, wf, xoff, woff):
        for ks in range(4):
            A("ds_read_b128 %s, v%d offset:%d" % (v(xf + 4*ks, 4), vXa + ks, xoff))
            A("ds_read_b64_tr_b16 %s, v%d offset:%d" % (v(wf + 4*ks, 2), vWc, woff + 2048*ks))
            A("ds_read_b64_tr_b16 %s, v%d offset:%d" % (v(wf + 4*ks + 2, 2), vWc, woff + 2048*ks + 512))
    def kv_loop(lbl, is_k):
        A("s_mov_b32 s58, 0\ns_mov_b32 s56, %d" % (L_RING + (0 if is_k else 8192)))
        A.label(lbl)
        bar()
        A("v_add_u32 v%d, s56, v%d" % (vWc, vWa))
        chunk_reads(XF, WF, 0, 0)
        A("""s_add_u32 s56, s56, 16384
             s_cmp_ge_u32 s56, 163840
             s_cselect_b32 s23, 98304, 0
             s_sub_u32 s56, s56, s23""")
        for ks in range(4):
            wait(lg=9 - 3*ks)
            a_, b_ = (WF, XF) if is_k else (XF, WF)
            A("v_mfma_f32_32x32x16_bf16 %s, %s, %s, %s" % (v(ACC, 16), v(a_ + 4*ks, 4), v(b_ + 4*ks, 4), v(ACC, 16)))
            A("v_add_u32 v%d, 8192, v%d" % (vXa + ks, vXa + ks))
        A("s_add_u32 s58, s58, 1\ns_cmp_lt_u32 s58, 8\ns_cbranch_scc1 %s" % lbl)
    def tile_base():
        A("""s_lshl_b32 s23, s{J}, 2
             s_add_u32 s23, s23, s{TQ}
             s_lshl_b32 s23, s23, 1
             s_add_u32 s51, s23, s{tt}
             s_lshl_b32 s23, s{HG}, 1
             s_add_u32 s23, s23, s{p}
             s_lshl_b32 s52, s23, 18
             s_lshl_b32 s24, s51, 11
             s_add_u32 s50, s52, s24""".format(J=sJ, TQ=sTQ, tt=sTT, HG=sHG, p=sP))
    kv_loop("L_K", True)
    stamp(1)
    slot_load(12, 8)
    tile_base()
    PK = 96
    A("""s_add_u32 s53, s50, {g}
         s_add_u32 s54, s53, 131072
         v_lshlrev_b32 v9, 4, v{L}
         s_nop 0""".format(g=WS_KVG, L=vL))
    for ks in range(4):
        A("v_subrev_u32 v%d, 65536, v%d" % (vXa + ks, vXa + ks))
    for q in range(8):
        A("v_cvt_pk_bf16_f32 v%d, v%d, v%d" % (PK + q, ACC + 2*q, ACC + 2*q + 1))
    A("""buffer_store_dwordx4 v[96:99], v9, s[12:15], s53 offen sc1
         buffer_store_dwordx4 v[100:103], v9, s[12:15], s54 offen sc1""")
    for r in range(16): A("v_mov_b32 v%d, 0" % (ACC + r))
    A("s_mov_b32 s58, 0\nv_add_u32 v%d, %d, v%d" % (vWc, L_RING + 4*8192, vWa))
    A.label("L_Q")
    bar()
    chunk_reads(XF, WF, 0, 0)
    for ks in range(4):
        wait(lg=9)
        A("v_mfma_f32_32x32x16_bf16 %s, %s, %s, %s" % (v(ACC, 16), v(WF + 4*ks, 4), v(XF + 4*ks, 4), v(ACC, 16)))
        A("ds_read_b128 %s, v%d offset:8192" % (v(XF2 + 4*ks, 4), vXa + ks))
        A("ds_read_b64_tr_b16 %s, v%d offset:%d" % (v(WF2 + 4*ks, 2), vWc, 8192 + 2048*ks))
        A("ds_read_b64_tr_b16 %s, v%d offset:%d" % (v(WF2 + 4*ks + 2, 2), vWc, 8192 + 2048*ks + 512))
    for ks in range(4):
        wait(lg=9 - 3*ks)
        A("v_mfma_f32_32x32x16_bf16 %s, %s, %s, %s" % (v(ACC, 16), v(WF2 + 4*ks, 4), v(XF2 + 4*ks, 4), v(ACC, 16)))
        A("v_add_u32 v%d, 16384, v%d" % (vXa + ks, vXa + ks))
    A("v_add_u32 v%d, 16384, v%d" % (vWc, vWc))
    A("s_add_u32 s58, s58, 1\ns_cmp_lt_u32 s58, 4\ns_cbranch_scc1 L_Q")
    bar()
    stamp(2)
    wait(vm=2)
    slot_eval(12)
    A("""s_add_u32 s53, s50, {l}
         s_add_u32 s54, s53, 131072
         s_lshr_b32 s55, s50, 1
         s_add_u32 s55, s55, {q}
         s_add_u32 s56, s55, 65536
         s_mov_b32 s23, 0x3eb8aa3b""".format(l=WS_KVL, q=WS_Q))
    for r in range(16):
        A("v_mul_f32 v%d, s23, v%d" % (ACC + r, ACC + r))
    for q in range(8):
        A("v_cvt_pk_bf16_f32 v%d, v%d, v%d" % (104 + q, ACC + 2*q, ACC + 2*q + 1))
    mode_stores(["buffer_store_dwordx4 v[104:107], v9, s[12:15], s55 offen", "buffer_store_dwordx4 v[108:111], v9, s[12:15], s56 offen",
                 "buffer_store_dwordx4 v[96:99], v9, s[12:15], s53 offen", "buffer_store_dwordx4 v[100:103], v9, s[12:15], s54 offen"])
    bar()
    wait(vm=4); bar()
    wait(vm=0); bar()
    bar()
    A("""v_and_b32 v8, 3, v{L}
         v_lshlrev_b32 v8, 2, v8
         s_lshl_b32 s23, s{J}, 3
         s_add_u32 s23, s23, s{HG}
         s_lshl_b32 s23, s23, 4
         s_add_u32 s28, s23, {fl}
         s_lshl_b32 s23, s{I}, 17
         s_lshl_b32 s24, s{J}, 14
         s_add_u32 s23, s23, s24
         s_lshl_b32 s25, s3, 12
         s_add_u32 s23, s23, s25
         s_add_u32 s29, s23, {kvl}""".format(L=vL, J=sJ, HG=sHG, I=sI, fl=WS_FL, kvl=WS_KVL))
    bar()
    poll_all(8, "s28", 10)
    A("s_mov_b32 m0, s25\ns_nop 0")
    for k in range(4):
        A("buffer_load_dwordx4 v9, s[12:15], s29 offen offset:%d sc1 lds" % (1024*k))
    bar()
    A("s_branch L_QLD")

    A.label("L_VPRE")
    A("v_lshl_add_u32 v%d, v8, 3, v%d" % (vWa, vWa))
    A("s_cmp_ge_u32 s3, 6\ns_cbranch_scc1 L_VP2")
    A("""s_and_b32 s23, s{I}, 30
         s_add_u32 s27, s23, s{p}
         s_lshl_b32 s23, s{J}, 1
         s_and_b32 s24, s{I}, 1
         s_add_u32 s26, s23, s24
         s_lshl_b32 s23, s27, 14
         s_lshl_b32 s24, s26, 6
         s_add_u32 s23, s23, s24
         v_and_b32 v9, 31, v{L}
         v_lshrrev_b32 v10, 5, v{L}
         v_lshlrev_b32 v10, 12, v10
         v_lshl_add_u32 v9, v9, 1, v10
         v_add_u32 v9, s23, v9
         v_add_u32 v10, 8192, v9""".format(I=sI, p=sP, J=sJ, L=vL))
    for e in range(8):
        A("global_load_ushort v%d, v%d, s[%d:%d] offset:%d" % (104 + e, 9 if e < 4 else 10, P_WO, P_WO + 1, 1024 * (e & 3)))
    A("""s_lshl_b32 s23, s26, 5
         s_add_u32 s23, s23, s27
         s_lshl_b32 s23, s23, 10
         s_add_u32 s23, s23, {wo}
         v_lshlrev_b32 v9, 4, v{L}""".format(wo=WS_WO, L=vL))
    wait(vm=0)
    for q in range(4):
        A("v_lshl_or_b32 v%d, v%d, 16, v%d" % (100 + q, 105 + 2*q, 104 + 2*q))
    A("buffer_store_dwordx4 v[100:103], v9, s[12:15], s23 offen sc1")
    A.label("L_VP2")
    wait(lg=0)
    tag_from_epoch()
    A("s_cmp_eq_u32 s3, 7\ns_cbranch_scc0 L_VP3")
    A("""v_mov_b32 v100, s{TAG}
         v_mov_b32 v101, s{X}
         s_lshl_b32 s23, s{J}, 5
         s_add_u32 s23, s23, s{I}
         s_lshl_b32 s23, s23, 3
         s_add_u32 s23, s23, {x}""".format(TAG=sTAG, X=sXCC, J=sJ, I=sI, x=WS_XCC))
    one_lane(["buffer_store_dwordx2 v[100:101], off, s[12:15], s23 sc1"])
    A.label("L_VP3")
    vXA, vXA2, vB, vB2 = 10, 11, 12, 13
    dma_lane_regs(sP, vB, 8)
    A("""v_lshrrev_b32 v9, 2, v8
         v_lshlrev_b32 v9, 4, v9
         v_and_b32 v{xa}, 3, v8
         v_add_u32 v9, v9, v{xa}
         v_lshl_add_u32 v{xa}, v9, 10, v{b}
         v_add_u32 v{xa2}, {d1}, v{xa}
         v_lshl_add_u32 v{b}, v8, 10, v{b}
         v_add_u32 v{b2}, {d2}, v{b}
         s_mov_b32 s40, s{ax}
         s_mov_b32 s41, s{ax1}
         s_mov_b32 s42, 0x200000
         s_mov_b32 s43, 0x20000
         s_cmp_eq_u32 s{tt}, 0
         s_cselect_b32 s36, s{br}, s{bi}
         s_cselect_b32 s37, s{br1}, s{bi1}
         s_mov_b32 s38, 0x80000
         s_mov_b32 s39, 0x20000
         s_lshl_b32 s23, s{J}, 1
         s_and_b32 s24, s{I}, 1
         s_add_u32 s23, s23, s24
         s_lshl_b32 s23, s23, 17
         s_lshl_b32 s24, s{tt}, 15
         s_add_u32 s23, s23, s24
         s_lshl_b32 s24, s{p}, 12
         s_add_u32 s59, s23, s24
         s_lshr_b32 s23, s{I}, 1
         s_lshl_b32 s23, s23, 15
         s_lshl_b32 s24, s{p}, 13
         s_add_u32 s60, s23, s24
         s_lshl_b32 s23, s{tt}, 2
         s_add_u32 s23, s23, s{p}
         s_lshl_b32 s61, s23, 10""".format(xa=vXA, xa2=vXA2, b=vB, b2=vB2, d1=8192-2048, d2=16384-2048, ax=P_AX, ax1=P_AX+1, tt=sTT,
                                          br=P_BRE, bi=P_BIM, br1=P_BRE+1, bi1=P_BIM+1, J=sJ, I=sI, p=sP))
    for r in range(16): A("v_mov_b32 v%d, 0" % (ACC + r))
    kv_loop("L_V", False)
    stamp(1)
    slot_load(14, 8)
    tile_base()
    A("""v_bfe_u32 v8, v{L}, 4, 1
         v_lshlrev_b32 v8, 17, v8
         v_lshrrev_b32 v9, 5, v{L}
         v_lshl_add_u32 v8, v9, 9, v8
         v_and_b32 v9, 15, v{L}
         v_lshl_add_u32 v8, v9, 4, v8
         s_add_u32 s53, s50, {g}
         s_add_u32 s54, s50, {l}""".format(L=vL, g=WS_KVG + 1024, l=WS_KVL + 1024))
    for q in range(8):
        A("v_cvt_pk_bf16_f32 v%d, v%d, v%d" % (PK + q, ACC + 2*q, ACC + 2*q + 1))
    A("""buffer_store_dwordx4 v[96:99], v8, s[12:15], s53 offen sc1
         buffer_store_dwordx4 v[100:103], v8, s[12:15], s53 offen offset:256 sc1""")
    def udma(c):
        base = 16384 + ((c + 2) % 6) * 24576
        A("""s_add_u32 m0, s61, {b0}
             s_add_u32 s23, s59, 65536
             buffer_load_dwordx4 v{b}, s[36:39], s60 offen lds
             buffer_load_dwordx4 v{b2}, s[36:39], s60 offen offset:2048 lds
             s_add_u32 m0, s61, {b1}
             s_add_u32 s60, s60, 128
             buffer_load_dwordx4 v{xa}, s[40:43], s59 offen lds
             buffer_load_dwordx4 v{xa2}, s[40:43], s59 offen offset:2048 lds
             s_add_u32 m0, s61, {b2_}
             s_add_u32 s59, s59, 128
             buffer_load_dwordx4 v{xa}, s[40:43], s23 offen lds
             buffer_load_dwordx4 v{xa2}, s[40:43], s23 offen offset:2048 lds""".format(b0=base, b1=base + 8192, b2_=base + 16384, b=vB, b2=vB2, xa=vXA, xa2=vXA2))
    bar(); udma(0)
    bar(); udma(1)
    wait(vm=14)
    slot_eval(14)
    mode_stores(["buffer_store_dwordx4 v[96:99], v8, s[12:15], s54 offen", "buffer_store_dwordx4 v[100:103], v8, s[12:15], s54 offen offset:256"])
    bar()
    bar(); udma(2)
    wait(vm=14); bar()
    stamp(2)
    udma(3); udma(4); udma(5)
    wait(vm=26); bar(); udma(6)
    wait(vm=24); bar(); udma(7)
    wait(vm=24); bar()
    wait(vm=18); bar()
    A("""v_lshlrev_b32 v8, 2, v{L}
         v_add_u32 v8, {cnt}, v8
         v_cmp_eq_u32 vcc, 8, v{L}
         v_mov_b32 v9, 0
         s_nop 0
         v_cndmask_b32 v9, v9, 4, vcc
         ds_write_b32 v8, v9""".format(L=vL, cnt=L_CNT))
    wait(vm=12, lg=0); bar()
    wait(vm=6); bar()
    A("v_lshlrev_b32 v9, 4, v%d" % vL)

    A.label("L_QLD")
    vKA, vCN, vCA2, Q, K, V0, V1, P, S0, S1, O = 2, 3, 28, 4, 8, 12, 16, 20, 32, 48, 64
    A("""s_lshl_b32 s23, s{I}, 6
         s_lshl_b32 s24, s{J}, 3
         s_add_u32 s50, s24, s3
         s_add_u32 s23, s23, s50
         s_lshl_b32 s23, s23, 10
         s_add_u32 s23, s23, {q}
         buffer_load_dwordx4 {Q}, v9, s[12:15], s23 offen sc1
         v_mov_b32 v{ka}, v9
         v_mov_b32 v{ca}, {cnt}""".format(I=sI, J=sJ, q=WS_Q, Q=v(Q, 4), ka=vKA, ca=vCA2, cnt=L_CNT + 4))
    for r in range(8): A("v_mov_b32 v%d, 0x3f803f80" % (V0 + r))
    for r in range(16): A("v_mov_b32 v%d, 0" % (O + r))
    wait(vm=0); bar()
    stamp(3); cstamp(14)
    def vreads(off):
        A("""s_mov_b64 exec, s[{m}:{m1}]
             ds_read_b128 {a}, v{ka} offset:{o0}
             ds_read_b128 {b}, v{ka} offset:{o1}
             s_mov_b64 exec, -1""".format(m=sVM, m1=sVM+1, a=v(V0, 4), b=v(V1, 4), ka=vKA, o0=off + 1024, o1=off + 1280))
    A("ds_read_b128 %s, v%d" % (v(K, 4), vKA))
    wait(lg=0)
    A("v_mfma_f32_32x32x16_bf16 %s, %s, %s, 0" % (v(S0, 16), v(K, 4), v(Q, 4)))
    A("ds_read_b128 %s, v%d offset:2048" % (v(K, 4), vKA))
    vreads(0)
    A("s_mov_b32 s58, 0\ns_nop 7")
    A("v_exp_f32 v%d, v%d\nv_exp_f32 v%d, v%d" % (S0, S0, S0 + 1, S0 + 1))
    PRIO = opts.get("prio")
    A(".p2align 6")
    A.label("L_A")
    for t in range(8):
        S, N = (S0, S1) if t % 2 == 0 else (S1, S0)
        for e in range(2, 8): A("v_exp_f32 v%d, v%d" % (S + e, S + e))
        wait(lg=0)
        A("v_mfma_f32_32x32x16_bf16 %s, %s, %s, 0" % (v(N, 16), v(K, 4), v(Q, 4)))
        for q in range(4): A("v_cvt_pk_bf16_f32 v%d, v%d, v%d" % (P + q, S + 2*q, S + 2*q + 1))
        for e in (8, 9): A("v_exp_f32 v%d, v%d" % (S + e, S + e))
        A("v_mfma_f32_32x32x16_bf16 %s, %s, %s, %s" % (v(O, 16), v(V0, 4), v(P, 4), v(O, 16)))
        for e in range(10, 16): A("v_exp_f32 v%d, v%d" % (S + e, S + e))
        if t == 5:
            A("v_readfirstlane_b32 s23, v%d" % vCN)
        for q in range(4, 8): A("v_cvt_pk_bf16_f32 v%d, v%d, v%d" % (P + q, S + 2*q, S + 2*q + 1))
        for e in (0, 1): A("v_exp_f32 v%d, v%d" % (N + e, N + e))
        A("v_mfma_f32_32x32x16_bf16 %s, %s, %s, %s" % (v(O, 16), v(V1, 4), v(P + 4, 4), v(O, 16)))
        if t == 5:
            A("s_cmp_lt_u32 s23, 4\ns_cbranch_scc1 L_AW")
            A.label("L_AR")
        A("ds_read_b128 %s, v%d offset:%d" % (v(K, 4), vKA, 2048 * (t + 2)))
        if t == 4:
            A("ds_read_b32 v%d, v%d" % (vCN, vCA2))
        vreads(2048 * (t + 1))
    A("""v_add_u32 v{ka}, 16384, v{ka}
         v_add_u32 v{ca}, 4, v{ca}
         s_add_u32 s58, s58, 1
         s_cmp_lt_u32 s58, 8
         s_cbranch_scc1 L_A""".format(ka=vKA, ca=vCA2))
    stamp(4); cstamp(15)
    A("""s_nop 7
         s_mov_b32 s23, 0x33800000
         s_mov_b32 s24, 0x53800000
         s_mov_b32 s25, 0x7f800000
         v_max3_f32 v8, |v{o0}|, |v{o1}|, |v{o2}|
         v_max3_f32 v9, |v{o3}|, |v{o4}|, |v{o5}|
         v_max3_f32 v8, |v{o6}|, |v{o7}|, v8
         v_cmp_le_f32 s[26:27], s23, v{l}
         v_cmp_ge_f32 s[28:29], s24, v{l}
         v_max_f32 v8, v8, v9
         v_add_f32 v9, v{o0}, v{o1}
         v_add_f32 v10, v{o2}, v{o3}
         v_add_f32 v11, v{o4}, v{o5}
         v_add_f32 v29, v{o6}, v{o7}
         v_add_f32 v9, v9, v10
         v_add_f32 v11, v11, v29
         v_cmp_gt_f32 s[30:31], s25, v8
         v_cmp_o_f32 vcc, v9, v11
         s_and_b64 s[26:27], s[26:27], s[28:29]
         s_and_b64 s[30:31], s[30:31], vcc
         s_and_b64 s[26:27], s[26:27], s[30:31]
         s_cmp_eq_u64 s[26:27], -1
         s_cbranch_scc0 L_FB""".format(o0=O, o1=O+1, o2=O+2, o3=O+3, o4=O+4, o5=O+5, o6=O+6, o7=O+7, l=O+8))
    A.label("L_FBR")
    A("v_rcp_f32 v29, v%d\nv_lshlrev_b32 v2, 4, v%d" % (O + 8, vL))
    for r in range(8): A("v_mul_f32 v%d, v%d, v29" % (O + r, O + r))
    for q in range(4): A("v_cvt_pk_bf16_f32 v%d, v%d, v%d" % (8 + q, O + 2*q, O + 2*q + 1))
    A("""s_lshl_b32 s23, s50, 5
         s_add_u32 s51, s23, s{I}
         s_lshl_b32 s23, s51, 10
         s_add_u32 s26, s23, {o}""".format(I=sI, o=WS_O))
    mode_stores(["buffer_store_dwordx4 v[8:11], v2, s[12:15], s26 offen"])
    WOF, OF, WACC = 80, 16, 144
    A("""v_and_b32 v3, 31, v{L}
         v_lshlrev_b32 v3, 2, v3
         s_lshl_b32 s28, s{HG}, 7
         s_add_u32 s28, s28, {fp}
         s_lshr_b32 s52, s3, 2
         s_lshl_b32 s23, s{HG}, 1
         s_add_u32 s23, s23, s{tt}
         s_lshl_b32 s23, s23, 1
         s_add_u32 s23, s23, s52
         s_lshl_b32 s23, s23, 14
         s_add_u32 s53, s23, {wo}
         s_lshl_b32 s23, s{J}, 2
         s_add_u32 s23, s23, s{TQ}
         s_lshl_b32 s23, s23, 1
         s_add_u32 s23, s23, s{p}
         s_lshl_b32 s23, s23, 1
         s_add_u32 s23, s23, s52
         s_lshl_b32 s54, s23, 14
         s_add_u32 s54, s54, {o}
         s_lshl_b32 s55, s23, 6
         s_add_u32 s55, s55, {fo}
         s_lshl_b32 s26, s51, 2
         s_add_u32 s26, s26, {fo}""".format(L=vL, HG=sHG, fp=WS_FP, tt=sTT, wo=WS_WO, J=sJ, TQ=sTQ, p=sP, o=WS_O, fo=WS_FO))
    poll_all(3, "s28", 29)
    wait(vm=0)
    A("v_mov_b32 v29, s%d\ns_mov_b64 exec, 1" % sTAG)
    mode_stores(["buffer_store_dword v29, off, s[12:15], s26"])
    A("s_mov_b64 exec, -1")
    stamp(5)
    for k in range(16):
        A("buffer_load_dwordx4 %s, v2, s[12:15], s53 offen offset:%d sc1" % (v(WOF + 4*k, 4), 1024 * (k & 3)))
        if k & 3 == 3 and k < 15: A("s_add_u32 s53, s53, 4096")
    A("v_and_b32 v3, 15, v%d\nv_lshlrev_b32 v3, 2, v3" % vL)
    poll_all(3, "s55", 29)
    stamp(6)
    for k in range(16):
        A("buffer_load_dwordx4 %s, v2, s[12:15], s54 offen offset:%d sc1" % (v(OF + 4*k, 4), 1024 * (k & 3)))
        if k & 3 == 3 and k < 15: A("s_add_u32 s54, s54, 4096")
    A("""s_lshl_b32 s23, s52, 1
         s_add_u32 s23, s23, s{p}
         s_lshl_b32 s23, s23, 1
         s_add_u32 s23, s23, s{tt}
         s_lshl_b32 s23, s23, 12
         v_and_b32 v4, 31, v{L}
         v_lshrrev_b32 v5, 5, v{L}
         v_xor_b32 v5, v5, v4
         v_and_b32 v5, 7, v5
         v_lshlrev_b32 v5, 4, v5
         v_lshl_add_u32 v4, v4, 7, v5
         v_add_u32 v4, s23, v4
         v_xor_b32 v5, 32, v4
         v_xor_b32 v6, 64, v4
         v_xor_b32 v7, 96, v4
         v_lshrrev_b32 v12, 4, v{L}
         v_and_b32 v13, 7, v{L}
         v_xor_b32 v13, v13, v12
         v_lshlrev_b32 v13, 4, v13
         v_lshl_add_u32 v13, v12, 7, v13
         v_bfe_u32 v14, v{L}, 3, 1
         v_lshl_add_u32 v13, v14, 12, v13
         s_lshl_b32 s23, s52, 13
         s_and_b32 s24, s3, 3
         s_lshl_b32 s24, s24, 10
         s_add_u32 s23, s23, s24
         v_add_u32 v13, s23, v13
         v_xor_b32 v14, 64, v13
         v_and_b32 v15, 15, v{L}
         v_lshlrev_b32 v15, 4, v15
         v_lshl_add_u32 v15, v12, 12, v15
         s_lshl_b32 s23, s{J}, 2
         s_add_u32 s23, s23, s{TQ}
         s_lshl_b32 s23, s23, 3
         s_add_u32 s23, s23, s3
         s_lshl_b32 s23, s23, 15
         s_lshl_b32 s24, s{HG}, 8
         s_add_u32 s23, s23, s24
         s_add_u32 s56, s23, 2048
         s_add_u32 s57, s56, 16384
         s_mov_b32 s36, s{po}
         s_mov_b32 s37, s{po1}
         s_mov_b32 s38, 0x800000
         s_mov_b32 s39, 0x20000""".format(p=sP, tt=sTT, L=vL, J=sJ, TQ=sTQ, HG=sHG, po=P_OUT, po1=P_OUT+1))
    for k in range(16):
        wait(vm=15 - k)
        A("v_mfma_f32_32x32x16_bf16 %s, %s, %s, %s" % (v(WACC, 16), v(WOF + 4*k, 4), v(OF + 4*k, 4), "0" if k == 0 else v(WACC, 16)))
    bar()
    A("s_nop 7\ns_nop 3")
    for g in range(4):
        A("ds_write_b128 v%d, %s" % (4 + g, v(WACC + 4*g, 4)))
    wait(lg=0); bar()
    A("""ds_read_b128 v[16:19], v13
         ds_read_b128 v[20:23], v13 offset:16384
         ds_read_b128 v[24:27], v14 offset:512
         ds_read_b128 v[28:31], v14 offset:16896""")
    wait(lg=2)
    for e in range(4): A("v_add_f32 v%d, v%d, v%d" % (16 + e, 16 + e, 20 + e))
    A("buffer_store_dwordx4 v[16:19], v15, s[36:39], s56 offen %s" % opts.get("ostore", ""))
    wait(lg=0)
    for e in range(4): A("v_add_f32 v%d, v%d, v%d" % (24 + e, 24 + e, 28 + e))
    A("buffer_store_dwordx4 v[24:27], v15, s[36:39], s57 offen %s" % opts.get("ostore", ""))
    A("""s_or_b32 s23, s2, s3
         s_cmp_eq_u32 s23, 0
         s_cbranch_scc0 L_NE
         s_add_u32 s23, s{ep}, 1
         v_mov_b32 v3, s23""".format(ep=sEP))
    one_lane(["buffer_store_dword v3, off, s[12:15], 0 sc1"])
    A.label("L_NE")
    stamp(7)
    stamp_out()
    A.label("L_END")
    A("s_endpgm")
    A.label("L_AW")
    A("s_mov_b32 s%d, 0" % sSPIN)
    A.label("L_AW2")
    A("""ds_read_b32 v{cn}, v{ca}
         s_add_u32 s{sp}, s{sp}, 1
         s_cmp_gt_u32 s{sp}, {SP}
         s_cbranch_scc1 L_AR
         s_waitcnt lgkmcnt(0)
         v_cmp_gt_u32 vcc, 4, v{cn}
         s_nop 1
         s_cbranch_vccnz L_AW2
         s_branch L_AR""".format(cn=vCN, ca=vCA2, sp=sSPIN, SP=SPIN))
    A.label("L_FB")
    A("v_lshlrev_b32 v%d, 4, v%d\nv_mov_b32 v29, 0xff800000\ns_mov_b32 s58, 0" % (vKA, vL))
    wait(lg=0)
    A.label("L_FB1")
    A("ds_read_b128 %s, v%d" % (v(K, 4), vKA))
    wait(lg=0)
    A("v_mfma_f32_32x32x16_bf16 %s, %s, %s, 0\ns_nop 7\ns_nop 3" % (v(S0, 16), v(K, 4), v(Q, 4)))
    for q in range(8): A("v_max3_f32 v29, v29, v%d, v%d" % (S0 + 2*q, S0 + 2*q + 1))
    A("""v_add_u32 v{ka}, 2048, v{ka}
         s_add_u32 s58, s58, 1
         s_cmp_lt_u32 s58, 64
         s_cbranch_scc1 L_FB1
         v_mov_b32 v30, v29
         s_nop 1
         v_permlane32_swap_b32 v29, v30
         v_max_f32 v29, v29, v30
         v_lshlrev_b32 v{ka}, 4, v{L}
         s_mov_b32 s58, 0""".format(ka=vKA, L=vL))
    for r in range(16): A("v_xor_b32 v%d, 0x80000000, v29\nv_mov_b32 v%d, 0" % (S1 + r, O + r))
    A.label("L_FB2")
    A("ds_read_b128 %s, v%d" % (v(K, 4), vKA))
    vreads(0)
    wait(lg=0)
    A("v_mfma_f32_32x32x16_bf16 %s, %s, %s, %s\ns_nop 7\ns_nop 3" % (v(S0, 16), v(K, 4), v(Q, 4), v(S1, 16)))
    for e in range(16): A("v_exp_f32 v%d, v%d" % (S0 + e, S0 + e))
    A("s_nop 0")
    for q in range(8): A("v_cvt_pk_bf16_f32 v%d, v%d, v%d" % (P + q, S0 + 2*q, S0 + 2*q + 1))
    A("s_nop 1")
    A("v_mfma_f32_32x32x16_bf16 %s, %s, %s, %s" % (v(O, 16), v(V0, 4), v(P, 4), v(O, 16)))
    A("v_mfma_f32_32x32x16_bf16 %s, %s, %s, %s" % (v(O, 16), v(V1, 4), v(P + 4, 4), v(O, 16)))
    A("""v_add_u32 v{ka}, 2048, v{ka}
         s_add_u32 s58, s58, 1
         s_nop 7
         s_cmp_lt_u32 s58, 64
         s_cbranch_scc1 L_FB2
         s_nop 7
         s_branch L_FBR""".format(ka=vKA))
    A.label("L_CODE_END")
    return A

HEADER = """; fused S5 SSM + multi-head attention block, one persistent launch: 256 workgroups x 12 waves
; @launch grid=(256,1,1) block=(768,1,1) lds=%d
.amdgcn_target "amdgcn-amd-amdhsa--gfx950"
.text
.globl %s_kernel
""" % (LDS_BYTES, NAME)
FOOTER = """.section .rodata,"a"
.p2align 6
.amdhsa_kernel %s_kernel
  .amdhsa_next_free_vgpr 168
  .amdhsa_next_free_sgpr 102
  .amdhsa_accum_offset 168
  .amdhsa_group_segment_fixed_size 0
  .amdhsa_kernarg_size 120
  .amdhsa_user_sgpr_count 2
  .amdhsa_user_sgpr_kernarg_segment_ptr 1
  .amdhsa_system_sgpr_workgroup_id_x 1
.end_amdhsa_kernel
""" % NAME

def build(path, **kw):
    A = gen(**kw)
    probs = lint(A.lines)
    for p in probs: print("HAZARD:", p)
    body = A.text()
    pre = ""
    open(path, "w").write(HEADER + body + pre + FOOTER)
    return probs

if __name__ == "__main__":
    out = sys.argv[1] if len(sys.argv) > 1 else "cdna_kernels/%s.s" % NAME
    kw = {}
    if "stamps" in sys.argv: kw["stamps"] = True
    if "dbg" in sys.argv: kw["stamps"] = "dbg"
    for a in sys.argv:
        if a.startswith("pad"):
            kw["stamps"] = "pad"; kw["opts"] = {"padk": int(a[3:])}
    if "safe" in sys.argv: kw["force_safe"] = True
    build(out, **kw)
```

```python
import sys
from asmlib import Asm, v, s, lint

NAME = "concat_heads__ssm_conv_s5__mha_block__prompt"
WS_XCC, WS_FKVG, WS_FL, WS_FQ, WS_FP, WS_FG, WS_FO, WS_E = 0x1000, 0x2000, 0x4000, 0x6000, 0x8000, 0x9000, 0xA000, 0x10000
MB = 1 << 20
WS_KVG, WS_KVL, WS_Q, WS_G, WS_O, WS_C, WS_WO, WS_DBG = 1*MB, 5*MB, 9*MB, 11*MB, 15*MB, 17*MB, 18*MB, 19*MB
WS_SIZE = 20 * MB
L_RING = 65536
L_URING = 81920
L_SCR = 131072
L_XW = 155648
L_CNT = L_XW + 1024
LDS_BYTES = 163840
SPIN = 1 << 18

sW, sJ, sI, sTQ, sHG, sTAG, sEP, sFAST = 3, 16, 17, 18, 19, 20, 21, 22
S_XB, S_WQ, S_WS, S_OUT, S_XA = 4, 8, 12, 36, 40
sVM = 44
sT = list(range(23, 36))
P_AX, P_LRE, P_LIM, P_BRE, P_BIM, P_CRE, P_CIM, P_LDT = 64, 66, 68, 70, 72, 74, 76, 78
P_DSK, P_WO, P_OUT = 80, 84, 86
sXCC = 46
sSPIN = 47
vL = 1
VSTAMP = 167

def gen(stamps=False, force_safe=False, opts=None):
    opts = opts or {}
    A = Asm()
    uid = [0]
    def lab(p):
        uid[0] += 1
        return "L_%s%d" % (p, uid[0])
    def stamp(k):
        if stamps:
            A("s_memrealtime s[98:99]\ns_waitcnt lgkmcnt(0)\nv_writelane_b32 v%d, s98, %d" % (VSTAMP, k))
    def cstamp(k):
        if stamps:
            A("s_memtime s[98:99]\ns_waitcnt lgkmcnt(0)\nv_writelane_b32 v%d, s98, %d" % (VSTAMP, k))
    def stamp_out():
        if stamps == "pad":
            l = lab("pad")
            A("""s_nop 1
                 v_readlane_b32 s96, v%d, %d
                 s_nop 3
                 s_add_u32 s96, s96, 10000""" % (VSTAMP, opts.get("padk", 0) if True else 0))
            A.label(l)
            A("""s_memrealtime s[98:99]
                 s_waitcnt lgkmcnt(0)
                 s_sub_u32 s98, s98, s96
                 s_cmp_lt_i32 s98, 0
                 s_cbranch_scc1 %s""" % l)
        elif stamps == "dbg":
            A("""s_load_dwordx2 s[92:93], s[0:1], 104
                 s_mov_b32 s94, 256
                 s_mov_b32 s95, 0x20000
                 v_readlane_b32 s98, v%d, 0
                 s_not_b32 s98, s98
                 s_cmp_ge_u32 s3, 8
                 s_cselect_b32 s99, 28, 0
                 v_lshlrev_b32 v166, 2, v%d
                 s_waitcnt lgkmcnt(0)
                 s_mov_b64 exec, 0xfe
                 buffer_atomic_umax v%d, v166, s[92:95], s99 offen
                 s_mov_b64 exec, 1
                 v_mov_b32 v165, s98
                 buffer_atomic_umax v165, off, s[92:95], 0 offset:60
                 buffer_atomic_umax v%d, off, s[92:95], 0
                 s_mov_b64 exec, -1""" % (VSTAMP, vL, VSTAMP, VSTAMP))
        elif stamps:
            A("""s_mul_i32 s98, s2, 12
                 s_add_u32 s98, s98, s%d
                 s_lshl_b32 s98, s98, 8
                 s_add_u32 s98, s98, %d
                 v_lshlrev_b32 v166, 2, v%d
                 buffer_store_dword v%d, v166, s[12:15], s98 offen
                 s_mov_b64 exec, -1""" % (sW, WS_DBG, vL, VSTAMP))
    def wait(vm=None, lg=None):
        p = []
        if vm is not None: p.append("vmcnt(%d)" % vm)
        if lg is not None: p.append("lgkmcnt(%d)" % lg)
        A("s_waitcnt " + " ".join(p))
    barn = [0]
    def bar():
        if stamps == "bar" and barn[0] is not None and barn[0] < 12:
            A("s_memrealtime s[98:99]\ns_waitcnt lgkmcnt(0)\nv_writelane_b32 v%d, s98, %d" % (VSTAMP, 16 + barn[0]))
        A("s_barrier")
        if stamps == "bar" and barn[0] is not None and barn[0] < 12:
            A("s_memrealtime s[98:99]\ns_waitcnt lgkmcnt(0)\nv_writelane_b32 v%d, s98, %d" % (VSTAMP, 32 + barn[0]))
            barn[0] += 1
    def mode_stores(lines):
        a, b = lab("safe"), lab("done")
        A("s_cmp_eq_u32 s%d, 0\ns_cbranch_scc1 %s" % (sFAST, a))
        for l in lines: A(l)
        A("s_branch %s" % b); A.label(a)
        for l in lines: A(l + " sc1")
        A.label(b)
    def one_lane(lines):
        A("s_mov_b64 exec, 1")
        for l in lines: A(l)
        A("s_mov_b64 exec, -1")
    def slot_load(dst, tmp):
        A("""v_and_b32 v%d, 31, v%d
             v_lshlrev_b32 v%d, 3, v%d
             s_lshl_b32 s23, s%d, 8
             s_add_u32 s23, s23, %d
             buffer_load_dwordx2 %s, v%d, s[12:15], s23 offen sc1""" % (tmp, vL, tmp, tmp, sJ, WS_XCC, v(dst, 2), tmp))
    def slot_eval(dst):
        A("""v_cmp_eq_u32 s[24:25], s%d, v%d
             v_cmp_eq_u32 vcc, s%d, v%d
             s_nop 1
             s_and_b64 vcc, vcc, s[24:25]
             s_cmp_eq_u64 vcc, -1
             s_cselect_b32 s%d, %d, 0""" % (sTAG, dst, sXCC, dst + 1, sFAST, 0 if force_safe else 1))
    def poll_all(addr_v, soff, tmp):
        l, d = lab("poll"), lab("pd")
        A("s_mov_b32 s%d, 0" % sSPIN)
        A.label(l)
        A("""buffer_load_dword v%d, v%d, s[12:15], %s offen sc1
             s_add_u32 s%d, s%d, 1
             s_cmp_gt_u32 s%d, %d
             s_cbranch_scc1 %s
             s_waitcnt vmcnt(0)
             v_cmp_ne_u32 vcc, s%d, v%d
             s_nop 1
             s_cbranch_vccnz %s""" % (tmp, addr_v, soff, sSPIN, sSPIN, sSPIN, SPIN, d, sTAG, tmp, l))
        A.label(d)
    def params(lre, lim, ldt, lr, li, t0, t1, t2):
        A("""v_lshlrev_b32 v{lre}, 16, v{lre}
             v_lshlrev_b32 v{lim}, 16, v{lim}
             v_lshlrev_b32 v{ldt}, 16, v{ldt}
             v_mul_f32 v{ldt}, 0x3fb8aa3b, v{ldt}
             v_exp_f32 v{ldt}, v{ldt}
             s_nop 0
             v_cvt_pk_bf16_f32 v{ldt}, v{ldt}, v{ldt}
             v_and_b32 v{ldt}, 0xffff0000, v{ldt}
             v_mul_f32 v{t0}, v{ldt}, v{lre}
             v_mul_f32 v{t1}, v{ldt}, v{lim}
             v_mul_f32 v{t0}, 0x3fb8aa3b, v{t0}
             v_mul_f32 v{t1}, 0.15915494, v{t1}
             v_exp_f32 v{t0}, v{t0}
             v_rndne_f32 v{t2}, v{t1}
             v_sub_f32 v{t1}, v{t1}, v{t2}
             v_cos_f32 v{lr}, v{t1}
             v_sin_f32 v{li}, v{t1}
             s_nop 0
             v_mul_f32 v{lr}, v{lr}, v{t0}
             v_mul_f32 v{li}, v{li}, v{t0}""".format(lre=lre, lim=lim, ldt=ldt, lr=lr, li=li, t0=t0, t1=t1, t2=t2))
    def param_loads(lre, lim, ldt, tmp):
        A("""v_and_b32 v{t}, 31, v{L}
             s_lshr_b32 s23, s{i}, 1
             s_lshl_b32 s23, s23, 6
             v_lshl_add_u32 v{t}, v{t}, 1, s23
             global_load_ushort v{a}, v{t}, s[{pa}:{pa1}]
             global_load_ushort v{b}, v{t}, s[{pb}:{pb1}]
             global_load_ushort v{c}, v{t}, s[{pc}:{pc1}]""".format(t=tmp, L=vL, i=sI, a=lre, b=lim, c=ldt,
             pa=P_LRE, pa1=P_LRE+1, pb=P_LIM, pb1=P_LIM+1, pc=P_LDT, pc1=P_LDT+1))
    def tag_from_epoch():
        A("s_mul_i32 s%d, s%d, 0x9E3779B1\ns_add_u32 s%d, s%d, 0x7F4A7C15" % (sTAG, sEP, sTAG, sTAG))
    def dma_lane_regs(sidx, piece, rho):
        A("""v_lshrrev_b32 v{rho}, 3, v{L}
             v_lshrrev_b32 v{p}, 4, v{L}
             s_and_b32 s23, s{si}, 1
             s_lshl_b32 s23, s23, 2
             v_add_u32 v{p}, s23, v{p}
             v_xor_b32 v{p}, v{p}, v{L}
             v_and_b32 v{p}, 7, v{p}
             v_lshlrev_b32 v{p}, 4, v{p}""".format(rho=rho, p=piece, L=vL, si=sidx))
    def frag_addr(dst4, t0, t1):
        A("""v_and_b32 v{t0}, 31, v{L}
             v_lshrrev_b32 v{t1}, 1, v{t0}
             v_lshrrev_b32 v{d}, 5, v{L}
             v_xor_b32 v{t1}, v{t1}, v{d}
             v_and_b32 v{t1}, 7, v{t1}
             v_lshlrev_b32 v{t1}, 4, v{t1}
             v_lshl_add_u32 v{d}, v{t0}, 7, v{t1}""".format(t0=t0, t1=t1, L=vL, d=dst4))
        for ks in (1, 2, 3):
            A("v_xor_b32 v%d, %d, v%d" % (dst4 + ks, 32 * ks, dst4))

    A(".p2align 8\n.type %s_kernel,@function" % NAME)
    A.label(NAME + "_kernel")
    A.label("L_START")
    if stamps:
        A("v_mov_b32 v%d, 0" % VSTAMP)
        stamp(0)
    A("""s_cmp_ge_u32 s2, 0x100
         s_cbranch_scc1 L_END
         s_load_dwordx2 s[4:5], s[0:1], 72
         s_load_dwordx2 s[8:9], s[0:1], 80
         s_load_dwordx2 s[12:13], s[0:1], 112
         s_load_dwordx16 s[64:79], s[0:1], 0
         s_load_dwordx2 s[80:81], s[0:1], 64
         s_load_dwordx4 s[84:87], s[0:1], 88
         v_lshrrev_b32 v2, 6, v0
         v_and_b32 v1, 63, v0
         s_and_b32 s16, s2, 7
         v_readfirstlane_b32 s3, v2
         s_lshr_b32 s17, s2, 3
         s_and_b32 s18, s17, 3
         s_lshr_b32 s19, s17, 2
         s_mov_b32 s6, 0x200000
         s_mov_b32 s7, 0x20000
         s_mov_b32 s10, 0x180000
         s_mov_b32 s11, 0x20000
         s_mov_b32 s14, %d
         s_mov_b32 s15, 0x20000
         s_getreg_b32 s%d, hwreg(HW_REG_XCC_ID, 0, 4)""" % (WS_SIZE, sXCC))
    A("s_cmp_ge_u32 s3, 8\ns_cbranch_scc0 L_ATT")


    sS = 48
    vXB, vXB2, vWo_, vW2, vXA, vXA2 = 2, 3, 4, 5, 6, 7
    LRE, LIM, LDT = 20, 21, 22
    LAM, L8, MU, NU, RHO, RHO8 = 8, 10, 12, 14, 16, 18
    vLin, vFA8, vCA, vOne, vXWb, vXWw, vCh16, vEb, vGw, vGr, vFG, vXe, vDk, vYw, vYr, vOa = range(144, 160)
    URE, UIM, YR, YACC = 96, 112, 32, 128
    A("s_sub_u32 s%d, s3, 8\ns_setprio 3" % sS)
    dma_lane_regs(sS, vXB, 25)
    A("""v_lshrrev_b32 v26, 4, v{L}
         v_and_b32 v26, 1, v26
         v_lshlrev_b32 v27, 2, v26
         v_xor_b32 v27, v27, v{L}
         v_and_b32 v27, 7, v27
         v_lshlrev_b32 v27, 4, v27
         v_mul_u32_u24 v{w}, 3072, v25
         v_add_u32 v{w}, v{w}, v27
         v_add_u32 v{w2}, {d2}, v{w}
         v_mov_b32 v28, v{xb}
         v_lshl_add_u32 v{xb}, v25, 10, v{xb}
         v_add_u32 v{xb2}, {d1}, v{xb}""".format(xb=vXB, xb2=vXB2, w=vWo_, w2=vW2, L=vL, d1=16384-2048, d2=16*3072-2048))
    sN0, sXO, sWO_, sM = 49, 50, 51, 52
    A("""s_and_b32 s23, s{S}, 1
         s_lshr_b32 s24, s{S}, 1
         s_lshl_b32 s24, s24, 2
         s_add_u32 s{n0}, s23, s24
         s_lshl_b32 s23, s{J}, 2
         s_add_u32 s23, s23, s{TQ}
         s_lshl_b32 s23, s23, 16
         s_lshl_b32 s24, s{n0}, 13
         s_add_u32 s53, s23, s24
         s_mul_i32 s23, s{n0}, 24576
         s_lshl_b32 s24, s{HG}, 7
         s_add_u32 s{wo}, s23, s24
         s_lshl_b32 s{m}, s{n0}, 10
         s_add_u32 s54, s{wo}, 1024
         s_mov_b32 s56, s{m}
         s_add_u32 s57, s{m}, {ring}
         s_mov_b32 s58, 0
         s_waitcnt lgkmcnt(0)""".format(S=sS, n0=sN0, J=sJ, TQ=sTQ, HG=sHG, wo=sWO_, m=sM, ring=L_RING))
    CH = 196608
    A("""s_add_u32 s55, s{J}, s{HG}
         s_and_b32 s55, s55, {rm}
         s_lshl_b32 s30, s55, 7
         s_mul_i32 s31, s55, {ch}
         s_mov_b32 s35, s31""".format(J=sJ, HG=sHG, ch=CH, rm=7 if opts.get("rot", True) else 0))
    def hu_x():
        A("""s_mov_b32 m0, s56
             s_add_u32 s23, s53, s30
             buffer_load_dwordx4 v%d, s[4:7], s23 offen lds
             buffer_load_dwordx4 v%d, s[4:7], s23 offen offset:2048 lds
             s_add_u32 s56, s56, 8192
             s_add_u32 s30, s30, 128
             s_and_b32 s30, s30, 1023""" % (vXB, vXB2))
    def hu_w(step):
        A("""s_mov_b32 m0, s57
             s_add_u32 s23, s54, s31
             buffer_load_dwordx4 v%d, s[8:11], s23 offen lds
             buffer_load_dwordx4 v%d, s[8:11], s23 offen offset:2048 lds
             s_add_u32 s57, s57, 8192""" % (vWo_, vW2))
        if step == 1024:
            A("s_add_u32 s54, s54, 1024")
        else:
            if step != CH: A("s_sub_u32 s54, s54, 1024")
            A("s_add_u32 s31, s31, %d\ns_cmp_eq_u32 s31, %d\ns_cselect_b32 s31, 0, s31" % (CH, 8 * CH))
    hu_x()
    A.label("L_H0")
    hu_w(1024); hu_w(CH - 1024); hu_x()
    A("s_add_u32 s58, s58, 1\ns_cmp_lt_u32 s58, 3\ns_cbranch_scc1 L_H0")
    A("s_load_dword s%d, s[12:13], 0" % sEP)
    param_loads(LRE, LIM, LDT, 25)
    stamp(8)
    A("""v_lshrrev_b32 v25, 3, v{L}
         v_lshrrev_b32 v27, 2, v25
         v_lshlrev_b32 v27, 4, v27
         v_add_u32 v27, v27, v26
         v_and_b32 v25, 1, v25
         v_lshl_add_u32 v27, v25, 3, v27
         v_lshl_add_u32 v{xa}, v27, 10, v28
         v_add_u32 v{xa2}, 2048, v{xa}""".format(L=vL, xa=vXA, xa2=vXA2))
    def csq(d, a):
        A("""v_mul_f32 v25, v{a1}, v{a1}
             v_mul_f32 v26, v{a}, v{a1}
             v_fma_f32 v{d}, v{a}, v{a}, -v25
             v_add_f32 v{d1}, v26, v26""".format(a=a, a1=a+1, d=d, d1=d+1))
    wait(vm=17); stamp(1); bar()
    hu_w(1024); hu_w(CH - 1024); hu_x()
    frag_addr(32, 25, 26)
    A("s_lshl_b32 s23, s%d, 12\ns_add_u32 s23, s23, %d" % (sS, L_URING + 8192))
    for ks in range(4):
        A("v_add_u32 v%d, s23, v%d\nv_add_u32 v%d, %d, v%d" % (36 + ks, 32 + ks, 32 + ks, L_URING, 32 + ks))
    wait(vm=17); bar()
    hu_w(1024); hu_w(CH - 1024); hu_x()
    for r in range(16): A("v_mov_b32 v%d, 0" % (YACC + r))
    A("s_and_b32 s34, s%d, 1" % sS)
    QX, QW, XF, WF, XF2, WF2, ACC = 40, 44, 48, 64, 80, 96, 112
    A("s_lshr_b32 s23, s%d, 1\ns_lshl_b32 s23, s23, 12\ns_sub_u32 s23, s23, %d" % (sS, L_URING))
    for ks in range(4):
        A("v_add_u32 v%d, s23, v%d" % (QX + ks, 32 + ks))
    A("""v_bfe_u32 v25, v{L}, 2, 2
         v_lshrrev_b32 v26, 5, v{L}
         v_lshl_add_u32 v26, v26, 3, v25
         v_lshlrev_b32 v{wa}, 7, v26
         v_bfe_u32 v26, v{L}, 4, 1
         s_lshl_b32 s23, s34, 1
         v_add_u32 v26, s23, v26
         v_and_b32 v25, 2, v25
         v_xor_b32 v26, v26, v25
         v_lshl_add_u32 v{wa}, v26, 5, v{wa}
         v_bfe_u32 v25, v{L}, 1, 1
         v_and_b32 v26, 1, v{L}
         v_lshl_add_u32 v25, v26, 1, v25
         v_lshl_add_u32 v{wa}, v25, 3, v{wa}
         v_add_u32 v{wa}, {base}, v{wa}
         v_lshlrev_b32 v{lin}, 4, v{L}
         s_lshl_b32 s23, s{J}, 2
         s_add_u32 s23, s23, s{TQ}
         s_lshl_b32 s23, s23, 1
         s_lshr_b32 s24, s{S}, 1
         s_add_u32 s32, s23, s24
         s_lshl_b32 s23, s{HG}, 1
         s_add_u32 s33, s23, s34
         s_lshl_b32 s23, s33, 17
         s_lshl_b32 s24, s32, 10
         s_add_u32 s23, s23, s24
         s_add_u32 s88, s23, {q}
         s_add_u32 s89, s88, 65536
         s_lshl_b32 s23, s{J}, 4
         s_add_u32 s23, s23, s33
         s_lshl_b32 s23, s23, 4
         s_and_b32 s24, s32, 7
         s_add_u32 s23, s23, s24
         s_lshl_b32 s23, s23, 2
         s_add_u32 s90, s23, {fq}
         s_add_u32 s91, s90, 32""".format(L=vL, wa=QW, base=L_RING + 4*8192, lin=vLin, J=sJ, TQ=sTQ, S=sS, HG=sHG, q=WS_Q, fq=WS_FQ))
    wait(vm=17); bar()
    hu_w(1024); hu_w(CH - 1024); hu_x()
    A("s_sub_u32 s57, s57, 98304")
    wait(vm=14); bar()
    hu_w(1024); hu_w(CH - 1024); hu_x()
    params(LRE, LIM, LDT, LAM, LAM + 1, 25, 26, 27)
    wait(vm=14); bar()
    hu_w(1024); hu_w(0)
    A("s_mov_b32 s54, s%d" % sWO_)
    hu_w(CH)
    A("""v_and_b32 v25, 7, v{L}
         v_lshlrev_b32 v25, 7, v25
         v_bfe_u32 v26, v{L}, 3, 1
         v_lshl_add_u32 v25, v26, 16, v25
         v_add_u32 v25, s88, v25
         s_lshl_b32 s23, s{J}, 3
         s_add_u32 s23, s23, s{HG}
         s_lshl_b32 s23, s23, 7
         s_add_u32 s24, s23, {fq}
         s_add_u32 s23, s23, {fl}
         v_writelane_b32 v25, s24, 16
         v_writelane_b32 v25, s23, 17
         s_mov_b64 exec, {m}
         buffer_load_dword v162, v25, s[12:15], 0 offen sc1
         s_mov_b64 exec, -1""".format(L=vL, J=sJ, HG=sHG, fq=WS_FQ, fl=WS_FL, m="0x3ffff" if opts.get("qtouch") else "0x30000"))
    csq(L8, LAM); csq(L8, L8); csq(L8, L8); csq(MU, L8); csq(NU, MU)
    wait(vm=15); bar()
    hu_w(CH); hu_w(CH); hu_w(CH)
    csq(RHO, NU); csq(RHO, RHO); csq(RHO8, RHO); csq(RHO8, RHO8); csq(RHO8, RHO8)
    wait(vm=15, lg=0); bar()
    hu_w(CH); hu_w(CH); hu_w(CH)
    tag_from_epoch()
    A("""v_add_f32 v25, -1.0, v{lr}
         v_mul_f32 v26, v{a}, v{a}
         v_fmac_f32 v26, v{b}, v{b}
         v_rcp_f32 v26, v26
         v_mul_f32 v23, v25, v{a}
         v_mul_f32 v24, v{li}, v{a}
         v_add_f32 v26, v26, v26
         v_fmac_f32 v23, v{li}, v{b}
         v_fma_f32 v24, -v25, v{b}, v24
         v_mul_f32 v23, v23, v26
         v_mul_f32 v24, v24, v26
         v_xor_b32 v24, 0x80000000, v24
         s_cmp_lt_u32 s{S}, 2
         s_cbranch_scc1 L_CP0
         v_xor_b32 v26, 0x80000000, v23
         v_mov_b32 v23, v24
         v_mov_b32 v24, v26""".format(lr=LAM, li=LAM+1, a=LRE, b=LIM, S=sS))
    A.label("L_CP0")
    A("""s_lshl_b32 s23, s{J}, 1
         s_and_b32 s24, s{I}, 1
         s_add_u32 s26, s23, s24
         s_lshr_b32 s27, s{I}, 1
         s_lshl_b32 s23, s26, 15
         s_lshl_b32 s24, s27, 6
         s_add_u32 s23, s23, s24
         s_and_b32 s28, s{S}, 1
         s_lshl_b32 s24, s28, 5
         s_add_u32 s23, s23, s24
         v_and_b32 v25, 31, v{L}
         v_lshrrev_b32 v26, 5, v{L}
         v_lshlrev_b32 v27, 4, v26
         v_lshl_add_u32 v27, v25, 10, v27
         v_add_u32 v27, s23, v27
         s_lshr_b32 s29, s{S}, 1
         s_lshl_b32 s23, s27, 1
         s_add_u32 s29, s29, s23
         s_lshl_b32 s23, s29, 14
         s_lshl_b32 s24, s26, 6
         s_add_u32 s23, s23, s24
         s_lshl_b32 s24, s28, 13
         s_add_u32 s23, s23, s24
         v_lshlrev_b32 v28, 12, v26
         v_lshl_add_u32 v28, v25, 1, v28
         v_add_u32 v28, s23, v28
         v_lshlrev_b32 v29, 5, v26
         s_lshl_b32 s24, s28, 6
         v_add_u32 v29, s24, v29""".format(J=sJ, I=sI, S=sS, L=vL))
    wait(vm=15); bar()
    hu_w(CH)
    slot_load(30, 25)
    USLOT = [0, 1, 2, 0, 1, 2, 1, 2]
    A("""s_mov_b32 s40, s{ax}
         s_mov_b32 s41, s{ax1}
         s_mov_b32 s42, 0x200000
         s_mov_b32 s43, 0x20000
         s_cmp_lt_u32 s{S}, 2
         s_cselect_b32 s36, s{br}, s{bi}
         s_cselect_b32 s37, s{br1}, s{bi1}
         s_mov_b32 s38, 0x80000
         s_mov_b32 s39, 0x20000
         s_lshl_b32 s23, s26, 17
         s_lshr_b32 s24, s{S}, 1
         s_lshl_b32 s24, s24, 15
         s_add_u32 s23, s23, s24
         s_lshl_b32 s24, s28, 11
         s_add_u32 s59, s23, s24
         s_lshl_b32 s23, s27, 15
         s_lshl_b32 s24, s28, 13
         s_add_u32 s60, s23, s24
         s_add_u32 s35, s{J}, s27
         s_and_b32 s35, s35, {rm}
         s_lshl_b32 s35, s35, 7""".format(J=sJ, rm=7 if opts.get("rot", True) else 0, ax=P_AX, ax1=P_AX+1, S=sS, br=P_BRE, bi=P_BIM, br1=P_BRE+1, bi1=P_BIM+1))
    if opts.get("utouch", 1):
        A("""v_lshlrev_b32 v25, 7, v{L}
             s_lshl_b32 s23, s27, 15
             s_and_b32 s24, s{I}, 1
             s_lshl_b32 s24, s24, 1
             s_add_u32 s24, s24, s28
             s_lshl_b32 s24, s24, 13
             s_add_u32 s23, s23, s24
             buffer_load_dword v162, v25, s[36:39], s23 offen
             s_lshl_b32 s23, s26, 17
             s_lshl_b32 s24, s27, 2
             s_add_u32 s24, s24, s{S}
             s_lshl_b32 s24, s24, 11
             s_add_u32 s23, s23, s24
             s_mov_b64 exec, 0xffff
             buffer_load_dword v163, v25, s[40:43], s23 offen
             s_mov_b64 exec, -1""".format(L=vL, I=sI, S=sS))
    NT = 2 if opts.get("utouch", 1) else 0
    def udma_parts(c):
        base = L_URING + USLOT[c] * 24576
        f = dict(m=sM, b=vXB, b2=vXB2, xa=vXA, xa2=vXA2)
        return ["""s_add_u32 m0, s{m}, {o}
             s_add_u32 s95, s60, s35
             buffer_load_dwordx4 v{b}, s[36:39], s95 offen lds
             buffer_load_dwordx4 v{b2}, s[36:39], s95 offen offset:2048 lds""".format(o=base, **f),
                """s_add_u32 m0, s{m}, {o}
             s_add_u32 s95, s59, s35
             buffer_load_dwordx4 v{xa}, s[40:43], s95 offen lds
             buffer_load_dwordx4 v{xa2}, s[40:43], s95 offen offset:2048 lds""".format(o=base + 8192, **f),
                """s_add_u32 m0, s{m}, {o}
             s_add_u32 s95, s95, 65536
             buffer_load_dwordx4 v{xa}, s[40:43], s95 offen lds
             buffer_load_dwordx4 v{xa2}, s[40:43], s95 offen offset:2048 lds
             s_add_u32 s35, s35, 128
             s_and_b32 s35, s35, 1023""".format(o=base + 16384, **f)]
    def udma(c):
        for x in udma_parts(c): A(x)
    def qreads(xf, wf, ks, off):
        A("ds_read_b128 %s, v%d offset:%d" % (v(xf + 4*ks, 4), QX + ks, off))
        A("ds_read_b64_tr_b16 %s, v%d offset:%d" % (v(wf + 4*ks, 2), QW, off + 2048*ks))
        A("ds_read_b64_tr_b16 %s, v%d offset:%d" % (v(wf + 4*ks + 2, 2), QW, off + 2048*ks + 512))
    wait(vm=9 + NT); bar()
    sets = ((XF, WF), (XF2, WF2))
    for ks in range(4): qreads(XF, WF, ks, 0)
    for c in range(8):
        xf, wf = sets[c & 1]; xn, wn = sets[(c + 1) & 1]
        if c == 3:
            wait(vm=1 + NT); A("s_barrier")
            if barn[0] is not None: barn[0] += 1
        for ks in range(4):
            wait(lg=9 if c < 7 else 9 - 3*ks)
            A("v_mfma_f32_32x32x16_bf16 %s, %s, %s, %s" % (v(ACC, 16), v(wf + 4*ks, 4), v(xf + 4*ks, 4), "0" if c == 0 and ks == 0 else v(ACC, 16)))
            if c < 7: qreads(xn, wn, ks, 8192*(c + 1))
    bar()
    stamp(9)
    wait(vm=NT)
    slot_eval(30)
    A("v_mov_b32 v25, 0x3eb8aa3b\nv_mov_b32 v26, s%d\ns_nop 1" % sTAG)
    for r in range(16):
        A("v_mul_f32 v%d, v25, v%d" % (ACC + r, ACC + r))
    for q in range(8):
        A("v_cvt_pk_bf16_f32 v%d, v%d, v%d" % (48 + q, ACC + 2*q, ACC + 2*q + 1))
    qst = ["buffer_store_dwordx4 v[48:51], v%d, s[12:15], s88 offen" % vLin, "buffer_store_dwordx4 v[52:55], v%d, s[12:15], s89 offen" % vLin]
    if opts.get("qtouch"): mode_stores(qst)
    else:
        for x in qst: A(x + " sc1")
    A("""v_lshlrev_b32 v25, 2, v{L}
         v_add_u32 v25, {cnt}, v25
         v_mov_b32 v56, 0
         v_writelane_b32 v56, 8, 1
         v_writelane_b32 v56, 8, 2
         v_writelane_b32 v56, 4, 7
         v_writelane_b32 v56, 12, 8
         ds_write_b32 v25, v56""".format(L=vL, cnt=L_CNT))
    wait(vm=0)
    A("s_mov_b64 exec, 1")
    mode_stores(["buffer_store_dword v26, off, s[12:15], s90", "buffer_store_dword v26, off, s[12:15], s91"])
    A("s_mov_b64 exec, -1")
    for e in range(8):
        A("ds_bpermute_b32 v%d, v29, v23 offset:%d" % (64 + e, 4*e))
    wait(lg=0)
    for e in range(8):
        A("ds_bpermute_b32 v%d, v29, v24 offset:%d" % (72 + e, 4*e))
    A("v_mov_b32 v160, v27\nv_mov_b32 v161, v28")
    A("""s_lshl_b32 s23, s{S}, 12
         s_add_u32 s34, s23, {scr}
         v_lshlrev_b32 v{fa8}, 3, v{L}
         v_mov_b32 v{ca}, {cnt}
         v_mov_b32 v{one}, 1
         v_and_b32 v25, 31, v{L}
         v_lshrrev_b32 v26, 5, v{L}
         v_lshlrev_b32 v{xwb}, 3, v25
         v_add_u32 v{xwb}, {xw}, v{xwb}
         s_lshl_b32 s23, s{S}, 8
         v_add_u32 v{xww}, s23, v{xwb}
         s_lshl_b32 s23, s27, 9
         v_lshl_add_u32 v{ch}, v25, 4, s23
         s_sub_u32 s23, s26, 1
         s_lshl_b32 s23, s23, 13
         v_lshlrev_b32 v27, 16, v26
         v_sub_u32 v27, v{ch}, v27
         v_add_u32 v{eb}, s23, v27
         v_lshlrev_b32 v27, 5, v26
         v_lshl_add_u32 v27, v25, 6, v27
         v_add_u32 v{gw}, s34, v27
         v_bfe_u32 v27, v{L}, 2, 2
         v_lshl_add_u32 v27, v26, 3, v27
         v_lshlrev_b32 v27, 6, v27
         v_bfe_u32 v28, v{L}, 4, 1
         v_lshl_add_u32 v27, v28, 5, v27
         v_and_b32 v28, 3, v{L}
         v_lshl_add_u32 v27, v28, 3, v27
         v_add_u32 v{gr}, s34, v27
         v_and_b32 v27, 7, v{L}
         v_lshlrev_b32 v{fg}, 2, v27
         v_xor_b32 v26, v26, v25
         v_and_b32 v26, 7, v26
         v_lshlrev_b32 v26, 4, v26
         v_lshl_add_u32 v26, v25, 7, v26
         v_add_u32 v{yw}, s34, v26
         s_lshl_b32 s23, s{J}, 2
         s_add_u32 s23, s23, s{TQ}
         s_lshl_b32 s23, s23, 1
         s_add_u32 s32, s23, s28
         s_lshl_b32 s23, s{HG}, 1
         s_lshr_b32 s24, s{S}, 1
         s_add_u32 s33, s23, s24
         v_lshrrev_b32 v25, 3, v{L}
         v_and_b32 v26, 7, v{L}
         s_lshl_b32 s23, s32, 15
         s_lshl_b32 s24, s33, 6
         s_add_u32 s23, s23, s24
         v_lshlrev_b32 v27, 10, v25
         v_lshl_add_u32 v27, v26, 3, v27
         v_add_u32 v{xe}, s23, v27
         v_lshl_add_u32 v{dk}, v26, 3, s24
         v_xor_b32 v27, v25, v26
         v_lshlrev_b32 v27, 4, v27
         v_lshl_add_u32 v27, v25, 7, v27
         v_add_u32 v{yr}, s34, v27
         v_lshlrev_b32 v27, 12, v25
         v_lshl_add_u32 v{oa}, v26, 4, v27""".format(S=sS, scr=L_SCR, L=vL, lin=vLin, fa8=vFA8, ca=vCA, cnt=L_CNT, one=vOne, xwb=vXWb, xw=L_XW,
              xww=vXWw, ch=vCh16, eb=vEb, gw=vGw, gr=vGr, fg=vFG, yw=vYw, J=sJ, TQ=sTQ, HG=sHG, xe=vXe, dk=vDk, yr=vYr, oa=vOa))
    def ucompute(c, fill=()):
        o = USLOT[c] * 24576
        fill = list(fill)
        for ks in range(4):
            F = 80
            for w_ in range(3):
                A("ds_read_b128 %s, v%d offset:%d" % (v(F + 4*w_, 4), (36 if w_ == 0 else 32) + ks, o + (4096 if w_ == 2 else 0)))
            if fill: A(fill.pop(0))
            wait(lg=0)
            for im in range(2):
                acc = UIM if im else URE
                A("v_mfma_f32_32x32x16_bf16 %s, %s, %s, %s" % (v(acc, 16), v(F, 4), v(F + 4 + 4*im, 4), "0" if (c == 0 and ks == 0) else v(acc, 16)))
        assert not fill
    def signal(*ps):
        one_lane(["ds_add_u32 v%d, v%d offset:%d" % (vCA, vOne, 4 * p) for p in ps])
    def lds_wait(idx, n, tmp=25):
        l, d = lab("hb"), lab("hd")
        A("s_mov_b32 s%d, 0" % sSPIN)
        A.label(l)
        A("""ds_read_b32 v{t}, v{ca} offset:{o}
             s_add_u32 s{sp}, s{sp}, 1
             s_cmp_gt_u32 s{sp}, {SP}
             s_cbranch_scc1 {d}
             s_waitcnt lgkmcnt(0)
             v_cmp_gt_u32 vcc, {n}, v{t}
             s_nop 1
             s_cbranch_vccnz {l}""".format(t=tmp, ca=vCA, o=4*idx, sp=sSPIN, SP=SPIN, d=d, l=l, n=n))
        A.label(d)
    A("""s_lshr_b32 s23, s{I}, 1
         s_lshl_b32 s23, s23, 9
         s_add_u32 s50, s23, {f}
         s_mov_b64 s[62:63], 0
         s_lshl_b32 s61, s{I}, 17
         s_lshl_b32 s23, s{S}, 12
         s_add_u32 s61, s61, s23
         s_add_u32 s61, s61, {kvg}
         s_mov_b32 s51, s23""".format(I=sI, S=sS, f=WS_FKVG, kvg=WS_KVG))
    def remote(p, dma=True):
        l = lab("rb")
        A("""s_add_u32 s30, s{J}, {p}
             s_and_b32 s30, s30, 7
             s_lshl_b32 s31, s30, 3
             s_mov_b32 s{sp}, 0""".format(J=sJ, p=p, sp=sSPIN))
        A.label(l)
        A("""s_lshr_b64 s[24:25], s[62:63], s31
             s_and_b32 s24, s24, 0xff
             s_cmp_eq_u32 s24, 0xff
             s_cbranch_scc1 {l}g
             buffer_load_dwordx2 v[26:27], v{fa}, s[12:15], s50 offen sc1
             s_add_u32 s{sp}, s{sp}, 1
             s_cmp_gt_u32 s{sp}, {SP}
             s_cbranch_scc1 {l}g
             s_waitcnt vmcnt(0)
             v_cmp_eq_u32 s[62:63], s{TAG}, v26
             v_cmp_eq_u32 vcc, s{TAG}, v27
             s_nop 1
             s_and_b64 s[62:63], s[62:63], vcc
             s_branch {l}""".format(l=l, fa=vFA8, sp=sSPIN, SP=SPIN, TAG=sTAG))
        A.label(l + "g")
        if not dma: return
        A("""s_lshl_b32 s30, s30, 14
             s_add_u32 m0, s51, {dst}
             s_add_u32 s30, s30, s61""".format(dst=16384 * p))
        for k in range(4):
            A("buffer_load_dwordx4 v%d, s[12:15], s30 offen offset:%d sc1 lds" % (vLin, 1024 * k))
    wait(lg=0); bar()
    stamp(2)
    PC = 48
    hb = [0]
    def hbar(vm, *sig):
        hb[0] += 4
        k_ = hb[0] // 4 - 1
        if stamps == "hb": stamp(16 + k_)
        wait(vm=vm)
        if stamps == "hb": stamp(24 + k_)
        signal(*(sig + (11,))); lds_wait(11, hb[0])
        if stamps == "hb": stamp(32 + k_)
    A("""s_lshl_b32 s23, s26, 2
         s_add_u32 s92, s23, s{S}
         s_lshl_b32 s23, s92, 16
         s_lshl_b32 s24, s27, 12
         s_add_u32 s23, s23, s24
         s_add_u32 s93, s23, {gi}
         s_lshl_b32 s23, s92, 6
         s_add_u32 s94, s23, {fg}""".format(S=sS, gi=WS_G, fg=WS_FG))
    if opts.get("ufirst", 1):
        udma(0); udma(1); remote(1); remote(3, False)
        stamp(3)
        udma(2)
        hbar(16);    remote(2); remote(4, False); ucompute(0)
        wait(vm=10); signal(1)
        hbar(10);    ucompute(1, udma_parts(3))
        wait(vm=6);  signal(2)
    else:
        remote(1); udma(0); udma(1); remote(3, False)
        stamp(3)
        wait(vm=12); signal(1)
        remote(2); udma(2); remote(4, False)
        hbar(16);    ucompute(0)
        hbar(6, 2);  ucompute(1, udma_parts(3))
    hbar(6);     ucompute(2, udma_parts(4) + ["""global_load_dwordx4 v[48:51], v160, s[{cr}:{cr1}]
         global_load_dwordx4 v[52:55], v160, s[{ci}:{ci1}]
         global_load_ushort v56, v161, s[{w}:{w1}]
         global_load_ushort v57, v161, s[{w}:{w1}] offset:1024
         global_load_ushort v58, v161, s[{w}:{w1}] offset:2048
         global_load_ushort v59, v161, s[{w}:{w1}] offset:3072
         s_mov_b64 exec, 1
         buffer_load_dword v162, off, s[12:15], s94 sc1
         s_mov_b64 exec, -1""".format(cr=P_CRE, cr1=P_CRE+1, ci=P_CIM, ci1=P_CIM+1, w=P_WO, w1=P_WO+1)])
    hbar(13);    ucompute(3, udma_parts(5))
    remote(5, False)
    hbar(13);    signal(3); ucompute(4)
    wait(vm=6)
    for e in range(8):
        A(("v_lshlrev_b32 v25, 16, v%d" if e % 2 == 0 else "v_and_b32 v25, 0xffff0000, v%d") % (PC + e // 2))
        A(("v_lshlrev_b32 v26, 16, v%d" if e % 2 == 0 else "v_and_b32 v26, 0xffff0000, v%d") % (PC + 4 + e // 2))
        A("v_mul_f32 v%d, v%d, v25\nv_fmac_f32 v%d, v%d, v26" % (64 + e, 64 + e, 64 + e, 72 + e))
    for q in range(4):
        A("v_cvt_pk_bf16_f32 v%d, v%d, v%d" % (PC + q, 64 + 2*q, 65 + 2*q))
    A("""v_lshl_or_b32 v56, v57, 16, v56
         v_lshl_or_b32 v57, v59, 16, v58
         s_lshl_b32 s23, s26, 16
         s_lshl_b32 s24, s27, 2
         s_add_u32 s24, s24, s{S}
         s_lshl_b32 s24, s24, 10
         s_add_u32 s23, s23, s24
         s_add_u32 s23, s23, {c}
         s_lshl_b32 s24, s26, 5
         s_add_u32 s24, s24, s29
         s_lshl_b32 s24, s24, 10
         s_lshl_b32 s25, s28, 3
         s_add_u32 s24, s24, s25
         s_add_u32 s24, s24, {wo}
         buffer_store_dwordx4 v[48:51], v{lin}, s[12:15], s23 offen sc1
         buffer_store_dwordx2 v[56:57], v{lin}, s[12:15], s24 offen sc1""".format(S=sS, c=WS_C, wo=WS_WO, lin=vLin))
    hbar(2);     ucompute(5, udma_parts(6))
    hbar(0)
    A("""s_lshl_b32 s23, s{J}, 5
         s_add_u32 s23, s23, s{I}
         s_lshl_b32 s23, s23, 2
         s_add_u32 s23, s23, s{S}
         s_lshl_b32 s23, s23, 2
         s_add_u32 s23, s23, {f}
         v_mov_b32 v28, s{TAG}""".format(J=sJ, I=sI, S=sS, f=WS_FP, TAG=sTAG))
    one_lane(["buffer_store_dword v28, off, s[12:15], s23 sc1"])
    ucompute(6, udma_parts(7))
    hbar(0);     ucompute(7)
    stamp(10)
    def pstep(dr, di, sr, si, ir, ii):
        A("""v_pk_fma_f32 {dr}, {l}, {sr}, {ir} op_sel_hi:[0,1,1]
             v_pk_fma_f32 {di}, {l}, {si}, {ii} op_sel_hi:[0,1,1]
             v_pk_fma_f32 {dr}, {l}, {si}, {dr} op_sel:[1,0,0] neg_lo:[1,0,0] neg_hi:[1,0,0]
             v_pk_fma_f32 {di}, {l}, {sr}, {di} op_sel:[1,0,0]""".format(dr=v(dr, 2), di=v(di, 2), sr=v(sr, 2), si=v(si, 2), ir=v(ir, 2), ii=v(ii, 2), l=v(LAM, 2)))
    def cacc2(dr, di, p, xr, xi):
        A("""v_fmac_f32 v{dr}, v{p}, v{xr}
             v_fmac_f32 v{di}, v{p}, v{xi}
             v_fma_f32 v{dr}, -v{p1}, v{xi}, v{dr}
             v_fmac_f32 v{di}, v{p1}, v{xr}""".format(dr=dr, di=di, p=p, p1=p+1, xr=xr, xi=xi))
    A("s_nop 7\ns_nop 3")
    pr, pi = URE, UIM
    for k in range(1, 8):
        nr, ni = (40, 42) if k % 2 else (44, 46)
        pstep(nr, ni, pr, pi, URE + 2*k, UIM + 2*k)
        pr, pi = nr, ni
    cacc2(41, 43, L8, 40, 42)
    A("""v_mov_b32 v44, v41
         v_mov_b32 v45, v43
         v_mov_b32 v46, v41
         v_mov_b32 v47, v43
         s_nop 1
         v_permlane32_swap_b32 v44, v46
         v_permlane32_swap_b32 v45, v47""")
    cacc2(46, 47, MU, 44, 45)
    A("ds_write_b64 v%d, v[46:47]" % vXWw)
    wait(lg=0)
    signal(10)
    lds_wait(10, 4)
    WX = 24
    for k in range(4):
        A("ds_read_b64 %s, v%d offset:%d" % (v(WX + 2*k, 2), vXWb, 256 * k))
    A("""s_add_u32 s4, s12, {e}
         s_addc_u32 s5, s13, 0
         s_mov_b32 s6, 0x20000
         s_mov_b32 s7, 0x20000
         s_lshl_b32 s23, s26, 13
         s_lshl_b32 s24, s{S}, 3
         s_lshl_b64 s[24:25], 0xff, s24
         v_mov_b32 v53, s{TAG}
         v_mov_b32 v55, s{TAG}""".format(e=WS_E, S=sS, TAG=sTAG))
    wait(lg=0)
    A("v_mov_b32 v48, v26\nv_mov_b32 v49, v27\nv_mov_b32 v50, v28\nv_mov_b32 v51, v29\nv_mov_b32 v52, v30\nv_mov_b32 v54, v31")
    cacc2(48, 49, NU, 24, 25)
    cacc2(50, 51, NU, 48, 49)
    cacc2(52, 54, NU, 50, 51)
    A("""s_mov_b64 exec, s[24:25]
         buffer_store_dwordx4 v[52:55], v%d, s[4:7], s23 offen sc1
         s_mov_b64 exec, -1""" % vCh16)
    for k in range(6): A("v_mov_b32 v%d, v%d" % (2 + k, WX + k))
    remote(6, False); remote(7, False); signal(4, 5)
    stamp(11)
    A("s_lshl_b32 s28, s%d, 9\ns_add_u32 s28, s28, %d" % (sHG, WS_FP))
    l, d = lab("pp"), lab("pd")
    A("s_mov_b32 s%d, 0" % sSPIN)
    A.label(l)
    A("""buffer_load_dwordx2 v[26:27], v{fa}, s[12:15], s28 offen sc1
         s_add_u32 s{sp}, s{sp}, 1
         s_cmp_gt_u32 s{sp}, {SP}
         s_cbranch_scc1 {d}
         s_waitcnt vmcnt(0)
         v_cmp_ne_u32 s[24:25], s{TAG}, v26
         v_cmp_ne_u32 vcc, s{TAG}, v27
         s_nop 1
         s_or_b64 vcc, vcc, s[24:25]
         s_cbranch_vccnz {l}""".format(fa=vFA8, sp=sSPIN, SP=SPIN, d=d, l=l, TAG=sTAG))
    A.label(d)
    wait(vm=0)
    signal(6)
    EX = 48
    A("v_mov_b32 v80, v%d" % vEb)
    for n in range(1, 8):
        A("v_subrev_u32 v%d, 8192, v%d" % (80 + n, 80 + n - 1))
    def e_loads():
        for n in range(8):
            A("buffer_load_dwordx4 %s, v%d, s[4:7], 0 offen sc1" % (v(EX + 4*n, 4), 80 + n))
    e_loads()
    A("""v_lshlrev_b32 v25, 7, v{L}
         s_lshl_b32 s23, s{HG}, 2
         s_add_u32 s23, s23, s{TQ}
         s_lshl_b32 s23, s23, 2
         s_add_u32 s23, s23, s{S}
         s_lshl_b32 s24, s23, 13
         s_add_u32 s24, s24, {c}
         s_lshl_b32 s23, s23, 12
         s_add_u32 s23, s23, {wo}
         buffer_load_dword v164, v25, s[12:15], s24 offen sc1
         s_mov_b32 exec_hi, 0
         buffer_load_dword v165, v25, s[12:15], s23 offen sc1
         s_lshl_b32 s23, s{J}, 2
         s_add_u32 s23, s23, s{S}
         s_lshl_b32 s24, s23, 16
         s_lshl_b32 s25, s{I}, 10
         s_add_u32 s24, s24, s25
         s_add_u32 s24, s24, {o}
         v_and_b32 v25, 7, v{L}
         v_lshlrev_b32 v25, 7, v25
         v_bfe_u32 v26, v{L}, 3, 1
         v_lshl_add_u32 v25, v26, 15, v25
         v_add_u32 v25, s24, v25
         s_lshl_b32 s23, s23, 8
         s_add_u32 s23, s23, {fo}
         v_writelane_b32 v25, s23, 16
         s_add_u32 s23, s23, 128
         v_writelane_b32 v25, s23, 17
         s_mov_b32 exec_lo, 0x3ffff
         buffer_load_dword v163, v25, s[12:15], 0 offen sc1
         s_mov_b64 exec, -1""".format(L=vL, HG=sHG, TQ=sTQ, S=sS, c=WS_C, wo=WS_WO, J=sJ, I=sI, o=WS_O, fo=WS_FO))
    stamp(4)
    A("s_mov_b32 s%d, 0" % sSPIN)
    wait(vm=3)
    A.label("L_EC")
    A("s_mov_b64 s[30:31], -1")
    for n in range(8):
        A("""v_cmp_eq_u32 s[24:25], s{TAG}, v{t1}
             v_cmp_eq_u32 vcc, s{TAG}, v{t2}
             s_cmp_le_u32 s26, {n}
             s_cselect_b32 s28, -1, 0
             s_cmp_le_u32 s26, {n8}
             s_cselect_b32 s29, -1, 0
             s_and_b64 vcc, vcc, s[24:25]
             s_or_b64 vcc, vcc, s[28:29]
             s_and_b64 s[30:31], s[30:31], vcc""".format(TAG=sTAG, t1=EX+4*n+1, t2=EX+4*n+3, n=n, n8=n+8))
    A("""s_cmp_eq_u64 s[30:31], -1
         s_cbranch_scc1 L_EG
         s_add_u32 s{sp}, s{sp}, 1
         s_cmp_gt_u32 s{sp}, {SP}
         s_cbranch_scc1 L_EG""".format(sp=sSPIN, SP=SPIN))
    e_loads()
    wait(vm=0)
    A("s_branch L_EC")
    A.label("L_EG")
    for n in range(6, -1, -1):
        cacc2(EX + 4*n, EX + 4*n + 2, RHO, EX + 4*n + 4, EX + 4*n + 6)
    A("""v_mov_b32 v30, v{r}
         v_mov_b32 v31, v{i}
         s_nop 1
         v_permlane32_swap_b32 v30, v{r}
         v_permlane32_swap_b32 v31, v{i}""".format(r=EX, i=EX+2))
    cacc2(30, 31, RHO8, EX, EX + 2)
    for k in range(3):
        A("s_cmp_le_u32 s%d, %d\ns_cbranch_scc1 L_PG" % (sS, k))
        cacc2(2 + 2*k, 3 + 2*k, NU, 30, 31)
        A("v_mov_b32 v30, v%d\nv_mov_b32 v31, v%d" % (2 + 2*k, 3 + 2*k))
    A.label("L_PG")
    A("s_mov_b32 exec_lo, 0")
    cacc2(44, 45, MU, 30, 31)
    A("v_mov_b32 v30, v44\nv_mov_b32 v31, v45\ns_mov_b32 exec_lo, -1")
    cacc2(40, 42, L8, 30, 31)
    A("v_mov_b32 v24, v30\nv_mov_b32 v25, v40\nv_mov_b32 v26, v31\nv_mov_b32 v27, v42")
    pr, pi = 24, 26
    for k in range(8):
        pstep(URE + 2*k, UIM + 2*k, pr, pi, URE + 2*k, UIM + 2*k)
        pr, pi = URE + 2*k, UIM + 2*k
    for base, dst in ((URE, 48), (UIM, 56)):
        for k in range(8):
            r0 = 4 * (k & 3) + (k >> 2)
            A("v_cvt_pk_bf16_f32 v%d, v%d, v%d" % (dst + k, base + r0, base + r0 + 2))
    A("""ds_write_b128 v{g}, v[48:51]
         ds_write_b128 v{g}, v[52:55] offset:16
         ds_write_b128 v{g}, v[56:59] offset:2048
         ds_write_b128 v{g}, v[60:63] offset:2064
         s_mov_b32 s29, s93
         s_lshl_b32 s23, s92, 4
         s_add_u32 s23, s23, s27
         s_lshl_b32 s23, s23, 2
         s_add_u32 s30, s23, {fg}
         s_lshr_b32 s25, s{S}, 1
         s_lshl_b32 s28, s32, 6
         s_lshl_b32 s24, s25, 5
         s_add_u32 s28, s28, s24
         s_add_u32 s28, s28, {fg}
         s_lshl_b32 s24, s25, 15
         s_lshl_b32 s60, s32, 16
         s_add_u32 s60, s60, s24
         s_add_u32 s60, s60, {gi}
         s_lshl_b32 s59, s{HG}, 17
         s_add_u32 s59, s59, s24
         s_add_u32 s59, s59, {c}
         s_lshl_b32 s57, s{HG}, 12
         v_mov_b32 v29, s{TAG}""".format(g=vGw, S=sS, gi=WS_G, fg=WS_FG, c=WS_C, TAG=sTAG, HG=sHG))
    wait(lg=0)
    for f in range(4):
        for rd in range(2):
            A("ds_read_b64_tr_b16 %s, v%d offset:%d" % (v(64 + 4*f + 2*rd, 2), vGr, f * 1024 + rd * 256))
    wait(lg=0)
    if opts.get("gst", 1):
        for f in range(4): A("buffer_store_dwordx4 %s, v%d, s[12:15], s29 offen offset:%d sc1" % (v(64 + 4*f, 4), vLin, 1024*f))
    else:
        mode_stores(["buffer_store_dwordx4 %s, v%d, s[12:15], s29 offen offset:%d" % (v(64 + 4*f, 4), vLin, 1024*f) for f in range(4)])
    wait(vm=0)
    A("s_mov_b64 exec, 1")
    mode_stores(["buffer_store_dword v29, off, s[12:15], s30"])
    A("s_mov_b64 exec, -1")
    stamp(5)
    keep = (vLin, vCA, vOne, vXe, vDk, vYw, vYr, vOa)
    yLin, yCA, yOne, yXe, yDk, yYw, yYr, yOa = ynew = (16, 17, 18, 19, 20, 21, 30, 31)
    for n_, r_ in zip(ynew, keep): A("v_mov_b32 v%d, v%d" % (n_, r_))
    poll_all(vFG, "s28", 25)
    stamp(6)
    vCA, vOne = yCA, yOne
    YA = 96
    A("s_setprio %d" % opts.get("yprio", 0))
    ND = 4
    def yload(k, w_):
        A("buffer_load_dwordx4 %s, v%d, s[12:15], s%d offen offset:%d sc1" % (v(YR + 12*k + 4*w_, 4), yLin, 53 + w_, 1024 * k))
    def ymm(k, dt, z=False):
        acc = v(YA + 16*dt, 16)
        A("v_mfma_f32_32x32x16_bf16 %s, %s, %s, %s" % (acc, v(YR + 12*k + 8*dt, 4), v(YR + 12*k + 4, 4), "0" if z else acc))
    def yadv():
        A("""s_add_u32 s57, s57, 4096
             s_and_b32 s57, s57, 0x7fff
             s_add_u32 s53, s59, s57
             s_add_u32 s54, s60, s57
             s_add_u32 s55, s53, 65536""")
    def ygroup(z, more, extra=0):
        for k in range(ND):
            base = (9 if more else 9 - 3*k) + extra
            wait(vm=base + 1); ymm(k, 0, z and k == 0)
            if more: yload(k, 0)
            wait(vm=base + (1 if more else 0)); ymm(k, 1, z and k == 0)
            if more: yload(k, 1); yload(k, 2)
    yadv()
    for k in range(ND):
        for w_ in range(3): yload(k, w_)
    yadv(); ygroup(True, True)
    A("s_mov_b32 s58, 0")
    A.label("L_Y")
    yadv(); ygroup(False, True)
    A("s_add_u32 s58, s58, 1\ns_cmp_lt_u32 s58, 6\ns_cbranch_scc1 L_Y")
    A("""global_load_dwordx2 v[6:7], v{dk}, s[{pd}:{pd1}]
         s_mov_b32 s23, 8192
         s_mov_b32 s24, 16384
         s_mov_b32 s25, 24576
         buffer_load_dwordx2 v[8:9], v{xe}, s[40:43], 0 offen
         buffer_load_dwordx2 v[10:11], v{xe}, s[40:43], s23 offen
         buffer_load_dwordx2 v[12:13], v{xe}, s[40:43], s24 offen
         buffer_load_dwordx2 v[14:15], v{xe}, s[40:43], s25 offen""".format(dk=yDk, pd=P_DSK, pd1=P_DSK+1, xe=yXe))
    ygroup(False, False, 5)
    A("""s_setprio 3
         s_mov_b32 s36, s{po}
         s_mov_b32 s37, s{po1}
         s_mov_b32 s38, 0x800000
         s_mov_b32 s39, 0x20000
         v_add_u32 v24, s34, v{lin}
         v_xor_b32 v25, 8192, v24
         s_cmp_lt_u32 s{S}, 2
         s_cbranch_scc1 L_YK
         s_nop 3""".format(po=P_OUT, po1=P_OUT+1, lin=yLin, S=sS))
    for g in range(4): A("ds_write_b128 v24, %s offset:%d" % (v(YA + 4*g, 4), 1024*g))
    for r in range(16): A("v_mov_b32 v%d, v%d" % (YA + r, YA + 16 + r))
    A("s_branch L_YS")
    A.label("L_YK")
    A("s_nop 3")
    for g in range(4): A("ds_write_b128 v24, %s offset:%d" % (v(YA + 16 + 4*g, 4), 1024*g))
    A.label("L_YS")
    wait(lg=0); signal(12); lds_wait(12, 4, 28)
    for g in range(4): A("ds_read_b128 %s, v25 offset:%d" % (v(YA + 16 + 4*g, 4), 1024*g))
    A("""v_xor_b32 v25, 32, v{yw}
         v_xor_b32 v26, 64, v{yw}
         v_xor_b32 v27, 96, v{yw}""".format(yw=yYw))
    wait(lg=0); signal(13)
    for r in range(16): A("v_add_f32 v%d, v%d, v%d" % (YA + r, YA + r, YA + 16 + r))
    lds_wait(13, 4, 28)
    for g in range(4):
        A("ds_write_b128 v%d, %s" % (yYw if g == 0 else 24 + g, v(YA + 4*g, 4)))
    wait(lg=0)
    A("""s_lshl_b32 s23, s32, 17
         s_lshl_b32 s24, s33, 7
         s_add_u32 s23, s23, s24""")
    vYr, vOa = yYr, yOa
    wait(vm=0)
    for n in range(4):
        A("ds_read_b128 %s, v%d offset:%d" % (v(32 + 4*n, 4), vYr, 1024*n))
    A("""v_lshlrev_b32 v22, 16, v6
         v_and_b32 v23, 0xffff0000, v6
         v_lshlrev_b32 v24, 16, v7
         v_and_b32 v25, 0xffff0000, v7""")
    for n in range(4):
        x = 8 + 2*n
        A("""v_lshlrev_b32 v26, 16, v{x}
             v_and_b32 v27, 0xffff0000, v{x}
             v_lshlrev_b32 v28, 16, v{x1}
             v_and_b32 v29, 0xffff0000, v{x1}""".format(x=x, x1=x+1))
        wait(lg=3 - n)
        for e in range(4):
            A("v_fmac_f32 v%d, v%d, v%d" % (32 + 4*n + e, 26 + e, 22 + e))
        A("buffer_store_dwordx4 %s, v%d, s[36:39], s23 offen %s" % (v(32 + 4*n, 4), vOa, opts.get("ystore", "sc1")))
        if n < 3: A("s_add_u32 s23, s23, 32768")
    stamp(7)
    if stamps != "pad": stamp_out()
    A("s_endpgm")

    A.label("L_ATT")
    barn[0] = None
    vXa, vWa, vWc = 2, 6, 7
    XF, WF, XF2, WF2, ACC = 16, 32, 48, 64, 80
    sP, sTT = 48, 49
    A("""s_and_b32 s{p}, s3, 1
         s_lshr_b32 s{tt}, s3, 1
         s_and_b32 s{tt}, s{tt}, 1
         s_mov_b32 s{vm}, 0xffff
         s_mov_b32 s{vm1}, 0xffff""".format(p=sP, tt=sTT, vm=sVM, vm1=sVM+1))
    if opts.get("codepf", True):
        A("""s_cmp_eq_u32 s3, 6
             s_cbranch_scc0 L_NOPF
             s_getpc_b64 s[24:25]
             L_PC:
             s_sub_u32 s24, s24, L_PC-L_START
             s_subb_u32 s25, s25, 0
             v_lshlrev_b32 v8, 7, v1
             global_load_dword v160, v8, s[24:25]
             v_add_u32 v8, 8192, v8
             global_load_dword v161, v8, s[24:25]
             v_add_u32 v8, 8192, v8
             v_min_u32 v8, L_CODE_END-L_START-4, v8
             global_load_dword v162, v8, s[24:25]""")
        A.label("L_NOPF")
    frag_addr(vXa, 8, 9)
    A("s_lshl_b32 s23, s%d, 12" % sTT)
    for ks in range(4):
        A("v_add_u32 v%d, s23, v%d" % (vXa + ks, vXa + ks))
    A("""v_bfe_u32 v8, v{L}, 2, 2
         v_lshrrev_b32 v9, 5, v{L}
         v_lshl_add_u32 v9, v9, 3, v8
         v_lshlrev_b32 v{wa}, 7, v9
         v_bfe_u32 v9, v{L}, 4, 1
         s_lshl_b32 s23, s{p}, 1
         v_add_u32 v9, s23, v9
         v_and_b32 v8, 2, v8
         v_xor_b32 v9, v9, v8
         v_lshl_add_u32 v{wa}, v9, 5, v{wa}
         v_and_b32 v8, 3, v{L}
         s_waitcnt lgkmcnt(0)
         s_load_dword s{ep}, s[12:13], 0""".format(L=vL, wa=vWa, p=sP, ep=sEP))
    for r in range(16): A("v_mov_b32 v%d, 0" % (ACC + r))
    A("""s_lshl_b32 s23, s{J}, 2
         s_add_u32 s23, s23, s{TQ}
         s_lshl_b32 s23, s23, 1
         s_add_u32 s51, s23, s{tt}
         s_lshl_b32 s23, s{HG}, 1
         s_add_u32 s61, s23, s{p}
         s_lshl_b32 s52, s61, 18
         s_lshl_b32 s24, s51, 11
         s_add_u32 s50, s52, s24
         s_lshl_b32 s23, s{TQ}, 1
         s_lshr_b32 s24, s3, 2
         s_add_u32 s23, s23, s24
         s_lshl_b32 s23, s23, 1
         s_add_u32 s23, s23, s{tt}
         s_lshl_b32 s23, s23, 2
         s_lshl_b32 s24, s{J}, 4
         s_add_u32 s24, s24, s61
         s_lshl_b32 s24, s24, 6
         s_add_u32 s59, s24, s23
         s_add_u32 s59, s59, {fl}
         s_lshl_b32 s24, s61, 3
         s_add_u32 s24, s24, s{J}
         s_lshl_b32 s24, s24, 6
         s_add_u32 s60, s24, s23
         s_add_u32 s60, s60, {fg}
         v_lshlrev_b32 v11, 4, v{L}
         s_waitcnt lgkmcnt(0)""".format(J=sJ, TQ=sTQ, tt=sTT, HG=sHG, p=sP, fl=WS_FL, fg=WS_FKVG, L=vL))
    tag_from_epoch()
    A("v_mov_b32 v10, s%d" % sTAG)
    A("s_cmp_ge_u32 s3, 4\ns_cbranch_scc1 L_VPRE")
    A("""v_lshrrev_b32 v9, 1, v8
         v_lshlrev_b32 v8, 1, v8
         v_and_b32 v8, 2, v8
         v_or_b32 v9, v9, v8
         v_lshl_add_u32 v{wa}, v9, 3, v{wa}""".format(wa=vWa))
    def reads(xf, wf, ks, xoff, woff):
        A("ds_read_b128 %s, v%d offset:%d" % (v(xf + 4*ks, 4), vXa + ks, xoff))
        A("ds_read_b64_tr_b16 %s, v%d offset:%d" % (v(wf + 4*ks, 2), vWc, woff + 2048*ks))
        A("ds_read_b64_tr_b16 %s, v%d offset:%d" % (v(wf + 4*ks + 2, 2), vWc, woff + 2048*ks + 512))
    def kv_loop(lbl, is_k):
        A("s_mov_b32 s58, 0\ns_mov_b32 s56, %d" % (L_RING + (0 if is_k else 8192)))
        A.label(lbl)
        bar()
        A("v_add_u32 v%d, s56, v%d" % (vWc, vWa))
        for ks in range(4): reads(XF, WF, ks, 0, 0)
        A("""s_add_u32 s56, s56, 16384
             s_cmp_ge_u32 s56, 163840
             s_cselect_b32 s23, 98304, 0
             s_sub_u32 s56, s56, s23""")
        for ks in range(4):
            wait(lg=9 - 3*ks)
            a_, b_ = (WF, XF) if is_k else (XF, WF)
            A("v_mfma_f32_32x32x16_bf16 %s, %s, %s, %s" % (v(ACC, 16), v(a_ + 4*ks, 4), v(b_ + 4*ks, 4), v(ACC, 16)))
            A("v_add_u32 v%d, 8192, v%d" % (vXa + ks, vXa + ks))
        A("s_add_u32 s58, s58, 1\ns_cmp_lt_u32 s58, 8\ns_cbranch_scc1 %s" % lbl)
    def flag(soff, mode):
        A("s_mov_b64 exec, 1")
        if mode: mode_stores(["buffer_store_dword v10, off, s[12:15], %s" % x for x in soff])
        else:
            for x in soff: A("buffer_store_dword v10, off, s[12:15], %s sc1" % x)
        A("s_mov_b64 exec, -1")
    PK = 96
    A("""v_mov_b32 v14, v11
         s_add_u32 s53, s50, {g}
         s_add_u32 s54, s53, 131072""".format(g=WS_KVG))
    kv_loop("L_K", True)
    A("s_branch L_KVE")

    A.label("L_VPRE")
    A("v_lshl_add_u32 v%d, v8, 3, v%d" % (vWa, vWa))
    A("s_cmp_eq_u32 s3, 7\ns_cbranch_scc0 L_VP3")
    A("""v_mov_b32 v100, s{TAG}
         v_mov_b32 v101, s{X}
         s_lshl_b32 s23, s{J}, 5
         s_add_u32 s23, s23, s{I}
         s_lshl_b32 s23, s23, 3
         s_add_u32 s23, s23, {x}""".format(TAG=sTAG, X=sXCC, J=sJ, I=sI, x=WS_XCC))
    one_lane(["buffer_store_dwordx2 v[100:101], off, s[12:15], s23 sc1"])
    A.label("L_VP3")
    A("""v_bfe_u32 v14, v{L}, 4, 1
         v_lshlrev_b32 v14, 17, v14
         v_lshrrev_b32 v9, 5, v{L}
         v_lshl_add_u32 v14, v9, 9, v14
         v_and_b32 v9, 15, v{L}
         v_lshl_add_u32 v14, v9, 4, v14
         s_add_u32 s53, s50, {g}
         s_add_u32 s54, s53, 256""".format(L=vL, g=WS_KVG + 1024))
    kv_loop("L_V", False)
    A.label("L_KVE")
    bar()
    stamp(1)
    slot_load(12, 8)
    A("""v_and_b32 v15, 15, v{L}
         v_lshlrev_b32 v15, 2, v15
         s_lshl_b32 s30, s3, 11
         s_nop 0""".format(L=vL))
    for q in range(8):
        A("v_cvt_pk_bf16_f32 v%d, v%d, v%d" % (PK + q, ACC + 2*q, ACC + 2*q + 1))
    A("""buffer_store_dwordx4 v[96:99], v14, s[12:15], s53 offen sc1
         buffer_store_dwordx4 v[100:103], v14, s[12:15], s54 offen sc1""")
    A("""s_lshr_b32 s24, s{I}, 1
         s_lshl_b32 s23, s{J}, 4
         s_add_u32 s23, s23, s24
         s_lshl_b32 s23, s23, 6
         s_add_u32 s28, s23, {fl}
         s_lshl_b32 s23, s24, 3
         s_add_u32 s23, s23, s{J}
         s_lshl_b32 s23, s23, 6
         s_add_u32 s31, s23, {fg}
         s_lshl_b32 s23, s{I}, 17
         s_lshl_b32 s24, s{J}, 14
         s_add_u32 s23, s23, s24
         s_add_u32 s23, s23, s30
         s_add_u32 s29, s23, {kvg}""".format(I=sI, J=sJ, fl=WS_FL, fg=WS_FKVG, kvg=WS_KVG))
    bar()
    bar()
    stamp(2)
    wait(vm=0)
    one_lane(["buffer_store_dword v10, off, s[12:15], s59"])
    slot_eval(12)
    A("s_cmp_eq_u32 s%d, 0\ns_cbranch_scc0 L_KF\ns_mov_b32 s28, s31" % sFAST)
    one_lane(["buffer_store_dword v10, off, s[12:15], s60 sc1"])
    A.label("L_KF")
    poll_all(15, "s28", 9)
    A("""s_mov_b32 m0, s30
         s_nop 0
         buffer_load_dwordx4 v11, s[12:15], s29 offen sc1 lds
         buffer_load_dwordx4 v11, s[12:15], s29 offen offset:1024 sc1 lds""")
    if opts.get("gearly", 1): one_lane(["buffer_store_dword v10, off, s[12:15], s60 sc1"])
    stamp(8)

    A.label("L_QLD")
    vKA, vCN, vCA2, Q, K, V0, V1, P, S0, S1, O = 2, 3, 28, 4, 8, 12, 16, 20, 32, 48, 64
    WOF, OF, WACC = 80, 16, 48
    A("""s_lshl_b32 s24, s{J}, 3
         s_add_u32 s50, s24, s3
         s_lshl_b32 s23, s{J}, 5
         s_add_u32 s23, s23, s{I}
         s_lshl_b32 s23, s23, 3
         s_add_u32 s23, s23, s3
         s_lshl_b32 s23, s23, 2
         s_add_u32 s28, s23, {fq}
         s_lshl_b32 s23, s{I}, 6
         s_add_u32 s23, s23, s50
         s_lshl_b32 s23, s23, 10
         s_add_u32 s29, s23, {q}
         v_mov_b32 v{ka}, v11
         v_mov_b32 v144, v11
         v_mov_b32 v3, 0
         s_lshr_b32 s52, s3, 1
         s_lshl_b32 s23, s{HG}, 3
         s_add_u32 s23, s23, s52
         s_lshl_b32 s23, s23, 13
         s_add_u32 s53, s23, {wo}
         s_lshl_b32 s23, s{I}, 17
         s_add_u32 s23, s23, s30
         s_add_u32 s62, s23, {kvg}
         v_mov_b32 v145, 1""".format(I=sI, J=sJ, q=WS_Q, fq=WS_FQ, ka=vKA, HG=sHG, wo=WS_WO, kvg=WS_KVG))
    poll_all(3, "s28", 29)
    A("buffer_load_dwordx4 %s, v144, s[12:15], s29 offen sc1" % v(Q, 4))
    if not opts.get("gearly", 1): one_lane(["buffer_store_dword v10, off, s[12:15], s60 sc1"])
    stamp(9)
    A("v_mov_b32 v%d, %d" % (vCA2, L_CNT + 4))
    if opts.get("onerow", True):
        A("""v_and_b32 v29, 31, v{L}
             v_cmp_eq_u32 vcc, 16, v29
             v_mov_b32 v29, 0x3f803f80
             s_nop 0""".format(L=vL))
        for r in range(8): A("v_cndmask_b32 v%d, 0, v29, vcc" % (V0 + r))
    else:
        for r in range(8): A("v_mov_b32 v%d, 0x3f803f80" % (V0 + r))
    for r in range(16): A("v_mov_b32 v%d, 0" % (O + r))
    def vreads(off):
        A("""s_mov_b64 exec, s[{m}:{m1}]
             ds_read_b128 {a}, v{ka} offset:{o0}
             ds_read_b128 {b}, v{ka} offset:{o1}
             s_mov_b64 exec, -1""".format(m=sVM, m1=sVM+1, a=v(V0, 4), b=v(V1, 4), ka=vKA, o0=off + 1024, o1=off + 1280))
    HI = opts.get("hi", 6.5)
    if HI:
        A("s_cmp_ge_u32 s3, 4\ns_cbranch_scc0 L_PR\ns_setprio 1")
        A.label("L_PR")
    wait(vm=0 if opts.get("gearly", 1) else 1); bar()
    A("ds_read_b128 %s, v%d" % (v(K, 4), vKA))
    wait(lg=0)
    stamp(3); cstamp(14)
    A("v_mfma_f32_32x32x16_bf16 %s, %s, %s, 0" % (v(S0, 16), v(K, 4), v(Q, 4)))
    A("ds_read_b128 %s, v%d offset:2048" % (v(K, 4), vKA))
    vreads(0)
    A("s_mov_b32 s58, 0\ns_nop 7")
    A("v_exp_f32 v%d, v%d\nv_exp_f32 v%d, v%d" % (S0, S0, S0 + 1, S0 + 1))
    A(".p2align 6")
    A.label("L_A")
    def prio(x, nm):
        A("s_cmp_ge_u32 s3, 4\ns_cbranch_scc1 %s\ns_setprio %d" % (nm, x))
        A.label(nm)
    for t in range(8):
        S, N = (S0, S1) if t % 2 == 0 else (S1, S0)
        if HI and t == 0: prio(2, "L_PA")
        if t == 1:
            A("s_cmp_lg_u32 s58, 0\ns_cbranch_scc1 L_DM")
            A.label("L_DR")
        if HI and t == int(HI) and HI == int(HI): prio(0, "L_PB")
        for e in range(2, 8): A("v_exp_f32 v%d, v%d" % (S + e, S + e))
        wait(lg=0)
        A("v_mfma_f32_32x32x16_bf16 %s, %s, %s, 0" % (v(N, 16), v(K, 4), v(Q, 4)))
        for q in range(4): A("v_cvt_pk_bf16_f32 v%d, v%d, v%d" % (P + q, S + 2*q, S + 2*q + 1))
        for e in (8, 9): A("v_exp_f32 v%d, v%d" % (S + e, S + e))
        A("v_mfma_f32_32x32x16_bf16 %s, %s, %s, %s" % (v(O, 16), v(V0, 4), v(P, 4), v(O, 16)))
        if HI and t == int(HI) and HI != int(HI): prio(0, "L_PB")
        for e in range(10, 16): A("v_exp_f32 v%d, v%d" % (S + e, S + e))
        if t == 6:
            A("v_readfirstlane_b32 s23, v%d" % vCN)
        for q in range(4, 8): A("v_cvt_pk_bf16_f32 v%d, v%d, v%d" % (P + q, S + 2*q, S + 2*q + 1))
        for e in (0, 1): A("v_exp_f32 v%d, v%d" % (N + e, N + e))
        A("v_mfma_f32_32x32x16_bf16 %s, %s, %s, %s" % (v(O, 16), v(V1, 4), v(P + 4, 4), v(O, 16)))
        if t == 6:
            A("s_cmp_lt_u32 s23, 12\ns_cbranch_scc1 L_AW")
            A.label("L_AR")
            A("s_cmp_ge_u32 s58, 6\ns_cbranch_scc1 L_WP")
            A.label("L_WR")
        A("ds_read_b128 %s, v%d offset:%d" % (v(K, 4), vKA, 2048 * (t + 2)))
        if t == 5:
            A("ds_read_b32 v%d, v%d" % (vCN, vCA2))
        vreads(2048 * (t + 1))
    A("""v_add_u32 v{ka}, 16384, v{ka}
         v_add_u32 v{ca}, 4, v{ca}
         s_add_u32 s58, s58, 1
         s_cmp_lt_u32 s58, 8
         s_cbranch_scc1 L_A""".format(ka=vKA, ca=vCA2))
    stamp(4); cstamp(15)
    def rowsum():
        if opts.get("onerow", True):
            A("""v_mov_b32 v30, v{l}
                 s_nop 1
                 v_permlane32_swap_b32 v{l}, v30""".format(l=O + 8))
    A("""s_setprio 2
         s_lshl_b32 s23, s50, 5
         s_add_u32 s51, s23, s{I}
         s_lshl_b32 s23, s51, 10
         s_add_u32 s56, s23, {o}
         s_mov_b32 s23, 0x33800000
         s_mov_b32 s24, 0x53800000
         s_mov_b32 s25, 0x7f800000
         s_nop 1""".format(I=sI, o=WS_O))
    rowsum()
    A("""v_max3_f32 v8, |v{o0}|, |v{o1}|, |v{o2}|
         v_max3_f32 v9, |v{o3}|, |v{o4}|, |v{o5}|
         v_max3_f32 v8, |v{o6}|, |v{o7}|, v8
         v_cmp_le_f32 s[26:27], s23, v{l}
         v_cmp_ge_f32 s[28:29], s24, v{l}
         v_max_f32 v8, v8, v9
         v_add_f32 v9, v{o0}, v{o1}
         v_add_f32 v10, v{o2}, v{o3}
         v_add_f32 v11, v{o4}, v{o5}
         v_add_f32 v29, v{o6}, v{o7}
         v_add_f32 v9, v9, v10
         v_add_f32 v11, v11, v29
         v_cmp_gt_f32 s[30:31], s25, v8
         v_cmp_o_f32 vcc, v9, v11
         s_and_b64 s[26:27], s[26:27], s[28:29]
         s_and_b64 s[30:31], s[30:31], vcc
         s_and_b64 s[26:27], s[26:27], s[30:31]
         s_cmp_eq_u64 s[26:27], -1
         s_cbranch_scc0 L_FB""".format(o0=O, o1=O+1, o2=O+2, o3=O+3, o4=O+4, o5=O+5, o6=O+6, o7=O+7, l=O+8))
    A.label("L_FBR")
    A("v_rcp_f32 v29, v%d\ns_nop 0" % (O + 8))
    for r in range(8): A("v_mul_f32 v%d, v%d, v29" % (O + r, O + r))
    for q in range(4): A("v_cvt_pk_bf16_f32 v%d, v%d, v%d" % (8 + q, O + 2*q, O + 2*q + 1))
    mode_stores(["buffer_store_dwordx4 v[8:11], v144, s[12:15], s56 offen"])
    A("""s_lshl_b32 s23, s{J}, 2
         s_add_u32 s23, s23, s{TQ}
         s_lshl_b32 s23, s23, 1
         s_add_u32 s23, s23, s{p}
         s_lshl_b32 s23, s23, 2
         s_add_u32 s23, s23, s52
         s_lshl_b32 s54, s23, 13
         s_add_u32 s54, s54, {o}
         s_add_u32 s57, s54, 4096
         s_lshl_b32 s55, s23, 5
         s_add_u32 s55, s55, {fo}
         s_lshl_b32 s26, s51, 2
         s_add_u32 s26, s26, {fo}
         v_mov_b32 v10, s{TAG}
         v_and_b32 v3, 7, v{L}
         v_lshlrev_b32 v3, 2, v3""".format(L=vL, J=sJ, TQ=sTQ, p=sP, o=WS_O, fo=WS_FO, TAG=sTAG).replace("v10", "v145"))
    wait(vm=0)
    A("s_mov_b64 exec, 1")
    mode_stores(["buffer_store_dword v145, off, s[12:15], s26"])
    A("s_mov_b64 exec, -1")
    stamp(5)
    A("""s_lshl_b32 s23, s3, 13
         v_and_b32 v4, 31, v{L}
         v_lshrrev_b32 v5, 5, v{L}
         v_xor_b32 v5, v5, v4
         v_and_b32 v5, 7, v5
         v_lshlrev_b32 v5, 4, v5
         v_lshl_add_u32 v4, v4, 7, v5
         v_add_u32 v4, s23, v4
         v_xor_b32 v5, 32, v4
         v_xor_b32 v6, 64, v4
         v_xor_b32 v7, 96, v4
         v_lshrrev_b32 v12, 4, v{L}
         v_and_b32 v13, 7, v{L}
         v_xor_b32 v13, v13, v12
         v_lshlrev_b32 v13, 4, v13
         v_lshl_add_u32 v13, v12, 7, v13
         v_bfe_u32 v14, v{L}, 3, 1
         v_lshl_add_u32 v13, v14, 12, v13
         s_lshr_b32 s23, s3, 2
         s_lshl_b32 s23, s23, 13
         s_and_b32 s24, s3, 3
         s_lshl_b32 s24, s24, 10
         s_add_u32 s23, s23, s24
         v_add_u32 v13, s23, v13
         v_xor_b32 v14, 64, v13
         v_and_b32 v15, 15, v{L}
         v_lshlrev_b32 v15, 4, v15
         v_lshl_add_u32 v15, v12, 12, v15
         s_lshl_b32 s23, s{J}, 2
         s_add_u32 s23, s23, s{TQ}
         s_lshl_b32 s23, s23, 3
         s_add_u32 s23, s23, s3
         s_lshl_b32 s23, s23, 15
         s_lshl_b32 s24, s{HG}, 8
         s_add_u32 s23, s23, s24
         s_add_u32 s59, s23, 2048
         s_add_u32 s60, s59, 16384
         s_mov_b32 s36, s{po}
         s_mov_b32 s37, s{po1}
         s_mov_b32 s38, 0x800000
         s_mov_b32 s39, 0x20000""".format(L=vL, J=sJ, TQ=sTQ, HG=sHG, po=P_OUT, po1=P_OUT+1))
    poll_all(3, "s55", 29)
    stamp(6)
    for k in range(8):
        A("buffer_load_dwordx4 %s, v144, s[12:15], s%d offen offset:%d sc1" % (v(OF + 4*k, 4), 54 if k < 4 else 57, 1024 * (k & 3)))
    for k in range(8):
        wait(vm=7 - k)
        for nt in range(2):
            A("v_mfma_f32_32x32x16_bf16 %s, %s, %s, %s" % (v(WACC + 16*nt, 16), v(WOF + 32*nt + 4*k, 4), v(OF + 4*k, 4), "0" if k == 0 else v(WACC + 16*nt, 16)))
    bar()
    A("s_nop 9")
    for nt in range(2):
        for g in range(4):
            A("ds_write_b128 v%d, %s offset:%d" % (4 + g, v(WACC + 16*nt + 4*g, 4), 4096*nt))
    wait(lg=0); bar()
    for hh in range(2):
        for kq in range(4):
            A("ds_read_b128 %s, v%d offset:%d" % (v(16 + 16*hh + 4*kq, 4), 13 + hh, 16384*kq + 512*hh))
    for hh in range(2):
        b0 = 16 + 16*hh
        wait(lg=6 - 4*hh)
        for e in range(4): A("v_add_f32 v%d, v%d, v%d" % (b0 + e, b0 + e, b0 + 4 + e))
        wait(lg=4 - 4*hh)
        for e in range(4): A("v_add_f32 v%d, v%d, v%d" % (b0 + 8 + e, b0 + 8 + e, b0 + 12 + e))
        for e in range(4): A("v_add_f32 v%d, v%d, v%d" % (b0 + e, b0 + e, b0 + 8 + e))
        A("buffer_store_dwordx4 %s, v15, s[36:39], s%d offen %s" % (v(b0, 4), 59 + hh, opts.get("ostore", "")))
    A("""s_or_b32 s23, s2, s3
         s_cmp_eq_u32 s23, 0
         s_cbranch_scc0 L_NE
         s_add_u32 s23, s{ep}, 1
         v_mov_b32 v3, s23""".format(ep=sEP))
    one_lane(["buffer_store_dword v3, off, s[12:15], 0 sc1"])
    A.label("L_NE")
    stamp(7)
    stamp_out()
    A.label("L_END")
    A("s_endpgm")
    def wogroup(n, ret):
        for k in range(4):
            A("buffer_load_dwordx4 %s, v144, s[12:15], s53 offen offset:%d sc1" % (v(WOF + 16*n + 4*k, 4), 1024 * k))
        A("s_add_u32 s53, s53, %d\ns_branch %s" % (4096 if n != 1 else 32768 - 4096, ret))
    A.label("L_WP")
    A("s_cmp_eq_u32 s58, 7\ns_cbranch_scc1 L_WP3")
    wogroup(1, "L_WR")
    A.label("L_WP3"); wogroup(3, "L_WR")
    A.label("L_WP0"); wogroup(0, "L_DR")
    A.label("L_WP2"); wogroup(2, "L_DR")
    A.label("L_DM")
    A("""s_cmp_lt_u32 s58, 2
         s_cbranch_scc1 L_DM2
         s_cmp_gt_u32 s58, 6
         s_cbranch_scc1 L_WP2
         s_waitcnt vmcnt(0)
         s_mov_b64 exec, 1
         ds_add_u32 v{ca}, v145
         s_mov_b64 exec, -1
         s_cmp_gt_u32 s58, 5
         s_cbranch_scc1 L_WP0""".format(ca=vCA2))
    A.label("L_DM2")
    A("""s_add_u32 s23, s58, 2
         s_lshl_b32 s24, s23, 14
         s_add_u32 m0, s24, s30
         s_add_u32 s23, s23, s{J}
         s_and_b32 s23, s23, 7
         s_lshl_b32 s23, s23, 14
         s_add_u32 s23, s23, s62
         buffer_load_dwordx4 v144, s[12:15], s23 offen sc1 lds
         buffer_load_dwordx4 v144, s[12:15], s23 offen offset:1024 sc1 lds
         s_branch L_DR""".format(J=sJ))
    A.label("L_AW")
    if stamps and stamps != "pad":
        A("s_memrealtime s[96:97]\ns_waitcnt lgkmcnt(0)")
    A("s_mov_b32 s%d, 0" % sSPIN)
    A.label("L_AW2")
    A("""ds_read_b32 v{cn}, v{ca}
         s_add_u32 s{sp}, s{sp}, 1
         s_cmp_gt_u32 s{sp}, {SP}
         s_cbranch_scc1 L_AR
         s_waitcnt lgkmcnt(0)
         v_cmp_gt_u32 vcc, 12, v{cn}
         s_nop 1
         s_cbranch_vccnz L_AW2""".format(cn=vCN, ca=vCA2, sp=sSPIN, SP=SPIN))
    if stamps and stamps != "pad":
        A("s_memrealtime s[98:99]\ns_waitcnt lgkmcnt(0)\ns_sub_u32 s98, s98, s96\ns_add_u32 m0, s58, 48\ns_nop 0\nv_writelane_b32 v%d, s98, m0" % VSTAMP)
    A("s_branch L_AR")
    A.label("L_FB")
    A("v_mov_b32 v%d, v144\nv_mov_b32 v29, 0xff800000\ns_mov_b32 s58, 0" % vKA)
    wait(lg=0)
    A.label("L_FB1")
    A("ds_read_b128 %s, v%d" % (v(K, 4), vKA))
    wait(lg=0)
    A("v_mfma_f32_32x32x16_bf16 %s, %s, %s, 0\ns_nop 7\ns_nop 3" % (v(S0, 16), v(K, 4), v(Q, 4)))
    for q in range(8): A("v_max3_f32 v29, v29, v%d, v%d" % (S0 + 2*q, S0 + 2*q + 1))
    A("""v_add_u32 v{ka}, 2048, v{ka}
         s_add_u32 s58, s58, 1
         s_cmp_lt_u32 s58, 64
         s_cbranch_scc1 L_FB1
         v_mov_b32 v30, v29
         s_nop 1
         v_permlane32_swap_b32 v29, v30
         v_max_f32 v29, v29, v30
         v_mov_b32 v{ka}, v144
         s_mov_b32 s58, 0""".format(ka=vKA))
    for r in range(16): A("v_xor_b32 v%d, 0x80000000, v29\nv_mov_b32 v%d, 0" % (S1 + r, O + r))
    A.label("L_FB2")
    A("ds_read_b128 %s, v%d" % (v(K, 4), vKA))
    vreads(0)
    wait(lg=0)
    A("v_mfma_f32_32x32x16_bf16 %s, %s, %s, %s\ns_nop 7\ns_nop 3" % (v(S0, 16), v(K, 4), v(Q, 4), v(S1, 16)))
    for e in range(16): A("v_exp_f32 v%d, v%d" % (S0 + e, S0 + e))
    A("s_nop 0")
    for q in range(8): A("v_cvt_pk_bf16_f32 v%d, v%d, v%d" % (P + q, S0 + 2*q, S0 + 2*q + 1))
    A("s_nop 1")
    A("v_mfma_f32_32x32x16_bf16 %s, %s, %s, %s" % (v(O, 16), v(V0, 4), v(P, 4), v(O, 16)))
    A("v_mfma_f32_32x32x16_bf16 %s, %s, %s, %s" % (v(O, 16), v(V1, 4), v(P + 4, 4), v(O, 16)))
    A("""v_add_u32 v{ka}, 2048, v{ka}
         s_add_u32 s58, s58, 1
         s_nop 7
         s_cmp_lt_u32 s58, 64
         s_cbranch_scc1 L_FB2
         s_nop 7""".format(ka=vKA))
    rowsum()
    A("s_branch L_FBR")
    A.label("L_CODE_END")
    return A

HEADER = """; fused S5 SSM + multi-head attention block, one persistent launch: 256 workgroups x 12 waves
; @launch grid=(256,1,1) block=(768,1,1) lds=%d
.amdgcn_target "amdgcn-amd-amdhsa--gfx950"
.text
.globl %s_kernel
""" % (LDS_BYTES, NAME)
FOOTER = """.section .rodata,"a"
.p2align 6
.amdhsa_kernel %s_kernel
  .amdhsa_next_free_vgpr 168
  .amdhsa_next_free_sgpr 102
  .amdhsa_accum_offset 168
  .amdhsa_group_segment_fixed_size 0
  .amdhsa_kernarg_size 120
  .amdhsa_user_sgpr_count 2
  .amdhsa_user_sgpr_kernarg_segment_ptr 1
  .amdhsa_system_sgpr_workgroup_id_x 1
.end_amdhsa_kernel
""" % NAME

def build(path, **kw):
    A = gen(**kw)
    probs = lint(A.lines)
    for p in probs: print("HAZARD:", p)
    body = A.text()
    pre = ""
    open(path, "w").write(HEADER + body + pre + FOOTER)
    return probs

if __name__ == "__main__":
    out = sys.argv[1] if len(sys.argv) > 1 else "cdna_kernels/%s.s" % NAME
    kw = {}
    if "stamps" in sys.argv: kw["stamps"] = True
    kw["opts"] = {}
    for a in sys.argv:
        if "=" in a:
            k_, v_ = a.split("=")
            try: v_ = float(v_) if "." in v_ else int(v_)
            except ValueError: pass
            kw["opts"][k_] = v_
    if "dbg" in sys.argv: kw["stamps"] = "dbg"
    if "bar" in sys.argv: kw["stamps"] = "bar"
    if "hb" in sys.argv: kw["stamps"] = "hb"
    for a in sys.argv:
        if a.startswith("pad"):
            kw["stamps"] = "pad"; kw["opts"]["padk"] = int(a[3:])
    if "safe" in sys.argv: kw["force_safe"] = True
    build(out, **kw)
```

```python
import sys
from asmlib import Asm, v, s, lint

NAME = "concat_heads__ssm_conv_s5__mha_block__prompt"
WS_XCC, WS_FKVG, WS_FL, WS_FQ, WS_FP, WS_FG, WS_FO, WS_E = 0x1000, 0x2000, 0x4000, 0x6000, 0x8000, 0x9000, 0xA000, 0x10000
MB = 1 << 20
WS_KVG, WS_KVL, WS_Q, WS_G, WS_O, WS_C, WS_WO, WS_DBG = 1*MB, 5*MB, 9*MB, 11*MB, 15*MB, 17*MB, 18*MB, 19*MB
WS_SIZE = 20 * MB
L_RING = 65536
L_URING = 81920
L_SCR = 131072
L_XW = 155648
L_CNT = L_XW + 1024
LDS_BYTES = 163840
SPIN = 1 << 18

sW, sJ, sI, sTQ, sHG, sTAG, sEP, sFAST = 3, 16, 17, 18, 19, 20, 21, 22
S_XB, S_WQ, S_WS, S_OUT, S_XA = 4, 8, 12, 36, 40
sVM = 44
sT = list(range(23, 36))
P_AX, P_LRE, P_LIM, P_BRE, P_BIM, P_CRE, P_CIM, P_LDT = 64, 66, 68, 70, 72, 74, 76, 78
P_DSK, P_WO, P_OUT = 80, 84, 86
sXCC = 46
sSPIN = 47
vL = 1
VSTAMP = 167

def gen(stamps=False, force_safe=False, opts=None):
    opts = opts or {}
    A = Asm()
    uid = [0]
    def lab(p):
        uid[0] += 1
        return "L_%s%d" % (p, uid[0])
    def stamp(k):
        if stamps:
            A("s_memrealtime s[98:99]\ns_waitcnt lgkmcnt(0)\nv_writelane_b32 v%d, s98, %d" % (VSTAMP, k))
    def cstamp(k):
        if stamps:
            A("s_memtime s[98:99]\ns_waitcnt lgkmcnt(0)\nv_writelane_b32 v%d, s98, %d" % (VSTAMP, k))
    def stamp_out():
        if stamps == "pad":
            l = lab("pad")
            A("""s_nop 1
                 v_readlane_b32 s96, v%d, %d
                 s_nop 3
                 s_add_u32 s96, s96, 10000""" % (VSTAMP, opts.get("padk", 0) if True else 0))
            A.label(l)
            A("""s_memrealtime s[98:99]
                 s_waitcnt lgkmcnt(0)
                 s_sub_u32 s98, s98, s96
                 s_cmp_lt_i32 s98, 0
                 s_cbranch_scc1 %s""" % l)
        elif stamps == "dbg":
            A("""s_load_dwordx2 s[92:93], s[0:1], 104
                 s_mov_b32 s94, 256
                 s_mov_b32 s95, 0x20000
                 v_readlane_b32 s98, v%d, 0
                 s_not_b32 s98, s98
                 s_cmp_ge_u32 s3, 8
                 s_cselect_b32 s99, 28, 0
                 v_lshlrev_b32 v166, 2, v%d
                 s_waitcnt lgkmcnt(0)
                 s_mov_b64 exec, 0xfe
                 buffer_atomic_umax v%d, v166, s[92:95], s99 offen
                 s_mov_b64 exec, 1
                 v_mov_b32 v165, s98
                 buffer_atomic_umax v165, off, s[92:95], 0 offset:60
                 buffer_atomic_umax v%d, off, s[92:95], 0
                 s_mov_b64 exec, -1""" % (VSTAMP, vL, VSTAMP, VSTAMP))
        elif stamps:
            A("""s_mul_i32 s98, s2, 12
                 s_add_u32 s98, s98, s%d
                 s_lshl_b32 s98, s98, 8
                 s_add_u32 s98, s98, %d
                 v_lshlrev_b32 v166, 2, v%d
                 buffer_store_dword v%d, v166, s[12:15], s98 offen
                 s_mov_b64 exec, -1""" % (sW, WS_DBG, vL, VSTAMP))
    def wait(vm=None, lg=None):
        p = []
        if vm is not None: p.append("vmcnt(%d)" % vm)
        if lg is not None: p.append("lgkmcnt(%d)" % lg)
        A("s_waitcnt " + " ".join(p))
    barn = [0]
    def bar():
        if stamps == "bar" and barn[0] is not None and barn[0] < 16:
            A("s_memrealtime s[98:99]\ns_waitcnt lgkmcnt(0)\nv_writelane_b32 v%d, s98, %d" % (VSTAMP, 16 + barn[0]))
        A("s_barrier")
        if stamps == "bar" and barn[0] is not None and barn[0] < 16:
            A("s_memrealtime s[98:99]\ns_waitcnt lgkmcnt(0)\nv_writelane_b32 v%d, s98, %d" % (VSTAMP, 32 + barn[0]))
            barn[0] += 1
    def mode_stores(lines):
        a, b = lab("safe"), lab("done")
        A("s_cmp_eq_u32 s%d, 0\ns_cbranch_scc1 %s" % (sFAST, a))
        for l in lines: A(l)
        A("s_branch %s" % b); A.label(a)
        for l in lines: A(l + " sc1")
        A.label(b)
    def one_lane(lines):
        A("s_mov_b64 exec, 1")
        for l in lines: A(l)
        A("s_mov_b64 exec, -1")
    def slot_load(dst, tmp):
        A("""v_and_b32 v%d, 31, v%d
             v_lshlrev_b32 v%d, 3, v%d
             s_lshl_b32 s23, s%d, 8
             s_add_u32 s23, s23, %d
             buffer_load_dwordx2 %s, v%d, s[12:15], s23 offen sc1""" % (tmp, vL, tmp, tmp, sJ, WS_XCC, v(dst, 2), tmp))
    def slot_eval(dst):
        A("""v_cmp_eq_u32 s[24:25], s%d, v%d
             v_cmp_eq_u32 vcc, s%d, v%d
             s_nop 1
             s_and_b64 vcc, vcc, s[24:25]
             s_cmp_eq_u64 vcc, -1
             s_cselect_b32 s%d, %d, 0""" % (sTAG, dst, sXCC, dst + 1, sFAST, 0 if force_safe else 1))
    def poll_all(addr_v, soff, tmp):
        l, d = lab("poll"), lab("pd")
        A("s_mov_b32 s%d, 0" % sSPIN)
        A.label(l)
        A("""buffer_load_dword v%d, v%d, s[12:15], %s offen sc1
             s_add_u32 s%d, s%d, 1
             s_cmp_gt_u32 s%d, %d
             s_cbranch_scc1 %s
             s_waitcnt vmcnt(0)
             v_cmp_ne_u32 vcc, s%d, v%d
             s_nop 1
             s_cbranch_vccnz %s""" % (tmp, addr_v, soff, sSPIN, sSPIN, sSPIN, SPIN, d, sTAG, tmp, l))
        A.label(d)
    def params(lre, lim, ldt, lr, li, t0, t1, t2):
        A("""v_lshlrev_b32 v{lre}, 16, v{lre}
             v_lshlrev_b32 v{lim}, 16, v{lim}
             v_lshlrev_b32 v{ldt}, 16, v{ldt}
             v_mul_f32 v{ldt}, 0x3fb8aa3b, v{ldt}
             v_exp_f32 v{ldt}, v{ldt}
             s_nop 0
             v_cvt_pk_bf16_f32 v{ldt}, v{ldt}, v{ldt}
             v_and_b32 v{ldt}, 0xffff0000, v{ldt}
             v_mul_f32 v{t0}, v{ldt}, v{lre}
             v_mul_f32 v{t1}, v{ldt}, v{lim}
             v_mul_f32 v{t0}, 0x3fb8aa3b, v{t0}
             v_mul_f32 v{t1}, 0.15915494, v{t1}
             v_exp_f32 v{t0}, v{t0}
             v_rndne_f32 v{t2}, v{t1}
             v_sub_f32 v{t1}, v{t1}, v{t2}
             v_cos_f32 v{lr}, v{t1}
             v_sin_f32 v{li}, v{t1}
             s_nop 0
             v_mul_f32 v{lr}, v{lr}, v{t0}
             v_mul_f32 v{li}, v{li}, v{t0}""".format(lre=lre, lim=lim, ldt=ldt, lr=lr, li=li, t0=t0, t1=t1, t2=t2))
    def param_loads(lre, lim, ldt, tmp):
        A("""v_and_b32 v{t}, 31, v{L}
             s_lshr_b32 s23, s{i}, 1
             s_lshl_b32 s23, s23, 6
             v_lshl_add_u32 v{t}, v{t}, 1, s23
             global_load_ushort v{a}, v{t}, s[{pa}:{pa1}]
             global_load_ushort v{b}, v{t}, s[{pb}:{pb1}]
             global_load_ushort v{c}, v{t}, s[{pc}:{pc1}]""".format(t=tmp, L=vL, i=sI, a=lre, b=lim, c=ldt,
             pa=P_LRE, pa1=P_LRE+1, pb=P_LIM, pb1=P_LIM+1, pc=P_LDT, pc1=P_LDT+1))
    def tag_from_epoch():
        A("s_mul_i32 s%d, s%d, 0x9E3779B1\ns_add_u32 s%d, s%d, 0x7F4A7C15" % (sTAG, sEP, sTAG, sTAG))
    def dma_lane_regs(sidx, piece, rho):
        A("""v_lshrrev_b32 v{rho}, 3, v{L}
             v_lshrrev_b32 v{p}, 4, v{L}
             s_and_b32 s23, s{si}, 1
             s_lshl_b32 s23, s23, 2
             v_add_u32 v{p}, s23, v{p}
             v_xor_b32 v{p}, v{p}, v{L}
             v_and_b32 v{p}, 7, v{p}
             v_lshlrev_b32 v{p}, 4, v{p}""".format(rho=rho, p=piece, L=vL, si=sidx))
    def frag_addr(dst4, t0, t1):
        A("""v_and_b32 v{t0}, 31, v{L}
             v_lshrrev_b32 v{t1}, 1, v{t0}
             v_lshrrev_b32 v{d}, 5, v{L}
             v_xor_b32 v{t1}, v{t1}, v{d}
             v_and_b32 v{t1}, 7, v{t1}
             v_lshlrev_b32 v{t1}, 4, v{t1}
             v_lshl_add_u32 v{d}, v{t0}, 7, v{t1}""".format(t0=t0, t1=t1, L=vL, d=dst4))
        for ks in (1, 2, 3):
            A("v_xor_b32 v%d, %d, v%d" % (dst4 + ks, 32 * ks, dst4))

    A(".p2align 8\n.type %s_kernel,@function" % NAME)
    A.label(NAME + "_kernel")
    A.label("L_START")
    if stamps:
        A("v_mov_b32 v%d, 0" % VSTAMP)
        stamp(0)
    A("""s_cmp_ge_u32 s2, 0x100
         s_cbranch_scc1 L_END
         s_load_dwordx2 s[4:5], s[0:1], 72
         s_load_dwordx2 s[8:9], s[0:1], 80
         s_load_dwordx2 s[12:13], s[0:1], 112
         s_load_dwordx16 s[64:79], s[0:1], 0
         s_load_dwordx2 s[80:81], s[0:1], 64
         s_load_dwordx4 s[84:87], s[0:1], 88
         v_lshrrev_b32 v2, 6, v0
         v_and_b32 v1, 63, v0
         s_and_b32 s16, s2, 7
         v_readfirstlane_b32 s3, v2
         s_lshr_b32 s17, s2, 3
         s_and_b32 s18, s17, 3
         s_lshr_b32 s19, s17, 2
         s_mov_b32 s6, 0x200000
         s_mov_b32 s7, 0x20000
         s_mov_b32 s10, 0x180000
         s_mov_b32 s11, 0x20000
         s_mov_b32 s14, %d
         s_mov_b32 s15, 0x20000
         s_getreg_b32 s%d, hwreg(HW_REG_XCC_ID, 0, 4)""" % (WS_SIZE, sXCC))
    WSO = opts.get("wso", 0) * MB
    A("s_cmp_ge_u32 s3, 8\ns_cbranch_scc0 L_ATT")


    class VM:
        def __init__(self): self.q = []
        def add(self, tag, n=1): self.q += [tag] * n
        def need(self, *tags, lg=None):
            last = max(i for i, t in enumerate(self.q) if t in tags)
            wait(vm=len(self.q) - 1 - last, lg=lg)
    vm = VM()
    sS = 48
    vXB, vXB2, vWo_, vW2, vXA, vXA2 = 2, 3, 4, 5, 6, 7
    LRE, LIM, LDT = 20, 21, 22
    LAM, L8, MU, NU, RHO, RHO8 = 8, 10, 12, 14, 16, 18
    vLin, vFA8, vCA, vOne, vXWb, vXWw, vCh16, vEb, vGw, vGr, vFG, vXe, vDk, vYw, vYr, vOa = range(144, 160)
    URE, UIM, YR = 96, 112, 32
    DQ, DV = opts.get("dq", 2), opts.get("dv", 4)
    A("s_sub_u32 s%d, s3, 8\ns_setprio 3" % sS)
    dma_lane_regs(sS, vXB, 25)
    A("""v_lshrrev_b32 v26, 4, v{L}
         v_and_b32 v26, 1, v26
         v_lshlrev_b32 v27, 2, v26
         v_xor_b32 v27, v27, v{L}
         v_and_b32 v27, 7, v27
         v_lshlrev_b32 v27, 4, v27
         v_mul_u32_u24 v{w}, 3072, v25
         v_add_u32 v{w}, v{w}, v27
         v_add_u32 v{w2}, {d2}, v{w}
         v_mov_b32 v28, v{xb}
         v_lshl_add_u32 v{xb}, v25, 10, v{xb}
         v_add_u32 v{xb2}, {d1}, v{xb}""".format(xb=vXB, xb2=vXB2, w=vWo_, w2=vW2, L=vL, d1=16384-2048, d2=16*3072-2048))
    sN0, sM = 49, 52
    CH = 196608
    A("""s_and_b32 s28, s{S}, 1
         s_lshr_b32 s24, s{S}, 1
         s_lshl_b32 s24, s24, 2
         s_add_u32 s{n0}, s28, s24
         s_lshl_b32 s23, s{J}, 2
         s_add_u32 s23, s23, s{TQ}
         s_lshl_b32 s23, s23, 16
         s_lshl_b32 s24, s{n0}, 13
         s_add_u32 s53, s23, s24
         s_mul_i32 s23, s{n0}, 24576
         s_add_u32 s24, s{HG}, {dq}
         s_and_b32 s24, s24, 7
         s_lshl_b32 s24, s24, 7
         s_add_u32 s54, s23, s24
         s_lshl_b32 s{m}, s{n0}, 10
         s_mov_b32 s56, s{m}
         s_add_u32 s57, s{m}, {ring}
         s_add_u32 s55, s{J}, s{HG}
         s_and_b32 s55, s55, 7
         s_lshl_b32 s30, s55, 7
         s_mul_i32 s31, s55, {ch}
         s_mul_i32 s23, s{n0}, 24576
         s_lshl_b32 s24, s{HG}, 7
         s_add_u32 s50, s23, s24
         s_add_u32 s50, s50, 1024
         s_add_u32 s24, s{HG}, {dv}
         s_and_b32 s24, s24, 7
         s_lshl_b32 s24, s24, 7
         s_add_u32 s51, s23, s24
         s_add_u32 s51, s51, 2048
         s_mov_b32 s58, 0
         s_waitcnt lgkmcnt(0)
         s_add_u32 s12, s12, {wso}
         s_addc_u32 s13, s13, 0""".format(wso=WSO, S=sS, n0=sN0, J=sJ, TQ=sTQ, HG=sHG, m=sM, ring=L_RING, ch=CH, dq=DQ, dv=DV))
    def hu_x():
        A("""s_mov_b32 m0, s56
             s_add_u32 s23, s53, s30
             buffer_load_dwordx4 v%d, s[4:7], s23 offen lds
             buffer_load_dwordx4 v%d, s[4:7], s23 offen offset:2048 lds
             s_add_u32 s56, s56, 8192
             s_add_u32 s30, s30, 128
             s_and_b32 s30, s30, 1023""" % (vXB, vXB2))
    def hu_w(base, adv):
        A("""s_mov_b32 m0, s57
             s_add_u32 s23, s%d, s31
             buffer_load_dwordx4 v%d, s[8:11], s23 offen lds
             buffer_load_dwordx4 v%d, s[8:11], s23 offen offset:2048 lds
             s_add_u32 s57, s57, 8192""" % (base, vWo_, vW2))
        if adv: A("s_add_u32 s31, s31, %d\ns_cmp_eq_u32 s31, %d\ns_cselect_b32 s31, 0, s31" % (CH, 8 * CH))
    seq = []
    for c in range(8): seq += [("x", c), ("K", c), ("V", c)]
    seq += [("Q", c) for c in range(8)]
    def issue(n0_, n1_):
        for kind, c in seq[n0_:n1_]:
            if kind == "x": hu_x()
            else:
                if (kind, c) == ("K", 6): A("s_sub_u32 s57, s57, 98304")
                hu_w({"K": 50, "V": 51, "Q": 54}[kind], kind != "K")
            vm.add(kind + str(c), 2)
    hu_x()
    A.label("L_H0")
    hu_w(50, False); hu_w(51, True); hu_x()
    A("s_add_u32 s58, s58, 1\ns_cmp_lt_u32 s58, 3\ns_cbranch_scc1 L_H0")
    for kind, c in seq[:10]: vm.add(kind + str(c), 2)
    A("s_load_dword s%d, s[12:13], 0" % sEP)
    param_loads(LRE, LIM, LDT, 25)
    A("""s_lshl_b32 s23, s{J}, 3
         s_add_u32 s23, s23, s{HG}
         s_lshl_b32 s23, s23, 7
         v_mov_b32 v25, {fl}
         s_mov_b32 s24, {fq}
         v_writelane_b32 v25, s24, 1
         s_mov_b64 exec, 3
         buffer_load_dword v162, v25, s[12:15], s23 offen sc1
         s_mov_b64 exec, -1""".format(J=sJ, HG=sHG, fl=WS_FL, fq=WS_FQ))
    vm.add("par", 4)
    stamp(8)
    A("""v_lshrrev_b32 v25, 3, v{L}
         v_lshrrev_b32 v27, 2, v25
         v_lshlrev_b32 v27, 4, v27
         v_add_u32 v27, v27, v26
         v_and_b32 v25, 1, v25
         v_lshl_add_u32 v27, v25, 3, v27
         v_lshl_add_u32 v{xa}, v27, 10, v28
         v_add_u32 v{xa2}, 2048, v{xa}""".format(L=vL, xa=vXA, xa2=vXA2))
    def csq(d, a):
        A("""v_mul_f32 v25, v{a1}, v{a1}
             v_mul_f32 v26, v{a}, v{a1}
             v_fma_f32 v{d}, v{a}, v{a}, -v25
             v_add_f32 v{d1}, v26, v26""".format(a=a, a1=a+1, d=d, d1=d+1))
    def chore0():
        frag_addr(32, 25, 26)
        A("s_lshl_b32 s23, s%d, 12\ns_add_u32 s23, s23, %d" % (sS, L_URING + 8192))
        for ks in range(4):
            A("v_add_u32 v%d, s23, v%d\nv_add_u32 v%d, %d, v%d" % (36 + ks, 32 + ks, 32 + ks, L_URING, 32 + ks))
    def chore5(): params(LRE, LIM, LDT, LAM, LAM + 1, 25, 26, 27)
    def chore6(): csq(L8, LAM); csq(L8, L8); csq(L8, L8); csq(MU, L8); csq(NU, MU)
    def chore7():
        csq(RHO, NU); csq(RHO, RHO); csq(RHO8, RHO); csq(RHO8, RHO8); csq(RHO8, RHO8)
        wait(lg=0); tag_from_epoch()
    def chore8():
        A("""v_add_f32 v25, -1.0, v{lr}
             v_mul_f32 v26, v{a}, v{a}
             v_fmac_f32 v26, v{b}, v{b}
             v_rcp_f32 v26, v26
             v_mul_f32 v23, v25, v{a}
             v_mul_f32 v24, v{li}, v{a}
             v_add_f32 v26, v26, v26
             v_fmac_f32 v23, v{li}, v{b}
             v_fma_f32 v24, -v25, v{b}, v24
             v_mul_f32 v23, v23, v26
             v_mul_f32 v24, v24, v26
             v_xor_b32 v24, 0x80000000, v24
             s_cmp_lt_u32 s{S}, 2
             s_cbranch_scc1 L_CP0
             v_xor_b32 v26, 0x80000000, v23
             v_mov_b32 v23, v24
             v_mov_b32 v24, v26""".format(lr=LAM, li=LAM+1, a=LRE, b=LIM, S=sS))
        A.label("L_CP0")
        A("""s_lshl_b32 s23, s{J}, 1
             s_and_b32 s24, s{I}, 1
             s_add_u32 s26, s23, s24
             s_lshr_b32 s27, s{I}, 1
             s_lshl_b32 s23, s26, 15
             s_lshl_b32 s24, s27, 6
             s_add_u32 s23, s23, s24
             s_and_b32 s28, s{S}, 1
             s_lshl_b32 s24, s28, 5
             s_add_u32 s23, s23, s24
             v_and_b32 v25, 31, v{L}
             v_lshrrev_b32 v26, 5, v{L}
             v_lshlrev_b32 v27, 4, v26
             v_lshl_add_u32 v27, v25, 10, v27
             v_add_u32 v27, s23, v27
             s_lshr_b32 s29, s{S}, 1
             s_lshl_b32 s23, s27, 1
             s_add_u32 s29, s29, s23
             s_lshl_b32 s23, s29, 14
             s_lshl_b32 s24, s26, 6
             s_add_u32 s23, s23, s24
             s_lshl_b32 s24, s28, 13
             s_add_u32 s23, s23, s24
             v_lshlrev_b32 v28, 12, v26
             v_lshl_add_u32 v28, v25, 1, v28
             v_add_u32 v28, s23, v28
             v_lshlrev_b32 v29, 5, v26
             s_lshl_b32 s24, s28, 6
             v_add_u32 v29, s24, v29""".format(J=sJ, I=sI, S=sS, L=vL))
        for e in range(8):
            A("ds_bpermute_b32 v%d, v29, v23 offset:%d" % (128 + e, 4*e))
        A("v_mov_b32 v160, v27\nv_mov_b32 v161, v28\nv_lshlrev_b32 v%d, 4, v%d" % (vLin, vL))
    def chore9():
        wait(lg=0)
        for e in range(8):
            A("ds_bpermute_b32 v%d, v29, v24 offset:%d" % (136 + e, 4*e))
        A("""s_mov_b32 s40, s{ax}
             s_mov_b32 s41, s{ax1}
             s_mov_b32 s42, 0x200000
             s_mov_b32 s43, 0x20000
             s_cmp_lt_u32 s{S}, 2
             s_cselect_b32 s36, s{br}, s{bi}
             s_cselect_b32 s37, s{br1}, s{bi1}
             s_mov_b32 s38, 0x80000
             s_mov_b32 s39, 0x20000
             s_lshl_b32 s23, s26, 17
             s_lshr_b32 s24, s{S}, 1
             s_lshl_b32 s24, s24, 15
             s_add_u32 s23, s23, s24
             s_lshl_b32 s24, s28, 11
             s_add_u32 s59, s23, s24
             s_lshl_b32 s23, s27, 15
             s_lshl_b32 s24, s28, 13
             s_add_u32 s60, s23, s24
             s_add_u32 s35, s{J}, s27
             s_and_b32 s35, s35, {rm}
             s_lshl_b32 s35, s35, 7""".format(J=sJ, rm=7 if opts.get("rot", True) else 0, ax=P_AX, ax1=P_AX+1, S=sS, br=P_BRE, bi=P_BIM, br1=P_BRE+1, bi1=P_BIM+1))
    def chore11():
        A("""s_lshl_b32 s23, s{S}, 12
             s_add_u32 s34, s23, {scr}
             v_lshlrev_b32 v{fa8}, 3, v{L}
             v_mov_b32 v{ca}, {cnt}
             v_mov_b32 v{one}, 1
             v_and_b32 v25, 31, v{L}
             v_lshrrev_b32 v26, 5, v{L}
             v_lshlrev_b32 v{xwb}, 3, v25
             v_add_u32 v{xwb}, {xw}, v{xwb}
             s_lshl_b32 s23, s{S}, 8
             v_add_u32 v{xww}, s23, v{xwb}
             s_lshl_b32 s23, s27, 9
             v_lshl_add_u32 v{ch}, v25, 4, s23
             s_sub_u32 s23, s26, 1
             s_lshl_b32 s23, s23, 13
             v_lshlrev_b32 v27, 16, v26
             v_sub_u32 v27, v{ch}, v27
             v_add_u32 v{eb}, s23, v27
             v_lshlrev_b32 v27, 5, v26
             v_lshl_add_u32 v27, v25, 6, v27
             v_add_u32 v{gw}, s34, v27
             v_bfe_u32 v27, v{L}, 2, 2
             v_lshl_add_u32 v27, v26, 3, v27
             v_lshlrev_b32 v27, 6, v27
             v_bfe_u32 v28, v{L}, 4, 1
             v_lshl_add_u32 v27, v28, 5, v27
             v_and_b32 v28, 3, v{L}
             v_lshl_add_u32 v27, v28, 3, v27
             v_add_u32 v{gr}, s34, v27
             v_and_b32 v27, 7, v{L}
             v_lshlrev_b32 v{fg}, 2, v27
             v_xor_b32 v26, v26, v25
             v_and_b32 v26, 7, v26
             v_lshlrev_b32 v26, 4, v26
             v_lshl_add_u32 v26, v25, 7, v26
             v_add_u32 v{yw}, s34, v26
             s_lshl_b32 s23, s{J}, 2
             s_add_u32 s23, s23, s{TQ}
             s_lshl_b32 s23, s23, 1
             s_add_u32 s32, s23, s28
             s_lshl_b32 s23, s{HG}, 1
             s_lshr_b32 s24, s{S}, 1
             s_add_u32 s33, s23, s24
             v_lshrrev_b32 v25, 3, v{L}
             v_and_b32 v26, 7, v{L}
             s_lshl_b32 s23, s32, 15
             s_lshl_b32 s24, s33, 6
             s_add_u32 s23, s23, s24
             v_lshlrev_b32 v27, 10, v25
             v_lshl_add_u32 v27, v26, 3, v27
             v_add_u32 v{xe}, s23, v27
             v_lshl_add_u32 v{dk}, v26, 3, s24
             v_xor_b32 v27, v25, v26
             v_lshlrev_b32 v27, 4, v27
             v_lshl_add_u32 v27, v25, 7, v27
             v_add_u32 v{yr}, s34, v27
             v_lshlrev_b32 v27, 12, v25
             v_lshl_add_u32 v{oa}, v26, 4, v27""".format(S=sS, scr=L_SCR, L=vL, lin=vLin, fa8=vFA8, ca=vCA, cnt=L_CNT, one=vOne, xwb=vXWb, xw=L_XW,
                  xww=vXWw, ch=vCh16, eb=vEb, gw=vGw, gr=vGr, fg=vFG, yw=vYw, J=sJ, TQ=sTQ, HG=sHG, xe=vXe, dk=vDk, yr=vYr, oa=vOa))
        A("""s_lshl_b32 s23, s26, 2
             s_add_u32 s92, s23, s{S}
             s_lshl_b32 s23, s92, 16
             s_lshl_b32 s24, s27, 12
             s_add_u32 s23, s23, s24
             s_add_u32 s93, s23, {gi}
             s_lshl_b32 s23, s92, 6
             s_add_u32 s94, s23, {fg}""".format(S=sS, gi=WS_G, fg=WS_FG))
    USLOT = [0, 1, 2, 0, 1, 2, 0, 1]
    def udma_parts(c):
        base = L_URING + USLOT[c] * 24576
        f = dict(m=sM, b=vXB, b2=vXB2, xa=vXA, xa2=vXA2)
        return ["""s_add_u32 m0, s{m}, {o}
             s_add_u32 s95, s60, s35
             buffer_load_dwordx4 v{b}, s[36:39], s95 offen lds
             buffer_load_dwordx4 v{b2}, s[36:39], s95 offen offset:2048 lds""".format(o=base, **f),
                """s_add_u32 m0, s{m}, {o}
             s_add_u32 s95, s59, s35
             buffer_load_dwordx4 v{xa}, s[40:43], s95 offen lds
             buffer_load_dwordx4 v{xa2}, s[40:43], s95 offen offset:2048 lds""".format(o=base + 8192, **f),
                """s_add_u32 m0, s{m}, {o}
             s_add_u32 s95, s95, 65536
             buffer_load_dwordx4 v{xa}, s[40:43], s95 offen lds
             buffer_load_dwordx4 v{xa2}, s[40:43], s95 offen offset:2048 lds
             s_add_u32 s35, s35, 128
             s_and_b32 s35, s35, 1023""".format(o=base + 16384, **f)]
    def udma(c):
        for x in udma_parts(c): A(x)
        vm.add('u%d' % c, 6)
    def pre_loads():
        A("""global_load_dwordx4 v[48:51], v160, s[{cr}:{cr1}]
             global_load_dwordx4 v[52:55], v160, s[{ci}:{ci1}]
             global_load_ushort v56, v161, s[{w}:{w1}]
             global_load_ushort v57, v161, s[{w}:{w1}] offset:1024
             global_load_ushort v58, v161, s[{w}:{w1}] offset:2048
             global_load_ushort v59, v161, s[{w}:{w1}] offset:3072""".format(cr=P_CRE, cr1=P_CRE+1, ci=P_CIM, ci1=P_CIM+1, w=P_WO, w1=P_WO+1))
        vm.add("P", 6)
    PC = 48
    def prepass():
        vm.need("P")
        for e in range(8):
            A(("v_lshlrev_b32 v25, 16, v%d" if e % 2 == 0 else "v_and_b32 v25, 0xffff0000, v%d") % (PC + e // 2))
            A(("v_lshlrev_b32 v26, 16, v%d" if e % 2 == 0 else "v_and_b32 v26, 0xffff0000, v%d") % (PC + 4 + e // 2))
            A("v_mul_f32 v%d, v%d, v25\nv_fmac_f32 v%d, v%d, v26" % (128 + e, 128 + e, 128 + e, 136 + e))
        for q in range(4):
            A("v_cvt_pk_bf16_f32 v%d, v%d, v%d" % (PC + q, 128 + 2*q, 129 + 2*q))
        A("""v_lshl_or_b32 v56, v57, 16, v56
             v_lshl_or_b32 v57, v59, 16, v58
             s_lshl_b32 s23, s26, 16
             s_lshl_b32 s24, s27, 2
             s_add_u32 s24, s24, s{S}
             s_lshl_b32 s24, s24, 10
             s_add_u32 s23, s23, s24
             s_add_u32 s23, s23, {c}
             s_lshl_b32 s24, s26, 5
             s_add_u32 s24, s24, s29
             s_lshl_b32 s24, s24, 10
             s_lshl_b32 s25, s28, 3
             s_add_u32 s24, s24, s25
             s_add_u32 s24, s24, {wo}
             buffer_store_dwordx4 v[48:51], v{lin}, s[12:15], s23 offen sc1
             buffer_store_dwordx2 v[56:57], v{lin}, s[12:15], s24 offen sc1""".format(S=sS, c=WS_C, wo=WS_WO, lin=vLin))
        vm.add("S", 2)
    def fp_flag():
        A("""s_lshl_b32 s23, s{J}, 5
             s_add_u32 s23, s23, s{I}
             s_lshl_b32 s23, s23, 2
             s_add_u32 s23, s23, s{S}
             s_lshl_b32 s23, s23, 2
             s_add_u32 s23, s23, {f}
             v_mov_b32 v28, s{TAG}""".format(J=sJ, I=sI, S=sS, f=WS_FP, TAG=sTAG))
        one_lane(["buffer_store_dword v28, off, s[12:15], s23 sc1"])
        vm.add("F")
    QX, QW, XF, WF, XF2, WF2, ACC = 40, 44, 48, 64, 80, 96, 112
    def chore1():
        A("s_lshr_b32 s23, s%d, 1\ns_lshl_b32 s23, s23, 12\ns_sub_u32 s23, s23, %d" % (sS, L_URING))
        for ks in range(4):
            A("v_add_u32 v%d, s23, v%d" % (QX + ks, 32 + ks))
        A("""v_bfe_u32 v25, v{L}, 2, 2
             v_lshrrev_b32 v26, 5, v{L}
             v_lshl_add_u32 v26, v26, 3, v25
             v_lshlrev_b32 v{wa}, 7, v26
             v_bfe_u32 v26, v{L}, 4, 1
             s_lshl_b32 s23, s28, 1
             v_add_u32 v26, s23, v26
             v_and_b32 v25, 2, v25
             v_xor_b32 v26, v26, v25
             v_lshl_add_u32 v{wa}, v26, 5, v{wa}
             v_bfe_u32 v25, v{L}, 1, 1
             v_and_b32 v26, 1, v{L}
             v_lshl_add_u32 v25, v26, 1, v25
             v_lshl_add_u32 v{wa}, v25, 3, v{wa}
             v_add_u32 v{wa}, {base}, v{wa}
             v_lshlrev_b32 v{lin}, 4, v{L}
             s_lshl_b32 s23, s{J}, 2
             s_add_u32 s23, s23, s{TQ}
             s_lshl_b32 s23, s23, 1
             s_lshr_b32 s24, s{S}, 1
             s_add_u32 s32, s23, s24
             s_add_u32 s23, s{HG}, {dq}
             s_and_b32 s23, s23, 7
             s_lshl_b32 s23, s23, 1
             s_add_u32 s33, s23, s28
             s_lshl_b32 s23, s33, 17
             s_lshl_b32 s24, s32, 10
             s_add_u32 s23, s23, s24
             s_add_u32 s88, s23, {q}
             s_add_u32 s89, s88, 65536
             s_lshl_b32 s23, s{J}, 4
             s_add_u32 s23, s23, s33
             s_lshl_b32 s23, s23, 4
             s_and_b32 s24, s32, 7
             s_add_u32 s23, s23, s24
             s_lshl_b32 s23, s23, 2
             s_add_u32 s90, s23, {fq}
             s_add_u32 s91, s90, 32""".format(L=vL, wa=QW, base=L_RING + 4*8192, lin=vLin, J=sJ, TQ=sTQ, S=sS, HG=sHG, q=WS_Q, fq=WS_FQ, dq=DQ))
    def qreads(xf, wf, ks, off):
        A("ds_read_b128 %s, v%d offset:%d" % (v(xf + 4*ks, 4), QX + ks, off))
        A("ds_read_b64_tr_b16 %s, v%d offset:%d" % (v(wf + 4*ks, 2), QW, off + 2048*ks))
        A("ds_read_b64_tr_b16 %s, v%d offset:%d" % (v(wf + 4*ks + 2, 2), QW, off + 2048*ks + 512))
    UE, PE = 0, opts.get("pearly", 0)
    chores = {0: [chore0], 1: [chore1], 3: [chore5], 4: [chore6], 5: [chore7], 6: [chore8], 7: [chore9]}
    for t in range(8):
        vm.need("V%d" % t)
        if t == 0: stamp(1)
        bar()
        issue(10 + 3*t, min(13 + 3*t, 32))
        if t == 7:
            slot_load(30, 25); vm.add("slot")
        for f_ in chores.get(t, []): f_()
    vm.need("Q3", lg=0); bar()
    sets = ((XF, WF), (XF2, WF2))
    for ks in range(4): qreads(XF, WF, ks, 0)
    for c in range(8):
        xf, wf = sets[c & 1]; xn, wn = sets[(c + 1) & 1]
        if c == 3:
            vm.need("Q7"); A("s_barrier")
        for ks in range(4):
            wait(lg=9 if c < 7 else 9 - 3*ks)
            A("v_mfma_f32_32x32x16_bf16 %s, %s, %s, %s" % (v(ACC, 16), v(wf + 4*ks, 4), v(xf + 4*ks, 4), "0" if c == 0 and ks == 0 else v(ACC, 16)))
            if c < 7: qreads(xn, wn, ks, 8192*(c + 1))
    def signal(*ps):
        one_lane(["ds_add_u32 v%d, v%d offset:%d" % (vCA, vOne, 4 * p) for p in ps])
    def lds_wait(idx, n, tmp=25):
        l, d = lab("hb"), lab("hd")
        A("s_mov_b32 s%d, 0" % sSPIN)
        A.label(l)
        A("""ds_read_b32 v{t}, v{ca} offset:{o}
             s_add_u32 s{sp}, s{sp}, 1
             s_cmp_gt_u32 s{sp}, {SP}
             s_cbranch_scc1 {d}
             s_waitcnt lgkmcnt(0)
             v_cmp_gt_u32 vcc, {n}, v{t}
             s_nop 1
             s_cbranch_vccnz {l}""".format(t=tmp, ca=vCA, o=4*idx, sp=sSPIN, SP=SPIN, d=d, l=l, n=n))
        A.label(d)
    A("""s_lshr_b32 s23, s{I}, 1
         s_lshl_b32 s23, s23, 9
         s_add_u32 s50, s23, {f}
         s_mov_b64 s[62:63], 0
         s_lshl_b32 s61, s{I}, 17
         s_lshl_b32 s23, s{S}, 12
         s_add_u32 s61, s61, s23
         s_add_u32 s61, s61, {kvg}
         s_mov_b32 s51, s23""".format(I=sI, S=sS, f=WS_FKVG, kvg=WS_KVG))
    def remote(p, dma=True):
        l = lab("rb")
        A("""s_add_u32 s30, s{J}, {p}
             s_and_b32 s30, s30, 7
             s_lshl_b32 s31, s30, 3
             s_mov_b32 s{sp}, 0""".format(J=sJ, p=p, sp=sSPIN))
        A.label(l)
        A("""s_lshr_b64 s[24:25], s[62:63], s31
             s_and_b32 s24, s24, 0xff
             s_cmp_eq_u32 s24, 0xff
             s_cbranch_scc1 {l}g
             buffer_load_dwordx2 v[26:27], v{fa}, s[12:15], s50 offen sc1
             s_add_u32 s{sp}, s{sp}, 1
             s_cmp_gt_u32 s{sp}, {SP}
             s_cbranch_scc1 {l}g
             s_waitcnt vmcnt(0)
             v_cmp_eq_u32 s[62:63], s{TAG}, v26
             v_cmp_eq_u32 vcc, s{TAG}, v27
             s_nop 1
             s_and_b64 s[62:63], s[62:63], vcc
             s_branch {l}""".format(l=l, fa=vFA8, sp=sSPIN, SP=SPIN, TAG=sTAG))
        A.label(l + "g")
        if not dma: return
        A("""s_lshl_b32 s30, s30, 14
             s_add_u32 m0, s51, {dst}
             s_add_u32 s30, s30, s61""".format(dst=16384 * p))
        for k in range(4):
            A("buffer_load_dwordx4 v%d, s[12:15], s30 offen offset:%d sc1 lds" % (vLin, 1024 * k))
        vm.add("p%d" % p, 4)
    def ucompute(c, fill=(), arrive=None):
        o = USLOT[c] * 24576
        fill = list(fill)
        for ks in range(4):
            F = 80
            for w_ in range(3):
                A("ds_read_b128 %s, v%d offset:%d" % (v(F + 4*w_, 4), (36 if w_ == 0 else 32) + ks, o + (4096 if w_ == 2 else 0)))
            if fill: fill.pop(0)()
            wait(lg=0)
            if ks == 3 and arrive:
                vm.need(*arrive[0]); signal(*(arrive[1] + (11,)))
            for im in range(2):
                acc = UIM if im else URE
                A("v_mfma_f32_32x32x16_bf16 %s, %s, %s, %s" % (v(acc, 16), v(F, 4), v(F + 4 + 4*im, 4), "0" if (c == 0 and ks == 0) else v(acc, 16)))
        assert not fill
    def ufill(c):
        return [(lambda x=x: (A(x), vm.add("u%d" % c, 2))) for x in udma_parts(c)]
    hb = [0]
    def hwait():
        hb[0] += 4
        lds_wait(11, hb[0])
        if stamps == "hb": stamp(32 + hb[0] // 4)
    A("s_barrier")
    stamp(9)
    vm.need("slot")
    slot_eval(30)
    A("v_mov_b32 v25, 0x3eb8aa3b\nv_mov_b32 v26, s%d\ns_nop 1" % sTAG)
    for r in range(16):
        A("v_mul_f32 v%d, v25, v%d" % (ACC + r, ACC + r))
    for q in range(8):
        A("v_cvt_pk_bf16_f32 v%d, v%d, v%d" % (48 + q, ACC + 2*q, ACC + 2*q + 1))
    A("""buffer_store_dwordx4 v[48:51], v{lin}, s[12:15], s88 offen sc1
         buffer_store_dwordx4 v[52:55], v{lin}, s[12:15], s89 offen sc1
         v_mov_b32 v30, v26
         v_lshlrev_b32 v25, 2, v{L}
         v_add_u32 v25, {cnt}, v25
         v_mov_b32 v26, 0
         v_writelane_b32 v26, 8, 1
         v_writelane_b32 v26, 8, 2
         v_writelane_b32 v26, 4, 7
         v_writelane_b32 v26, 12, 8
         ds_write_b32 v25, v26""".format(L=vL, cnt=L_CNT, lin=vLin))
    chore11()
    wait(vm=0)
    vm.q = []
    A("s_mov_b64 exec, 1")
    mode_stores(["buffer_store_dword v30, off, s[12:15], s90", "buffer_store_dword v30, off, s[12:15], s91"])
    A("s_mov_b64 exec, -1")
    vm.add("fq", 2)
    wait(lg=0); A("s_barrier")
    stamp(2)
    remote(1)
    if PE: vm.need("S"); fp_flag()
    if not UE: udma(0)
    udma(1); udma(2)
    one_lane(["buffer_load_dword v162, off, s[12:15], s94 sc1"])
    vm.add("X")
    remote(3, False)
    stamp(3)
    if not UE:
        vm.need("u0"); signal(1, 11); hwait()
    ucompute(0, arrive=(("u1", "p1"), (1,) if UE else ()))
    remote(2); remote(4, False)
    if not PE: pre_loads()
    hwait(); ucompute(1, ufill(3), (("u2", "p2"), (2,)))
    hwait(); ucompute(2, ufill(4), (("u3",), ()))
    if not PE: prepass()
    hwait(); ucompute(3, ufill(5), (("u4",), ()))
    hwait(); ucompute(4, ufill(6), (("u5",), ()))
    if not PE: fp_flag()
    hwait(); ucompute(5, ufill(7), (("u6",), ()))
    remote(5, False)
    hwait(); ucompute(6, (), (("u7",), ()))
    hwait(); signal(3); ucompute(7)
    stamp(10)
    def pstep(dr, di, sr, si, ir, ii):
        A("""v_pk_fma_f32 {dr}, {l}, {sr}, {ir} op_sel_hi:[0,1,1]
             v_pk_fma_f32 {di}, {l}, {si}, {ii} op_sel_hi:[0,1,1]
             v_pk_fma_f32 {dr}, {l}, {si}, {dr} op_sel:[1,0,0] neg_lo:[1,0,0] neg_hi:[1,0,0]
             v_pk_fma_f32 {di}, {l}, {sr}, {di} op_sel:[1,0,0]""".format(dr=v(dr, 2), di=v(di, 2), sr=v(sr, 2), si=v(si, 2), ir=v(ir, 2), ii=v(ii, 2), l=v(LAM, 2)))
    def cacc2(dr, di, p, xr, xi):
        A("""v_fmac_f32 v{dr}, v{p}, v{xr}
             v_fmac_f32 v{di}, v{p}, v{xi}
             v_fma_f32 v{dr}, -v{p1}, v{xi}, v{dr}
             v_fmac_f32 v{di}, v{p1}, v{xr}""".format(dr=dr, di=di, p=p, p1=p+1, xr=xr, xi=xi))
    A("s_nop 7\ns_nop 3")
    pr, pi = URE, UIM
    for k in range(1, 8):
        nr, ni = (40, 42) if k % 2 else (44, 46)
        pstep(nr, ni, pr, pi, URE + 2*k, UIM + 2*k)
        pr, pi = nr, ni
    cacc2(41, 43, L8, 40, 42)
    A("""v_mov_b32 v44, v41
         v_mov_b32 v45, v43
         v_mov_b32 v46, v41
         v_mov_b32 v47, v43
         s_nop 1
         v_permlane32_swap_b32 v44, v46
         v_permlane32_swap_b32 v45, v47""")
    cacc2(46, 47, MU, 44, 45)
    A("ds_write_b64 v%d, v[46:47]" % vXWw)
    wait(lg=0)
    signal(10)
    lds_wait(10, 4)
    WX = 24
    for k in range(4):
        A("ds_read_b64 %s, v%d offset:%d" % (v(WX + 2*k, 2), vXWb, 256 * k))
    A("""s_add_u32 s4, s12, {e}
         s_addc_u32 s5, s13, 0
         s_mov_b32 s6, 0x20000
         s_mov_b32 s7, 0x20000
         s_lshl_b32 s23, s26, 13
         s_lshl_b32 s24, s{S}, 3
         s_lshl_b64 s[24:25], 0xff, s24
         v_mov_b32 v53, s{TAG}
         v_mov_b32 v55, s{TAG}""".format(e=WS_E, S=sS, TAG=sTAG))
    wait(lg=0)
    A("v_mov_b32 v48, v26\nv_mov_b32 v49, v27\nv_mov_b32 v50, v28\nv_mov_b32 v51, v29\nv_mov_b32 v52, v30\nv_mov_b32 v54, v31")
    cacc2(48, 49, NU, 24, 25)
    cacc2(50, 51, NU, 48, 49)
    cacc2(52, 54, NU, 50, 51)
    A("""s_mov_b64 exec, s[24:25]
         buffer_store_dwordx4 v[52:55], v%d, s[4:7], s23 offen sc1
         s_mov_b64 exec, -1""" % vCh16)
    for k in range(6): A("v_mov_b32 v%d, v%d" % (2 + k, WX + k))
    remote(6, False); remote(7, False); signal(4, 5)
    stamp(11)
    EX = 48
    A("v_mov_b32 v80, v%d" % vEb)
    for n in range(1, 8):
        A("v_subrev_u32 v%d, 8192, v%d" % (80 + n, 80 + n - 1))
    def e_loads():
        for n in range(8):
            A("buffer_load_dwordx4 %s, v%d, s[4:7], 0 offen sc1" % (v(EX + 4*n, 4), 80 + n))
    e_loads()
    A("s_lshl_b32 s28, s%d, 9\ns_add_u32 s28, s28, %d" % (sHG, WS_FP))
    l, d = lab("pp"), lab("pd")
    A("s_mov_b32 s%d, 0" % sSPIN)
    A.label(l)
    A("""buffer_load_dwordx2 v[26:27], v{fa}, s[12:15], s28 offen sc1
         s_add_u32 s{sp}, s{sp}, 1
         s_cmp_gt_u32 s{sp}, {SP}
         s_cbranch_scc1 {d}
         s_waitcnt vmcnt(0)
         v_cmp_ne_u32 s[24:25], s{TAG}, v26
         v_cmp_ne_u32 vcc, s{TAG}, v27
         s_nop 1
         s_or_b64 vcc, vcc, s[24:25]
         s_cbranch_vccnz {l}""".format(fa=vFA8, sp=sSPIN, SP=SPIN, d=d, l=l, TAG=sTAG))
    A.label(d)
    wait(vm=0)
    signal(6)
    A("""v_lshlrev_b32 v25, 7, v{L}
         s_lshl_b32 s23, s{HG}, 2
         s_add_u32 s23, s23, s{TQ}
         s_lshl_b32 s23, s23, 2
         s_add_u32 s23, s23, s{S}
         s_lshl_b32 s24, s23, 13
         s_add_u32 s24, s24, {c}
         s_lshl_b32 s23, s23, 12
         s_add_u32 s23, s23, {wo}
         buffer_load_dword v164, v25, s[12:15], s24 offen sc1
         s_mov_b32 exec_hi, 0
         buffer_load_dword v165, v25, s[12:15], s23 offen sc1
         s_mov_b32 exec_hi, -1""".format(L=vL, HG=sHG, TQ=sTQ, S=sS, c=WS_C, wo=WS_WO, J=sJ, I=sI, o=WS_O, fo=WS_FO))
    stamp(4)
    A("s_mov_b32 s%d, 0" % sSPIN)
    A.label("L_EC")
    A("s_mov_b64 s[30:31], -1")
    for n in range(8):
        A("""v_cmp_eq_u32 s[24:25], s{TAG}, v{t1}
             v_cmp_eq_u32 vcc, s{TAG}, v{t2}
             s_cmp_le_u32 s26, {n}
             s_cselect_b32 s28, -1, 0
             s_cmp_le_u32 s26, {n8}
             s_cselect_b32 s29, -1, 0
             s_and_b64 vcc, vcc, s[24:25]
             s_or_b64 vcc, vcc, s[28:29]
             s_and_b64 s[30:31], s[30:31], vcc""".format(TAG=sTAG, t1=EX+4*n+1, t2=EX+4*n+3, n=n, n8=n+8))
    A("""s_cmp_eq_u64 s[30:31], -1
         s_cbranch_scc1 L_EG
         s_add_u32 s{sp}, s{sp}, 1
         s_cmp_gt_u32 s{sp}, {SP}
         s_cbranch_scc1 L_EG""".format(sp=sSPIN, SP=SPIN))
    e_loads()
    wait(vm=0)
    A("s_branch L_EC")
    A.label("L_EG")
    for n in range(6, -1, -1):
        cacc2(EX + 4*n, EX + 4*n + 2, RHO, EX + 4*n + 4, EX + 4*n + 6)
    A("""v_mov_b32 v30, v{r}
         v_mov_b32 v31, v{i}
         s_nop 1
         v_permlane32_swap_b32 v30, v{r}
         v_permlane32_swap_b32 v31, v{i}""".format(r=EX, i=EX+2))
    cacc2(30, 31, RHO8, EX, EX + 2)
    for k in range(3):
        A("s_cmp_le_u32 s%d, %d\ns_cbranch_scc1 L_PG" % (sS, k))
        cacc2(2 + 2*k, 3 + 2*k, NU, 30, 31)
        A("v_mov_b32 v30, v%d\nv_mov_b32 v31, v%d" % (2 + 2*k, 3 + 2*k))
    A.label("L_PG")
    A("s_mov_b32 exec_lo, 0")
    cacc2(44, 45, MU, 30, 31)
    A("v_mov_b32 v30, v44\nv_mov_b32 v31, v45\ns_mov_b32 exec_lo, -1")
    cacc2(40, 42, L8, 30, 31)
    A("v_mov_b32 v24, v30\nv_mov_b32 v25, v40\nv_mov_b32 v26, v31\nv_mov_b32 v27, v42")
    pr, pi = 24, 26
    for k in range(8):
        pstep(URE + 2*k, UIM + 2*k, pr, pi, URE + 2*k, UIM + 2*k)
        pr, pi = URE + 2*k, UIM + 2*k
    for base, dst in ((URE, 48), (UIM, 56)):
        for k in range(8):
            r0 = 4 * (k & 3) + (k >> 2)
            A("v_cvt_pk_bf16_f32 v%d, v%d, v%d" % (dst + k, base + r0, base + r0 + 2))
    A("""ds_write_b128 v{g}, v[48:51]
         ds_write_b128 v{g}, v[52:55] offset:16
         ds_write_b128 v{g}, v[56:59] offset:2048
         ds_write_b128 v{g}, v[60:63] offset:2064
         s_mov_b32 s29, s93
         s_lshl_b32 s23, s92, 4
         s_add_u32 s23, s23, s27
         s_lshl_b32 s23, s23, 2
         s_add_u32 s30, s23, {fg}
         s_lshr_b32 s25, s{S}, 1
         s_lshl_b32 s28, s32, 6
         s_lshl_b32 s24, s25, 5
         s_add_u32 s28, s28, s24
         s_add_u32 s28, s28, {fg}
         s_lshl_b32 s24, s25, 15
         s_lshl_b32 s60, s32, 16
         s_add_u32 s60, s60, s24
         s_add_u32 s60, s60, {gi}
         s_lshl_b32 s59, s33, 16
         s_add_u32 s59, s59, s24
         s_add_u32 s59, s59, {c}
         s_lshl_b32 s57, s{HG}, 12
         v_mov_b32 v29, s{TAG}""".format(g=vGw, S=sS, gi=WS_G, fg=WS_FG, c=WS_C, TAG=sTAG, HG=sHG))
    wait(lg=0)
    for f in range(4):
        for rd in range(2):
            A("ds_read_b64_tr_b16 %s, v%d offset:%d" % (v(64 + 4*f + 2*rd, 2), vGr, f * 1024 + rd * 256))
    wait(lg=0)
    if opts.get("gst", 1):
        for f in range(4): A("buffer_store_dwordx4 %s, v%d, s[12:15], s29 offen offset:%d sc1" % (v(64 + 4*f, 4), vLin, 1024*f))
    else:
        mode_stores(["buffer_store_dwordx4 %s, v%d, s[12:15], s29 offen offset:%d" % (v(64 + 4*f, 4), vLin, 1024*f) for f in range(4)])
    wait(vm=0)
    A("s_mov_b64 exec, 1")
    mode_stores(["buffer_store_dword v29, off, s[12:15], s30"])
    A("s_mov_b64 exec, -1")
    stamp(5)
    yLin, yXe, yDk, yYw, yYr, yOa = vLin, vXe, vDk, vYw, vYr, vOa
    poll_all(vFG, "s28", 25)
    stamp(6)
    YA = 96
    A("s_setprio %d" % opts.get("yprio", 0))
    ND = 4
    def yload(k, w_):
        A("buffer_load_dwordx4 %s, v%d, s[12:15], s%d offen offset:%d sc1" % (v(YR + 12*k + 4*w_, 4), yLin, 53 + w_, 1024 * k))
    def ymm(k, dt, z=False):
        acc = v(YA + 16*dt, 16)
        A("v_mfma_f32_32x32x16_bf16 %s, %s, %s, %s" % (acc, v(YR + 12*k + 8*dt, 4), v(YR + 12*k + 4, 4), "0" if z else acc))
    def yadv():
        A("""s_add_u32 s57, s57, 4096
             s_and_b32 s57, s57, 0x7fff
             s_add_u32 s53, s59, s57
             s_add_u32 s54, s60, s57
             s_xor_b32 s55, s53, 65536""")
    def ygroup(z, more, extra=0):
        for k in range(ND):
            base = (9 if more else 9 - 3*k) + extra
            wait(vm=base + 1); ymm(k, 0, z and k == 0)
            if more: yload(k, 0)
            wait(vm=base + (1 if more else 0)); ymm(k, 1, z and k == 0)
            if more: yload(k, 1); yload(k, 2)
    yadv()
    for k in range(ND):
        for w_ in range(3): yload(k, w_)
    yadv(); ygroup(True, True)
    A("s_mov_b32 s58, 0")
    A.label("L_Y")
    yadv(); ygroup(False, True)
    A("s_add_u32 s58, s58, 1\ns_cmp_lt_u32 s58, 6\ns_cbranch_scc1 L_Y")
    A("""global_load_dwordx2 v[6:7], v{dk}, s[{pd}:{pd1}]
         s_mov_b32 s23, 8192
         s_mov_b32 s24, 16384
         s_mov_b32 s25, 24576
         buffer_load_dwordx2 v[8:9], v{xe}, s[40:43], 0 offen
         buffer_load_dwordx2 v[10:11], v{xe}, s[40:43], s23 offen
         buffer_load_dwordx2 v[12:13], v{xe}, s[40:43], s24 offen
         buffer_load_dwordx2 v[14:15], v{xe}, s[40:43], s25 offen""".format(dk=yDk, pd=P_DSK, pd1=P_DSK+1, xe=yXe))
    A("""s_lshl_b32 s23, s{J}, 2
         s_add_u32 s23, s23, s{S}
         s_lshl_b32 s24, s23, 16
         s_lshl_b32 s25, s{I}, 10
         s_add_u32 s24, s24, s25
         s_add_u32 s24, s24, {o}
         v_and_b32 v2, 7, v{L}
         v_lshlrev_b32 v2, 7, v2
         v_bfe_u32 v3, v{L}, 3, 1
         v_lshl_add_u32 v2, v3, 15, v2
         v_add_u32 v2, s24, v2
         s_lshl_b32 s23, s23, 8
         s_add_u32 s23, s23, {fo}
         v_writelane_b32 v2, s23, 16
         s_add_u32 s23, s23, 128
         v_writelane_b32 v2, s23, 17
         s_mov_b64 exec, 0x3ffff
         buffer_load_dword v163, v2, s[12:15], 0 offen sc1
         s_mov_b64 exec, -1""".format(L=vL, HG=sHG, TQ=sTQ, S=sS, c=WS_C, wo=WS_WO, J=sJ, I=sI, o=WS_O, fo=WS_FO))
    ygroup(False, False, 6)
    A("""s_setprio 3
         s_mov_b32 s36, s{po}
         s_mov_b32 s37, s{po1}
         s_mov_b32 s38, 0x800000
         s_mov_b32 s39, 0x20000
         v_add_u32 v24, s34, v{lin}
         v_xor_b32 v25, 8192, v24
         s_nop 4""".format(po=P_OUT, po1=P_OUT+1, lin=yLin, S=sS))
    for g in range(4): A("ds_write_b128 v24, %s offset:%d" % (v(YA + 16 + 4*g, 4), 1024*g))
    wait(lg=0); signal(12); lds_wait(12, 4, 28)
    for g in range(4): A("ds_read_b128 %s, v25 offset:%d" % (v(YA + 16 + 4*g, 4), 1024*g))
    A("""v_xor_b32 v25, 32, v{yw}
         v_xor_b32 v26, 64, v{yw}
         v_xor_b32 v27, 96, v{yw}""".format(yw=yYw))
    wait(lg=0); signal(13)
    for r in range(16): A("v_add_f32 v%d, v%d, v%d" % (YA + r, YA + r, YA + 16 + r))
    lds_wait(13, 4, 28)
    for g in range(4):
        A("ds_write_b128 v%d, %s" % (yYw if g == 0 else 24 + g, v(YA + 4*g, 4)))
    wait(lg=0)
    A("""s_lshl_b32 s23, s32, 17
         s_lshl_b32 s24, s33, 7
         s_add_u32 s23, s23, s24""")
    wait(vm=1)
    for n in range(4):
        A("ds_read_b128 %s, v%d offset:%d" % (v(32 + 4*n, 4), vYr, 1024*n))
    A("""v_lshlrev_b32 v22, 16, v6
         v_and_b32 v23, 0xffff0000, v6
         v_lshlrev_b32 v24, 16, v7
         v_and_b32 v25, 0xffff0000, v7""")
    for n in range(4):
        x = 8 + 2*n
        A("""v_lshlrev_b32 v26, 16, v{x}
             v_and_b32 v27, 0xffff0000, v{x}
             v_lshlrev_b32 v28, 16, v{x1}
             v_and_b32 v29, 0xffff0000, v{x1}""".format(x=x, x1=x+1))
        wait(lg=3 - n)
        for e in range(4):
            A("v_fmac_f32 v%d, v%d, v%d" % (32 + 4*n + e, 26 + e, 22 + e))
        A("buffer_store_dwordx4 %s, v%d, s[36:39], s23 offen %s" % (v(32 + 4*n, 4), vOa, opts.get("ystore", "sc1")))
        if n < 3: A("s_add_u32 s23, s23, 32768")
    stamp(7)
    if stamps != "pad": stamp_out()
    A("s_endpgm")

    A.label("L_ATT")
    barn[0] = None
    vXa, vWa, vWc = 2, 6, 7
    XF, WF, XF2, WF2, ACC = 16, 32, 48, 64, 80
    sP, sTT = 48, 49
    A("""s_and_b32 s{p}, s3, 1
         s_lshr_b32 s{tt}, s3, 1
         s_and_b32 s{tt}, s{tt}, 1
         s_mov_b32 s{vm}, 0xffff
         s_mov_b32 s{vm1}, 0xffff""".format(p=sP, tt=sTT, vm=sVM, vm1=sVM+1))
    if opts.get("codepf", True):
        A("""s_cmp_eq_u32 s3, 6
             s_cbranch_scc0 L_NOPF
             s_getpc_b64 s[24:25]
             L_PC:
             s_sub_u32 s24, s24, L_PC-L_START
             s_subb_u32 s25, s25, 0
             v_lshlrev_b32 v8, 7, v1
             global_load_dword v160, v8, s[24:25]
             v_add_u32 v8, 8192, v8
             global_load_dword v161, v8, s[24:25]
             v_add_u32 v8, 8192, v8
             v_min_u32 v8, L_CODE_END-L_START-4, v8
             global_load_dword v162, v8, s[24:25]""")
        A.label("L_NOPF")
    frag_addr(vXa, 8, 9)
    A("s_lshl_b32 s23, s%d, 12" % sTT)
    for ks in range(4):
        A("v_add_u32 v%d, s23, v%d" % (vXa + ks, vXa + ks))
    A("""v_bfe_u32 v8, v{L}, 2, 2
         v_lshrrev_b32 v9, 5, v{L}
         v_lshl_add_u32 v9, v9, 3, v8
         v_lshlrev_b32 v{wa}, 7, v9
         v_bfe_u32 v9, v{L}, 4, 1
         s_lshl_b32 s23, s{p}, 1
         v_add_u32 v9, s23, v9
         v_and_b32 v8, 2, v8
         v_xor_b32 v9, v9, v8
         v_lshl_add_u32 v{wa}, v9, 5, v{wa}
         v_and_b32 v8, 3, v{L}
         s_waitcnt lgkmcnt(0)
         s_add_u32 s12, s12, {wso}
         s_addc_u32 s13, s13, 0
         s_load_dword s{ep}, s[12:13], 0""".format(wso=WSO, L=vL, wa=vWa, p=sP, ep=sEP))
    for r in range(16): A("v_mov_b32 v%d, 0" % (ACC + r))
    A("""s_lshl_b32 s23, s{J}, 2
         s_add_u32 s23, s23, s{TQ}
         s_lshl_b32 s23, s23, 1
         s_add_u32 s51, s23, s{tt}
         s_lshr_b32 s25, s3, 2
         s_mul_i32 s23, s25, {dv}
         s_add_u32 s23, s23, s{HG}
         s_and_b32 s23, s23, 7
         s_lshl_b32 s23, s23, 1
         s_add_u32 s61, s23, s{p}
         s_lshl_b32 s52, s61, 18
         s_lshl_b32 s24, s51, 11
         s_add_u32 s50, s52, s24
         s_lshl_b32 s23, s{TQ}, 1
         s_add_u32 s23, s23, s25
         s_lshl_b32 s23, s23, 1
         s_add_u32 s23, s23, s{tt}
         s_lshl_b32 s23, s23, 2
         s_lshl_b32 s24, s{J}, 4
         s_add_u32 s24, s24, s61
         s_lshl_b32 s24, s24, 6
         s_add_u32 s59, s24, s23
         s_add_u32 s59, s59, {fl}
         s_lshl_b32 s24, s61, 3
         s_add_u32 s24, s24, s{J}
         s_lshl_b32 s24, s24, 6
         s_add_u32 s60, s24, s23
         s_add_u32 s60, s60, {fg}
         v_lshlrev_b32 v11, 4, v{L}
         s_lshl_b32 s30, s3, 11
         s_lshl_b32 s23, s{I}, 17
         s_add_u32 s23, s23, s30
         s_add_u32 s62, s23, {kvg}
         s_lshl_b32 s24, s{J}, 14
         s_add_u32 s29, s62, s24
         s_lshr_b32 s24, s{I}, 1
         s_lshl_b32 s23, s{J}, 4
         s_add_u32 s23, s23, s24
         s_lshl_b32 s23, s23, 6
         s_add_u32 s28, s23, {fl}
         s_lshl_b32 s23, s24, 3
         s_add_u32 s23, s23, s{J}
         s_lshl_b32 s23, s23, 6
         s_add_u32 s31, s23, {fg}
         s_lshl_b32 s23, s{J}, 5
         s_add_u32 s23, s23, s{I}
         s_lshl_b32 s23, s23, 3
         s_add_u32 s23, s23, s3
         s_lshl_b32 s23, s23, 2
         s_add_u32 s32, s23, {fq}
         s_lshl_b32 s24, s{J}, 3
         s_add_u32 s34, s24, s3
         s_lshl_b32 s23, s{I}, 6
         s_add_u32 s23, s23, s34
         s_lshl_b32 s23, s23, 10
         s_add_u32 s33, s23, {q}
         v_mov_b32 v144, v11
         v_mov_b32 v145, 1
         s_waitcnt lgkmcnt(0)""".format(J=sJ, I=sI, TQ=sTQ, tt=sTT, HG=sHG, p=sP, fl=WS_FL, fg=WS_FKVG, L=vL, dv=DV, kvg=WS_KVG, fq=WS_FQ, q=WS_Q))
    tag_from_epoch()
    A("v_mov_b32 v10, s%d" % sTAG)
    A("s_cmp_ge_u32 s3, 4\ns_cbranch_scc1 L_VPRE")
    A("""v_lshrrev_b32 v9, 1, v8
         v_lshlrev_b32 v8, 1, v8
         v_and_b32 v8, 2, v8
         v_or_b32 v9, v9, v8
         v_lshl_add_u32 v{wa}, v9, 3, v{wa}""".format(wa=vWa))
    def reads(xf, wf, ks, xoff, woff):
        A("ds_read_b128 %s, v%d offset:%d" % (v(xf + 4*ks, 4), vXa + ks, xoff))
        A("ds_read_b64_tr_b16 %s, v%d offset:%d" % (v(wf + 4*ks, 2), vWc, woff + 2048*ks))
        A("ds_read_b64_tr_b16 %s, v%d offset:%d" % (v(wf + 4*ks + 2, 2), vWc, woff + 2048*ks + 512))
    def kv_loop(lbl, is_k):
        A.label(lbl)
        bar()
        A("v_add_u32 v%d, s56, v%d" % (vWc, vWa))
        for ks in range(4): reads(XF, WF, ks, 0, 0)
        A("""s_add_u32 s56, s56, s57
             s_cmp_ge_u32 s56, 163840
             s_cselect_b32 s23, 98304, 0
             s_sub_u32 s56, s56, s23""")
        for ks in range(4):
            wait(lg=9 - 3*ks)
            a_, b_ = (WF, XF) if is_k else (XF, WF)
            A("v_mfma_f32_32x32x16_bf16 %s, %s, %s, %s" % (v(ACC, 16), v(a_ + 4*ks, 4), v(b_ + 4*ks, 4), v(ACC, 16)))
            A("v_add_u32 v%d, 8192, v%d" % (vXa + ks, vXa + ks))
        A("s_add_u32 s58, s58, 1\ns_and_b32 s23, s58, 7\ns_cbranch_scc1 %s" % lbl)
    PK = 96
    A("""v_mov_b32 v14, v11
         s_add_u32 s53, s50, {g}
         s_add_u32 s54, s53, 131072
         s_mov_b32 s58, 0
         s_mov_b32 s56, {ring}
         s_mov_b32 s57, 16384""".format(g=WS_KVG, ring=L_RING))
    kv_loop("L_K", True)
    A("s_branch L_KVE")

    A.label("L_VPRE")
    A("v_lshl_add_u32 v%d, v8, 3, v%d" % (vWa, vWa))
    A("s_cmp_eq_u32 s3, 7\ns_cbranch_scc0 L_VP3")
    A("""v_mov_b32 v100, s{TAG}
         v_mov_b32 v101, s{X}
         s_lshl_b32 s23, s{J}, 5
         s_add_u32 s23, s23, s{I}
         s_lshl_b32 s23, s23, 3
         s_add_u32 s23, s23, {x}""".format(TAG=sTAG, X=sXCC, J=sJ, I=sI, x=WS_XCC))
    one_lane(["buffer_store_dwordx2 v[100:101], off, s[12:15], s23 sc1"])
    A.label("L_VP3")
    A("""v_bfe_u32 v14, v{L}, 4, 1
         v_lshlrev_b32 v14, 17, v14
         v_lshrrev_b32 v9, 5, v{L}
         v_lshl_add_u32 v14, v9, 9, v14
         v_and_b32 v9, 15, v{L}
         v_lshl_add_u32 v14, v9, 4, v14
         s_add_u32 s53, s50, {g}
         s_add_u32 s54, s53, 256""".format(L=vL, g=WS_KVG + 1024))
    A("s_mov_b32 s58, 0\ns_mov_b32 s56, %d\ns_mov_b32 s57, 16384" % (L_RING + 8192))
    kv_loop("L_V", False)
    A.label("L_KVE")
    bar()
    stamp(1)
    slot_load(12, 8)
    A("s_nop 1")
    for q in range(8):
        A("v_cvt_pk_bf16_f32 v%d, v%d, v%d" % (PK + q, ACC + 2*q, ACC + 2*q + 1))
    A("""buffer_store_dwordx4 v[96:99], v14, s[12:15], s53 offen sc1
         buffer_store_dwordx4 v[100:103], v14, s[12:15], s54 offen sc1""")
    bar()
    vKA, vCN, vCA2, Q, K, V0, V1, P, S0, S1, O = 2, 3, 28, 4, 8, 12, 16, 20, 32, 48, 64
    WOF, OF, WACC = 80, 16, 48
    A("""s_mov_b32 s50, s34
         v_mov_b32 v{ka}, v11
         s_lshr_b32 s52, s3, 1
         s_lshl_b32 s23, s{HG}, 3
         s_add_u32 s23, s23, s52
         s_lshl_b32 s23, s23, 13
         s_add_u32 s53, s23, {wo}
         v_mov_b32 v{ca}, {cnt}
         v_lshlrev_b32 v30, 2, v{L}
         v_cmp_gt_u32 s[26:27], 16, v{L}""".format(ka=vKA, HG=sHG, wo=WS_WO, ca=vCA2, cnt=L_CNT + 4, L=vL))
    for r in range(16): A("v_mov_b32 v%d, 0" % (O + r))
    bar()
    wait(vm=0)
    stamp(2)
    one_lane(["buffer_store_dword v10, off, s[12:15], s59"])
    slot_eval(12)
    A("s_cmp_eq_u32 s%d, 0\ns_cbranch_scc0 L_KF\ns_mov_b32 s28, s31" % sFAST)
    one_lane(["buffer_store_dword v10, off, s[12:15], s60 sc1"])
    A.label("L_KF")
    A("""v_add_u32 v30, s28, v30
         v_mov_b32 v31, s32
         v_cndmask_b32 v30, v31, v30, s[26:27]""")
    poll_all(30, "0", 29)
    A("""s_mov_b32 m0, s30
         s_nop 0
         buffer_load_dwordx4 v11, s[12:15], s29 offen sc1 lds
         buffer_load_dwordx4 v11, s[12:15], s29 offen offset:1024 sc1 lds
         buffer_load_dwordx4 %s, v11, s[12:15], s33 offen sc1""" % v(Q, 4))
    one_lane(["buffer_store_dword v10, off, s[12:15], s60 sc1"])
    stamp(8)
    if opts.get("onerow", True):
        A("""v_and_b32 v29, 31, v{L}
             v_cmp_eq_u32 vcc, 16, v29
             v_mov_b32 v29, 0x3f803f80
             s_nop 0""".format(L=vL))
        for r in range(8): A("v_cndmask_b32 v%d, 0, v29, vcc" % (V0 + r))
    else:
        for r in range(8): A("v_mov_b32 v%d, 0x3f803f80" % (V0 + r))
    def vreads(off):
        A("""s_mov_b64 exec, s[{m}:{m1}]
             ds_read_b128 {a}, v{ka} offset:{o0}
             ds_read_b128 {b}, v{ka} offset:{o1}
             s_mov_b64 exec, -1""".format(m=sVM, m1=sVM+1, a=v(V0, 4), b=v(V1, 4), ka=vKA, o0=off + 1024, o1=off + 1280))
    HI = opts.get("hi", 6.5)
    if HI:
        A("s_cmp_ge_u32 s3, 4\ns_cbranch_scc0 L_PR\ns_setprio 1")
        A.label("L_PR")
    wait(vm=1); bar()
    A("ds_read_b128 %s, v%d" % (v(K, 4), vKA))
    wait(lg=0)
    stamp(3); cstamp(14)
    A("v_mfma_f32_32x32x16_bf16 %s, %s, %s, 0" % (v(S0, 16), v(K, 4), v(Q, 4)))
    A("ds_read_b128 %s, v%d offset:2048" % (v(K, 4), vKA))
    vreads(0)
    A("s_mov_b32 s58, 0\ns_nop 7")
    A("v_exp_f32 v%d, v%d\nv_exp_f32 v%d, v%d" % (S0, S0, S0 + 1, S0 + 1))
    A(".p2align 6")
    A.label("L_A")
    def prio(x, nm):
        A("s_cmp_ge_u32 s3, 4\ns_cbranch_scc1 %s\ns_setprio %d" % (nm, x))
        A.label(nm)
    for t in range(8):
        S, N = (S0, S1) if t % 2 == 0 else (S1, S0)
        if HI and t == 0: prio(2, "L_PA")
        if t == 1:
            A("s_cmp_lg_u32 s58, 0\ns_cbranch_scc1 L_DM")
            A.label("L_DR")
        if HI and t == int(HI) and HI == int(HI): prio(0, "L_PB")
        for e in range(2, 8): A("v_exp_f32 v%d, v%d" % (S + e, S + e))
        wait(lg=0)
        A("v_mfma_f32_32x32x16_bf16 %s, %s, %s, 0" % (v(N, 16), v(K, 4), v(Q, 4)))
        for q in range(4): A("v_cvt_pk_bf16_f32 v%d, v%d, v%d" % (P + q, S + 2*q, S + 2*q + 1))
        for e in (8, 9): A("v_exp_f32 v%d, v%d" % (S + e, S + e))
        A("v_mfma_f32_32x32x16_bf16 %s, %s, %s, %s" % (v(O, 16), v(V0, 4), v(P, 4), v(O, 16)))
        if HI and t == int(HI) and HI != int(HI): prio(0, "L_PB")
        for e in range(10, 16): A("v_exp_f32 v%d, v%d" % (S + e, S + e))
        if t == 6:
            A("v_readfirstlane_b32 s23, v%d" % vCN)
        for q in range(4, 8): A("v_cvt_pk_bf16_f32 v%d, v%d, v%d" % (P + q, S + 2*q, S + 2*q + 1))
        for e in (0, 1): A("v_exp_f32 v%d, v%d" % (N + e, N + e))
        A("v_mfma_f32_32x32x16_bf16 %s, %s, %s, %s" % (v(O, 16), v(V1, 4), v(P + 4, 4), v(O, 16)))
        if t == 6:
            A("s_cmp_lt_u32 s23, 12\ns_cbranch_scc1 L_AW")
            A.label("L_AR")
            A("s_cmp_ge_u32 s58, 6\ns_cbranch_scc1 L_WP")
            A.label("L_WR")
        A("ds_read_b128 %s, v%d offset:%d" % (v(K, 4), vKA, 2048 * (t + 2)))
        if t == 5:
            A("ds_read_b32 v%d, v%d" % (vCN, vCA2))
        vreads(2048 * (t + 1))
    A("""v_add_u32 v{ka}, 16384, v{ka}
         v_add_u32 v{ca}, 4, v{ca}
         s_add_u32 s58, s58, 1
         s_cmp_lt_u32 s58, 8
         s_cbranch_scc1 L_A""".format(ka=vKA, ca=vCA2))
    stamp(4); cstamp(15)
    def rowsum():
        if opts.get("onerow", True):
            A("""v_mov_b32 v30, v{l}
                 s_nop 1
                 v_permlane32_swap_b32 v{l}, v30""".format(l=O + 8))
    A("""s_setprio 2
         s_lshl_b32 s23, s50, 5
         s_add_u32 s51, s23, s{I}
         s_lshl_b32 s23, s51, 10
         s_add_u32 s56, s23, {o}
         s_mov_b32 s23, 0x33800000
         s_mov_b32 s24, 0x53800000
         s_mov_b32 s25, 0x7f800000
         s_nop 1""".format(I=sI, o=WS_O))
    rowsum()
    A("""v_max3_f32 v8, |v{o0}|, |v{o1}|, |v{o2}|
         v_max3_f32 v9, |v{o3}|, |v{o4}|, |v{o5}|
         v_max3_f32 v8, |v{o6}|, |v{o7}|, v8
         v_cmp_le_f32 s[26:27], s23, v{l}
         v_cmp_ge_f32 s[28:29], s24, v{l}
         v_max_f32 v8, v8, v9
         v_add_f32 v9, v{o0}, v{o1}
         v_add_f32 v10, v{o2}, v{o3}
         v_add_f32 v11, v{o4}, v{o5}
         v_add_f32 v29, v{o6}, v{o7}
         v_add_f32 v9, v9, v10
         v_add_f32 v11, v11, v29
         v_cmp_gt_f32 s[30:31], s25, v8
         v_cmp_o_f32 vcc, v9, v11
         s_and_b64 s[26:27], s[26:27], s[28:29]
         s_and_b64 s[30:31], s[30:31], vcc
         s_and_b64 s[26:27], s[26:27], s[30:31]
         s_cmp_eq_u64 s[26:27], -1
         s_cbranch_scc0 L_FB""".format(o0=O, o1=O+1, o2=O+2, o3=O+3, o4=O+4, o5=O+5, o6=O+6, o7=O+7, l=O+8))
    A.label("L_FBR")
    A("v_rcp_f32 v29, v%d\ns_nop 0" % (O + 8))
    for r in range(8): A("v_mul_f32 v%d, v%d, v29" % (O + r, O + r))
    for q in range(4): A("v_cvt_pk_bf16_f32 v%d, v%d, v%d" % (8 + q, O + 2*q, O + 2*q + 1))
    mode_stores(["buffer_store_dwordx4 v[8:11], v144, s[12:15], s56 offen"])
    A("""s_lshl_b32 s23, s{J}, 2
         s_add_u32 s23, s23, s{TQ}
         s_lshl_b32 s23, s23, 1
         s_add_u32 s23, s23, s{p}
         s_lshl_b32 s23, s23, 2
         s_add_u32 s23, s23, s52
         s_lshl_b32 s54, s23, 13
         s_add_u32 s54, s54, {o}
         s_add_u32 s57, s54, 4096
         s_lshl_b32 s55, s23, 5
         s_add_u32 s55, s55, {fo}
         s_lshl_b32 s26, s51, 2
         s_add_u32 s26, s26, {fo}
         v_mov_b32 v10, s{TAG}
         v_and_b32 v3, 7, v{L}
         v_lshlrev_b32 v3, 2, v3""".format(L=vL, J=sJ, TQ=sTQ, p=sP, o=WS_O, fo=WS_FO, TAG=sTAG).replace("v10", "v145"))
    wait(vm=0)
    A("s_mov_b64 exec, 1")
    mode_stores(["buffer_store_dword v145, off, s[12:15], s26"])
    A("s_mov_b64 exec, -1")
    stamp(5)
    A("""s_lshl_b32 s23, s3, 13
         v_and_b32 v4, 31, v{L}
         v_lshrrev_b32 v5, 5, v{L}
         v_xor_b32 v5, v5, v4
         v_and_b32 v5, 7, v5
         v_lshlrev_b32 v5, 4, v5
         v_lshl_add_u32 v4, v4, 7, v5
         v_add_u32 v4, s23, v4
         v_xor_b32 v5, 32, v4
         v_xor_b32 v6, 64, v4
         v_xor_b32 v7, 96, v4
         v_lshrrev_b32 v12, 4, v{L}
         v_and_b32 v13, 7, v{L}
         v_xor_b32 v13, v13, v12
         v_lshlrev_b32 v13, 4, v13
         v_lshl_add_u32 v13, v12, 7, v13
         v_bfe_u32 v14, v{L}, 3, 1
         v_lshl_add_u32 v13, v14, 12, v13
         s_lshr_b32 s23, s3, 2
         s_lshl_b32 s23, s23, 13
         s_and_b32 s24, s3, 3
         s_lshl_b32 s24, s24, 10
         s_add_u32 s23, s23, s24
         v_add_u32 v13, s23, v13
         v_xor_b32 v14, 64, v13
         v_and_b32 v15, 15, v{L}
         v_lshlrev_b32 v15, 4, v15
         v_lshl_add_u32 v15, v12, 12, v15
         s_lshl_b32 s23, s{J}, 2
         s_add_u32 s23, s23, s{TQ}
         s_lshl_b32 s23, s23, 3
         s_add_u32 s23, s23, s3
         s_lshl_b32 s23, s23, 15
         s_lshl_b32 s24, s{HG}, 8
         s_add_u32 s23, s23, s24
         s_add_u32 s59, s23, 2048
         s_add_u32 s60, s59, 16384
         s_mov_b32 s36, s{po}
         s_mov_b32 s37, s{po1}
         s_mov_b32 s38, 0x800000
         s_mov_b32 s39, 0x20000""".format(L=vL, J=sJ, TQ=sTQ, HG=sHG, po=P_OUT, po1=P_OUT+1))
    poll_all(3, "s55", 29)
    stamp(6)
    for k in range(8):
        A("buffer_load_dwordx4 %s, v144, s[12:15], s%d offen offset:%d sc1" % (v(OF + 4*k, 4), 54 if k < 4 else 57, 1024 * (k & 3)))
    for k in range(8):
        wait(vm=7 - k)
        for nt in range(2):
            A("v_mfma_f32_32x32x16_bf16 %s, %s, %s, %s" % (v(WACC + 16*nt, 16), v(WOF + 32*nt + 4*k, 4), v(OF + 4*k, 4), "0" if k == 0 else v(WACC + 16*nt, 16)))
    bar()
    A("s_nop 9")
    for nt in range(2):
        for g in range(4):
            A("ds_write_b128 v%d, %s offset:%d" % (4 + g, v(WACC + 16*nt + 4*g, 4), 4096*nt))
    wait(lg=0); bar()
    for hh in range(2):
        for kq in range(4):
            A("ds_read_b128 %s, v%d offset:%d" % (v(16 + 16*hh + 4*kq, 4), 13 + hh, 16384*kq + 512*hh))
    for hh in range(2):
        b0 = 16 + 16*hh
        wait(lg=6 - 4*hh)
        for e in range(4): A("v_add_f32 v%d, v%d, v%d" % (b0 + e, b0 + e, b0 + 4 + e))
        wait(lg=4 - 4*hh)
        for e in range(4): A("v_add_f32 v%d, v%d, v%d" % (b0 + 8 + e, b0 + 8 + e, b0 + 12 + e))
        for e in range(4): A("v_add_f32 v%d, v%d, v%d" % (b0 + e, b0 + e, b0 + 8 + e))
        A("buffer_store_dwordx4 %s, v15, s[36:39], s%d offen %s" % (v(b0, 4), 59 + hh, opts.get("ostore", "")))
    A("""s_or_b32 s23, s2, s3
         s_cmp_eq_u32 s23, 0
         s_cbranch_scc0 L_NE
         s_add_u32 s23, s{ep}, 1
         v_mov_b32 v3, s23""".format(ep=sEP))
    one_lane(["buffer_store_dword v3, off, s[12:15], 0 sc1"])
    A.label("L_NE")
    stamp(7)
    stamp_out()
    A.label("L_END")
    A("s_endpgm")
    def wogroup(n, ret):
        for k in range(4):
            A("buffer_load_dwordx4 %s, v144, s[12:15], s53 offen offset:%d sc1" % (v(WOF + 16*n + 4*k, 4), 1024 * k))
        A("s_add_u32 s53, s53, %d\ns_branch %s" % (4096 if n != 1 else 32768 - 4096, ret))
    A.label("L_WP")
    A("s_cmp_eq_u32 s58, 7\ns_cbranch_scc1 L_WP3")
    wogroup(1, "L_WR")
    A.label("L_WP3"); wogroup(3, "L_WR")
    A.label("L_WP0"); wogroup(0, "L_DR")
    A.label("L_WP2"); wogroup(2, "L_DR")
    A.label("L_DM")
    A("""s_cmp_lt_u32 s58, 2
         s_cbranch_scc1 L_DM2
         s_cmp_gt_u32 s58, 6
         s_cbranch_scc1 L_WP2
         s_waitcnt vmcnt(0)
         s_mov_b64 exec, 1
         ds_add_u32 v{ca}, v145
         s_mov_b64 exec, -1
         s_cmp_gt_u32 s58, 5
         s_cbranch_scc1 L_WP0""".format(ca=vCA2))
    A.label("L_DM2")
    A("""s_add_u32 s23, s58, 2
         s_lshl_b32 s24, s23, 14
         s_add_u32 m0, s24, s30
         s_add_u32 s23, s23, s{J}
         s_and_b32 s23, s23, 7
         s_lshl_b32 s23, s23, 14
         s_add_u32 s23, s23, s62
         buffer_load_dwordx4 v144, s[12:15], s23 offen sc1 lds
         buffer_load_dwordx4 v144, s[12:15], s23 offen offset:1024 sc1 lds
         s_branch L_DR""".format(J=sJ))
    A.label("L_AW")
    if stamps and stamps != "pad":
        A("s_memrealtime s[96:97]\ns_waitcnt lgkmcnt(0)")
    A("s_mov_b32 s%d, 0" % sSPIN)
    A.label("L_AW2")
    A("""ds_read_b32 v{cn}, v{ca}
         s_add_u32 s{sp}, s{sp}, 1
         s_cmp_gt_u32 s{sp}, {SP}
         s_cbranch_scc1 L_AR
         s_waitcnt lgkmcnt(0)
         v_cmp_gt_u32 vcc, 12, v{cn}
         s_nop 1
         s_cbranch_vccnz L_AW2""".format(cn=vCN, ca=vCA2, sp=sSPIN, SP=SPIN))
    if stamps and stamps != "pad":
        A("s_memrealtime s[98:99]\ns_waitcnt lgkmcnt(0)\ns_sub_u32 s98, s98, s96\ns_add_u32 m0, s58, 48\ns_nop 0\nv_writelane_b32 v%d, s98, m0" % VSTAMP)
    A("s_branch L_AR")
    A.label("L_FB")
    A("v_mov_b32 v%d, v144\nv_mov_b32 v29, 0xff800000\ns_mov_b32 s58, 0" % vKA)
    wait(lg=0)
    A.label("L_FB1")
    A("ds_read_b128 %s, v%d" % (v(K, 4), vKA))
    wait(lg=0)
    A("v_mfma_f32_32x32x16_bf16 %s, %s, %s, 0\ns_nop 7\ns_nop 3" % (v(S0, 16), v(K, 4), v(Q, 4)))
    for q in range(8): A("v_max3_f32 v29, v29, v%d, v%d" % (S0 + 2*q, S0 + 2*q + 1))
    A("""v_add_u32 v{ka}, 2048, v{ka}
         s_add_u32 s58, s58, 1
         s_cmp_lt_u32 s58, 64
         s_cbranch_scc1 L_FB1
         v_mov_b32 v30, v29
         s_nop 1
         v_permlane32_swap_b32 v29, v30
         v_max_f32 v29, v29, v30
         v_mov_b32 v{ka}, v144
         s_mov_b32 s58, 0""".format(ka=vKA))
    for r in range(16): A("v_xor_b32 v%d, 0x80000000, v29\nv_mov_b32 v%d, 0" % (S1 + r, O + r))
    A.label("L_FB2")
    A("ds_read_b128 %s, v%d" % (v(K, 4), vKA))
    vreads(0)
    wait(lg=0)
    A("v_mfma_f32_32x32x16_bf16 %s, %s, %s, %s\ns_nop 7\ns_nop 3" % (v(S0, 16), v(K, 4), v(Q, 4), v(S1, 16)))
    for e in range(16): A("v_exp_f32 v%d, v%d" % (S0 + e, S0 + e))
    A("s_nop 0")
    for q in range(8): A("v_cvt_pk_bf16_f32 v%d, v%d, v%d" % (P + q, S0 + 2*q, S0 + 2*q + 1))
    A("s_nop 1")
    A("v_mfma_f32_32x32x16_bf16 %s, %s, %s, %s" % (v(O, 16), v(V0, 4), v(P, 4), v(O, 16)))
    A("v_mfma_f32_32x32x16_bf16 %s, %s, %s, %s" % (v(O, 16), v(V1, 4), v(P + 4, 4), v(O, 16)))
    A("""v_add_u32 v{ka}, 2048, v{ka}
         s_add_u32 s58, s58, 1
         s_nop 7
         s_cmp_lt_u32 s58, 64
         s_cbranch_scc1 L_FB2
         s_nop 7""".format(ka=vKA))
    rowsum()
    A("s_branch L_FBR")
    A.label("L_CODE_END")
    return A

HEADER = """; fused S5 SSM + multi-head attention block, one persistent launch: 256 workgroups x 12 waves
; @launch grid=(256,1,1) block=(768,1,1) lds=%d
.amdgcn_target "amdgcn-amd-amdhsa--gfx950"
.text
.globl %s_kernel
""" % (LDS_BYTES, NAME)
FOOTER = """.section .rodata,"a"
.p2align 6
.amdhsa_kernel %s_kernel
  .amdhsa_next_free_vgpr 168
  .amdhsa_next_free_sgpr 102
  .amdhsa_accum_offset 168
  .amdhsa_group_segment_fixed_size 0
  .amdhsa_kernarg_size 120
  .amdhsa_user_sgpr_count 2
  .amdhsa_user_sgpr_kernarg_segment_ptr 1
  .amdhsa_system_sgpr_workgroup_id_x 1
.end_amdhsa_kernel
""" % NAME

def build(path, **kw):
    A = gen(**kw)
    probs = lint(A.lines)
    for p in probs: print("HAZARD:", p)
    body = A.text()
    pre = ""
    open(path, "w").write(HEADER + body + pre + FOOTER)
    return probs

if __name__ == "__main__":
    out = sys.argv[1] if len(sys.argv) > 1 else "cdna_kernels/%s.s" % NAME
    kw = {}
    if "stamps" in sys.argv: kw["stamps"] = True
    kw["opts"] = {}
    for a in sys.argv:
        if "=" in a:
            k_, v_ = a.split("=")
            try: v_ = float(v_) if "." in v_ else int(v_)
            except ValueError: pass
            kw["opts"][k_] = v_
    if "dbg" in sys.argv: kw["stamps"] = "dbg"
    if "bar" in sys.argv: kw["stamps"] = "bar"
    if "hb" in sys.argv: kw["stamps"] = "hb"
    for a in sys.argv:
        if a.startswith("pad"):
            kw["stamps"] = "pad"; kw["opts"]["padk"] = int(a[3:])
    if "safe" in sys.argv: kw["force_safe"] = True
    build(out, **kw)
```

```python
import sys
from asmlib import Asm, v, s, lint

NAME = "concat_heads__ssm_conv_s5__mha_block__prompt"
WS_XCC, WS_FKVG, WS_FL, WS_FQ, WS_FP, WS_FG, WS_FO, WS_E = 0x1000, 0x2000, 0x4000, 0x6000, 0x8000, 0x9000, 0xA000, 0x10000
MB = 1 << 20
WS_KVG, WS_KVL, WS_Q, WS_G, WS_O, WS_C, WS_WO, WS_DBG = 1*MB, 5*MB, 9*MB, 11*MB, 15*MB, 17*MB, 18*MB, 19*MB
WS_SIZE = 20 * MB
L_RING = 65536
L_URING = 81920
L_SCR = 131072
L_XW = 155648
L_CNT = L_XW + 1024
LDS_BYTES = 163840
SPIN = 1 << 18

sW, sJ, sI, sTQ, sHG, sTAG, sEP, sFAST = 3, 16, 17, 18, 19, 20, 21, 22
S_XB, S_WQ, S_WS, S_OUT, S_XA = 4, 8, 12, 36, 40
sVM = 44
sT = list(range(23, 36))
P_AX, P_LRE, P_LIM, P_BRE, P_BIM, P_CRE, P_CIM, P_LDT = 64, 66, 68, 70, 72, 74, 76, 78
P_DSK, P_WO, P_OUT = 80, 84, 86
sXCC = 46
sSPIN = 47
vL = 1
VSTAMP = 167

def gen(stamps=False, force_safe=False, opts=None):
    opts = opts or {}
    A = Asm()
    uid = [0]
    def lab(p):
        uid[0] += 1
        return "L_%s%d" % (p, uid[0])
    def stamp(k):
        if stamps:
            A("s_memrealtime s[98:99]\ns_waitcnt lgkmcnt(0)\nv_writelane_b32 v%d, s98, %d" % (VSTAMP, k))
    def cstamp(k):
        if stamps:
            A("s_memtime s[98:99]\ns_waitcnt lgkmcnt(0)\nv_writelane_b32 v%d, s98, %d" % (VSTAMP, k))
    def stamp_out():
        if stamps == "pad":
            l = lab("pad")
            A("""s_nop 1
                 v_readlane_b32 s96, v%d, %d
                 s_nop 3
                 s_add_u32 s96, s96, 10000""" % (VSTAMP, opts.get("padk", 0) if True else 0))
            A.label(l)
            A("""s_memrealtime s[98:99]
                 s_waitcnt lgkmcnt(0)
                 s_sub_u32 s98, s98, s96
                 s_cmp_lt_i32 s98, 0
                 s_cbranch_scc1 %s""" % l)
        elif stamps == "dbg":
            A("""s_load_dwordx2 s[92:93], s[0:1], 104
                 s_mov_b32 s94, 256
                 s_mov_b32 s95, 0x20000
                 v_readlane_b32 s98, v%d, 0
                 s_not_b32 s98, s98
                 s_cmp_ge_u32 s3, 8
                 s_cselect_b32 s99, 28, 0
                 v_lshlrev_b32 v166, 2, v%d
                 s_waitcnt lgkmcnt(0)
                 s_mov_b64 exec, 0xfe
                 buffer_atomic_umax v%d, v166, s[92:95], s99 offen
                 s_mov_b64 exec, 1
                 v_mov_b32 v165, s98
                 buffer_atomic_umax v165, off, s[92:95], 0 offset:60
                 buffer_atomic_umax v%d, off, s[92:95], 0
                 s_mov_b64 exec, -1""" % (VSTAMP, vL, VSTAMP, VSTAMP))
        elif stamps:
            A("""s_mul_i32 s98, s2, 12
                 s_add_u32 s98, s98, s%d
                 s_lshl_b32 s98, s98, 8
                 s_add_u32 s98, s98, %d
                 v_lshlrev_b32 v166, 2, v%d
                 buffer_store_dword v%d, v166, s[12:15], s98 offen
                 s_mov_b64 exec, -1""" % (sW, WS_DBG, vL, VSTAMP))
    def wait(vm=None, lg=None):
        p = []
        if vm is not None: p.append("vmcnt(%d)" % vm)
        if lg is not None: p.append("lgkmcnt(%d)" % lg)
        A("s_waitcnt " + " ".join(p))
    barn = [0]
    def bar():
        if stamps == "bar" and barn[0] is not None and barn[0] < 16:
            A("s_memrealtime s[98:99]\ns_waitcnt lgkmcnt(0)\nv_writelane_b32 v%d, s98, %d" % (VSTAMP, 16 + barn[0]))
        A("s_barrier")
        if stamps == "bar" and barn[0] is not None and barn[0] < 16:
            A("s_memrealtime s[98:99]\ns_waitcnt lgkmcnt(0)\nv_writelane_b32 v%d, s98, %d" % (VSTAMP, 32 + barn[0]))
            barn[0] += 1
    def mode_stores(lines):
        a, b = lab("safe"), lab("done")
        A("s_cmp_eq_u32 s%d, 0\ns_cbranch_scc1 %s" % (sFAST, a))
        for l in lines: A(l)
        A("s_branch %s" % b); A.label(a)
        for l in lines: A(l + " sc1")
        A.label(b)
    def one_lane(lines):
        A("s_mov_b64 exec, 1")
        for l in lines: A(l)
        A("s_mov_b64 exec, -1")
    def slot_load(dst, tmp):
        A("""v_and_b32 v%d, 31, v%d
             v_lshlrev_b32 v%d, 3, v%d
             s_lshl_b32 s23, s%d, 8
             s_add_u32 s23, s23, %d
             buffer_load_dwordx2 %s, v%d, s[12:15], s23 offen sc1""" % (tmp, vL, tmp, tmp, sJ, WS_XCC, v(dst, 2), tmp))
    def slot_eval(dst):
        A("""v_cmp_eq_u32 s[24:25], s%d, v%d
             v_cmp_eq_u32 vcc, s%d, v%d
             s_nop 1
             s_and_b64 vcc, vcc, s[24:25]
             s_cmp_eq_u64 vcc, -1
             s_cselect_b32 s%d, %d, 0""" % (sTAG, dst, sXCC, dst + 1, sFAST, 0 if force_safe else 1))
    def poll_all(addr_v, soff, tmp):
        l, d = lab("poll"), lab("pd")
        A("s_mov_b32 s%d, 0" % sSPIN)
        A.label(l)
        A("""buffer_load_dword v%d, v%d, s[12:15], %s offen sc1
             s_add_u32 s%d, s%d, 1
             s_cmp_gt_u32 s%d, %d
             s_cbranch_scc1 %s
             s_waitcnt vmcnt(0)
             v_cmp_ne_u32 vcc, s%d, v%d
             s_nop 1
             s_cbranch_vccnz %s""" % (tmp, addr_v, soff, sSPIN, sSPIN, sSPIN, SPIN, d, sTAG, tmp, l))
        A.label(d)
    def params(lre, lim, ldt, lr, li, t0, t1, t2):
        A("""v_lshlrev_b32 v{lre}, 16, v{lre}
             v_lshlrev_b32 v{lim}, 16, v{lim}
             v_lshlrev_b32 v{ldt}, 16, v{ldt}
             v_mul_f32 v{ldt}, 0x3fb8aa3b, v{ldt}
             v_exp_f32 v{ldt}, v{ldt}
             s_nop 0
             v_cvt_pk_bf16_f32 v{ldt}, v{ldt}, v{ldt}
             v_and_b32 v{ldt}, 0xffff0000, v{ldt}
             v_mul_f32 v{t0}, v{ldt}, v{lre}
             v_mul_f32 v{t1}, v{ldt}, v{lim}
             v_mul_f32 v{t0}, 0x3fb8aa3b, v{t0}
             v_mul_f32 v{t1}, 0.15915494, v{t1}
             v_exp_f32 v{t0}, v{t0}
             v_rndne_f32 v{t2}, v{t1}
             v_sub_f32 v{t1}, v{t1}, v{t2}
             v_cos_f32 v{lr}, v{t1}
             v_sin_f32 v{li}, v{t1}
             s_nop 0
             v_mul_f32 v{lr}, v{lr}, v{t0}
             v_mul_f32 v{li}, v{li}, v{t0}""".format(lre=lre, lim=lim, ldt=ldt, lr=lr, li=li, t0=t0, t1=t1, t2=t2))
    def param_loads(lre, lim, ldt, tmp):
        A("""v_and_b32 v{t}, 31, v{L}
             s_lshr_b32 s23, s{i}, 1
             s_lshl_b32 s23, s23, 6
             v_lshl_add_u32 v{t}, v{t}, 1, s23
             global_load_ushort v{a}, v{t}, s[{pa}:{pa1}]
             global_load_ushort v{b}, v{t}, s[{pb}:{pb1}]
             global_load_ushort v{c}, v{t}, s[{pc}:{pc1}]""".format(t=tmp, L=vL, i=sI, a=lre, b=lim, c=ldt,
             pa=P_LRE, pa1=P_LRE+1, pb=P_LIM, pb1=P_LIM+1, pc=P_LDT, pc1=P_LDT+1))
    def tag_from_epoch():
        A("s_mul_i32 s%d, s%d, 0x9E3779B1\ns_add_u32 s%d, s%d, 0x7F4A7C15" % (sTAG, sEP, sTAG, sTAG))
    def dma_lane_regs(sidx, piece, rho):
        A("""v_lshrrev_b32 v{rho}, 3, v{L}
             v_lshrrev_b32 v{p}, 4, v{L}
             s_and_b32 s23, s{si}, 1
             s_lshl_b32 s23, s23, 2
             v_add_u32 v{p}, s23, v{p}
             v_xor_b32 v{p}, v{p}, v{L}
             v_and_b32 v{p}, 7, v{p}
             v_lshlrev_b32 v{p}, 4, v{p}""".format(rho=rho, p=piece, L=vL, si=sidx))
    def frag_addr(dst4, t0, t1):
        A("""v_and_b32 v{t0}, 31, v{L}
             v_lshrrev_b32 v{t1}, 1, v{t0}
             v_lshrrev_b32 v{d}, 5, v{L}
             v_xor_b32 v{t1}, v{t1}, v{d}
             v_and_b32 v{t1}, 7, v{t1}
             v_lshlrev_b32 v{t1}, 4, v{t1}
             v_lshl_add_u32 v{d}, v{t0}, 7, v{t1}""".format(t0=t0, t1=t1, L=vL, d=dst4))
        for ks in (1, 2, 3):
            A("v_xor_b32 v%d, %d, v%d" % (dst4 + ks, 32 * ks, dst4))

    A(".p2align 8\n.type %s_kernel,@function" % NAME)
    A.label(NAME + "_kernel")
    A.label("L_START")
    if stamps:
        A("v_mov_b32 v%d, 0" % VSTAMP)
        stamp(0)
    A("""s_cmp_ge_u32 s2, 0x100
         s_cbranch_scc1 L_END
         s_load_dwordx2 s[4:5], s[0:1], 72
         s_load_dwordx2 s[8:9], s[0:1], 80
         s_load_dwordx2 s[12:13], s[0:1], 112
         s_load_dwordx16 s[64:79], s[0:1], 0
         s_load_dwordx2 s[80:81], s[0:1], 64
         s_load_dwordx4 s[84:87], s[0:1], 88
         v_lshrrev_b32 v2, 6, v0
         v_and_b32 v1, 63, v0
         s_and_b32 s16, s2, 7
         v_readfirstlane_b32 s3, v2
         s_lshr_b32 s17, s2, 3
         s_and_b32 s18, s17, 3
         s_lshr_b32 s19, s17, 2
         s_mov_b32 s6, 0x200000
         s_mov_b32 s7, 0x20000
         s_mov_b32 s10, 0x180000
         s_mov_b32 s11, 0x20000
         s_mov_b32 s14, %d
         s_mov_b32 s15, 0x20000
         s_getreg_b32 s%d, hwreg(HW_REG_XCC_ID, 0, 4)""" % (WS_SIZE, sXCC))
    WSO = opts.get("wso", 0) * MB
    A("s_cmp_ge_u32 s3, 8\ns_cbranch_scc0 L_ATT")


    class VM:
        def __init__(self): self.q = []
        def add(self, tag, n=1): self.q += [tag] * n
        def need(self, *tags, lg=None):
            last = max(i for i, t in enumerate(self.q) if t in tags)
            wait(vm=len(self.q) - 1 - last, lg=lg)
    vm = VM()
    sS = 48
    vXB, vXB2, vWo_, vW2, vXA, vXA2 = 2, 3, 4, 5, 6, 7
    LRE, LIM, LDT = 20, 21, 22
    LAM, L8, MU, NU, RHO, RHO8 = 8, 10, 12, 14, 16, 18
    vLin, vFA8, vCA, vOne, vXWb, vXWw, vCh16, vEb, vGw, vGr, vFG, vXe, vDk, vYw, vYr, vOa = range(144, 160)
    URE, UIM, YR = 96, 112, 32
    DQ, DV = opts.get("dq", 2), opts.get("dv", 4)
    A("s_sub_u32 s%d, s3, 8\ns_setprio 3" % sS)
    dma_lane_regs(sS, vXB, 25)
    A("""v_lshrrev_b32 v26, 4, v{L}
         v_and_b32 v26, 1, v26
         v_lshlrev_b32 v27, 2, v26
         v_xor_b32 v27, v27, v{L}
         v_and_b32 v27, 7, v27
         v_lshlrev_b32 v27, 4, v27
         v_mul_u32_u24 v{w}, 3072, v25
         v_add_u32 v{w}, v{w}, v27
         v_add_u32 v{w2}, {d2}, v{w}
         v_mov_b32 v28, v{xb}
         v_lshl_add_u32 v{xb}, v25, 10, v{xb}
         v_add_u32 v{xb2}, {d1}, v{xb}""".format(xb=vXB, xb2=vXB2, w=vWo_, w2=vW2, L=vL, d1=16384-2048, d2=16*3072-2048))
    sN0, sM = 49, 52
    CH = 196608
    A("""s_and_b32 s28, s{S}, 1
         s_lshr_b32 s24, s{S}, 1
         s_lshl_b32 s24, s24, 2
         s_add_u32 s{n0}, s28, s24
         s_lshl_b32 s23, s{J}, 2
         s_add_u32 s23, s23, s{TQ}
         s_lshl_b32 s23, s23, 16
         s_lshl_b32 s24, s{n0}, 13
         s_add_u32 s53, s23, s24
         s_mul_i32 s23, s{n0}, 24576
         s_add_u32 s24, s{HG}, {dq}
         s_and_b32 s24, s24, 7
         s_lshl_b32 s24, s24, 7
         s_add_u32 s54, s23, s24
         s_lshl_b32 s{m}, s{n0}, 10
         s_mov_b32 s56, s{m}
         s_add_u32 s57, s{m}, {ring}
         s_add_u32 s55, s{J}, s{HG}
         s_and_b32 s55, s55, 7
         s_lshl_b32 s30, s55, 7
         s_mul_i32 s31, s55, {ch}
         s_mul_i32 s23, s{n0}, 24576
         s_lshl_b32 s24, s{HG}, 7
         s_add_u32 s50, s23, s24
         s_add_u32 s50, s50, 1024
         s_add_u32 s24, s{HG}, {dv}
         s_and_b32 s24, s24, 7
         s_lshl_b32 s24, s24, 7
         s_add_u32 s51, s23, s24
         s_add_u32 s51, s51, 2048
         s_mov_b32 s58, 0
         s_waitcnt lgkmcnt(0)
         s_add_u32 s12, s12, {wso}
         s_addc_u32 s13, s13, 0""".format(wso=WSO, S=sS, n0=sN0, J=sJ, TQ=sTQ, HG=sHG, m=sM, ring=L_RING, ch=CH, dq=DQ, dv=DV))
    def hu_x():
        A("""s_mov_b32 m0, s56
             s_add_u32 s23, s53, s30
             buffer_load_dwordx4 v%d, s[4:7], s23 offen lds
             buffer_load_dwordx4 v%d, s[4:7], s23 offen offset:2048 lds
             s_add_u32 s56, s56, 8192
             s_add_u32 s30, s30, 128
             s_and_b32 s30, s30, 1023""" % (vXB, vXB2))
    def hu_w(base, adv):
        A("""s_mov_b32 m0, s57
             s_add_u32 s23, s%d, s31
             buffer_load_dwordx4 v%d, s[8:11], s23 offen lds
             buffer_load_dwordx4 v%d, s[8:11], s23 offen offset:2048 lds
             s_add_u32 s57, s57, 8192""" % (base, vWo_, vW2))
        if adv: A("s_add_u32 s31, s31, %d\ns_cmp_eq_u32 s31, %d\ns_cselect_b32 s31, 0, s31" % (CH, 8 * CH))
    seq = []
    for c in range(8): seq += [("x", c), ("K", c), ("V", c)]
    seq += [("Q", c) for c in range(8)]
    def issue(n0_, n1_):
        for kind, c in seq[n0_:n1_]:
            if kind == "x": hu_x()
            else:
                if (kind, c) == ("K", 6): A("s_sub_u32 s57, s57, 98304")
                hu_w({"K": 50, "V": 51, "Q": 54}[kind], kind != "K")
            vm.add(kind + str(c), 2)
    hu_x()
    A.label("L_H0")
    hu_w(50, False); hu_w(51, True); hu_x()
    A("s_add_u32 s58, s58, 1\ns_cmp_lt_u32 s58, 3\ns_cbranch_scc1 L_H0")
    for kind, c in seq[:10]: vm.add(kind + str(c), 2)
    A("s_load_dword s%d, s[12:13], 0" % sEP)
    param_loads(LRE, LIM, LDT, 25)
    A("""s_lshl_b32 s23, s{J}, 3
         s_add_u32 s23, s23, s{HG}
         s_lshl_b32 s23, s23, 7
         v_mov_b32 v25, {fl}
         s_mov_b32 s24, {fq}
         v_writelane_b32 v25, s24, 1
         s_mov_b64 exec, 3
         buffer_load_dword v162, v25, s[12:15], s23 offen sc1
         s_mov_b64 exec, -1""".format(J=sJ, HG=sHG, fl=WS_FL, fq=WS_FQ))
    vm.add("par", 4)
    stamp(8)
    A("""v_lshrrev_b32 v25, 3, v{L}
         v_lshrrev_b32 v27, 2, v25
         v_lshlrev_b32 v27, 4, v27
         v_add_u32 v27, v27, v26
         v_and_b32 v25, 1, v25
         v_lshl_add_u32 v27, v25, 3, v27
         v_lshl_add_u32 v{xa}, v27, 10, v28
         v_add_u32 v{xa2}, 2048, v{xa}""".format(L=vL, xa=vXA, xa2=vXA2))
    def csq(d, a):
        A("""v_mul_f32 v25, v{a1}, v{a1}
             v_mul_f32 v26, v{a}, v{a1}
             v_fma_f32 v{d}, v{a}, v{a}, -v25
             v_add_f32 v{d1}, v26, v26""".format(a=a, a1=a+1, d=d, d1=d+1))
    def chore0():
        frag_addr(32, 25, 26)
        A("s_lshl_b32 s23, s%d, 12\ns_add_u32 s23, s23, %d" % (sS, L_URING + 8192))
        for ks in range(4):
            A("v_add_u32 v%d, s23, v%d\nv_add_u32 v%d, %d, v%d" % (36 + ks, 32 + ks, 32 + ks, L_URING, 32 + ks))
    def chore5(): params(LRE, LIM, LDT, LAM, LAM + 1, 25, 26, 27)
    def chore6(): csq(L8, LAM); csq(L8, L8); csq(L8, L8); csq(MU, L8); csq(NU, MU)
    def chore7():
        csq(RHO, NU); csq(RHO, RHO); csq(RHO8, RHO); csq(RHO8, RHO8); csq(RHO8, RHO8)
        wait(lg=0); tag_from_epoch()
    def chore8():
        A("""v_add_f32 v25, -1.0, v{lr}
             v_mul_f32 v26, v{a}, v{a}
             v_fmac_f32 v26, v{b}, v{b}
             v_rcp_f32 v26, v26
             v_mul_f32 v23, v25, v{a}
             v_mul_f32 v24, v{li}, v{a}
             v_add_f32 v26, v26, v26
             v_fmac_f32 v23, v{li}, v{b}
             v_fma_f32 v24, -v25, v{b}, v24
             v_mul_f32 v23, v23, v26
             v_mul_f32 v24, v24, v26
             v_xor_b32 v24, 0x80000000, v24
             s_cmp_lt_u32 s{S}, 2
             s_cbranch_scc1 L_CP0
             v_xor_b32 v26, 0x80000000, v23
             v_mov_b32 v23, v24
             v_mov_b32 v24, v26""".format(lr=LAM, li=LAM+1, a=LRE, b=LIM, S=sS))
        A.label("L_CP0")
        A("""s_lshl_b32 s23, s{J}, 1
             s_and_b32 s24, s{I}, 1
             s_add_u32 s26, s23, s24
             s_lshr_b32 s27, s{I}, 1
             s_lshl_b32 s23, s26, 15
             s_lshl_b32 s24, s27, 6
             s_add_u32 s23, s23, s24
             s_and_b32 s28, s{S}, 1
             s_lshl_b32 s24, s28, 5
             s_add_u32 s23, s23, s24
             v_and_b32 v25, 31, v{L}
             v_lshrrev_b32 v26, 5, v{L}
             v_lshlrev_b32 v27, 4, v26
             v_lshl_add_u32 v27, v25, 10, v27
             v_add_u32 v27, s23, v27
             s_lshr_b32 s29, s{S}, 1
             s_lshl_b32 s23, s27, 1
             s_add_u32 s29, s29, s23
             s_lshl_b32 s23, s29, 14
             s_lshl_b32 s24, s26, 6
             s_add_u32 s23, s23, s24
             s_lshl_b32 s24, s28, 13
             s_add_u32 s23, s23, s24
             v_lshlrev_b32 v28, 12, v26
             v_lshl_add_u32 v28, v25, 1, v28
             v_add_u32 v28, s23, v28
             v_lshlrev_b32 v29, 5, v26
             s_lshl_b32 s24, s28, 6
             v_add_u32 v29, s24, v29""".format(J=sJ, I=sI, S=sS, L=vL))
        for e in range(8):
            A("ds_bpermute_b32 v%d, v29, v23 offset:%d" % (128 + e, 4*e))
        A("v_mov_b32 v160, v27\nv_mov_b32 v161, v28\nv_lshlrev_b32 v%d, 4, v%d" % (vLin, vL))
    def chore9():
        wait(lg=0)
        for e in range(8):
            A("ds_bpermute_b32 v%d, v29, v24 offset:%d" % (136 + e, 4*e))
        A("""s_mov_b32 s40, s{ax}
             s_mov_b32 s41, s{ax1}
             s_mov_b32 s42, 0x200000
             s_mov_b32 s43, 0x20000
             s_cmp_lt_u32 s{S}, 2
             s_cselect_b32 s36, s{br}, s{bi}
             s_cselect_b32 s37, s{br1}, s{bi1}
             s_mov_b32 s38, 0x80000
             s_mov_b32 s39, 0x20000
             s_lshl_b32 s23, s26, 17
             s_lshr_b32 s24, s{S}, 1
             s_lshl_b32 s24, s24, 15
             s_add_u32 s23, s23, s24
             s_lshl_b32 s24, s28, 11
             s_add_u32 s59, s23, s24
             s_lshl_b32 s23, s27, 15
             s_lshl_b32 s24, s28, 13
             s_add_u32 s60, s23, s24
             s_add_u32 s35, s{J}, s27
             s_and_b32 s35, s35, {rm}
             s_lshl_b32 s35, s35, 7""".format(J=sJ, rm=7 if opts.get("rot", True) else 0, ax=P_AX, ax1=P_AX+1, S=sS, br=P_BRE, bi=P_BIM, br1=P_BRE+1, bi1=P_BIM+1))
    def chore11():
        A("""s_lshl_b32 s23, s{S}, 12
             s_add_u32 s34, s23, {scr}
             v_lshlrev_b32 v{fa8}, 3, v{L}
             v_mov_b32 v{ca}, {cnt}
             v_mov_b32 v{one}, 1
             v_and_b32 v25, 31, v{L}
             v_lshrrev_b32 v26, 5, v{L}
             v_lshlrev_b32 v{xwb}, 3, v25
             v_add_u32 v{xwb}, {xw}, v{xwb}
             s_lshl_b32 s23, s{S}, 8
             v_add_u32 v{xww}, s23, v{xwb}
             s_lshl_b32 s23, s27, 9
             v_lshl_add_u32 v{ch}, v25, 4, s23
             s_sub_u32 s23, s26, 1
             s_lshl_b32 s23, s23, 13
             v_lshlrev_b32 v27, 16, v26
             v_sub_u32 v27, v{ch}, v27
             v_add_u32 v{eb}, s23, v27
             v_lshlrev_b32 v27, 5, v26
             v_lshl_add_u32 v27, v25, 6, v27
             v_add_u32 v{gw}, s34, v27
             v_bfe_u32 v27, v{L}, 2, 2
             v_lshl_add_u32 v27, v26, 3, v27
             v_lshlrev_b32 v27, 6, v27
             v_bfe_u32 v28, v{L}, 4, 1
             v_lshl_add_u32 v27, v28, 5, v27
             v_and_b32 v28, 3, v{L}
             v_lshl_add_u32 v27, v28, 3, v27
             v_add_u32 v{gr}, s34, v27
             v_and_b32 v27, 3, v{L}
             v_bfe_u32 v28, v{L}, 2, 1
             v_lshlrev_b32 v28, 6, v28
             v_lshl_add_u32 v{fg}, v27, 2, v28
             v_xor_b32 v26, v26, v25
             v_and_b32 v26, 7, v26
             v_lshlrev_b32 v26, 4, v26
             v_lshl_add_u32 v26, v25, 7, v26
             v_add_u32 v{yw}, s34, v26
             s_lshl_b32 s23, s{J}, 2
             s_add_u32 s23, s23, s{TQ}
             s_lshl_b32 s23, s23, 1
             s_add_u32 s32, s23, s28
             s_lshl_b32 s23, s{HG}, 1
             s_lshr_b32 s24, s{S}, 1
             s_add_u32 s33, s23, s24
             v_lshrrev_b32 v25, 3, v{L}
             v_and_b32 v26, 7, v{L}
             s_lshl_b32 s23, s32, 15
             s_lshl_b32 s24, s33, 6
             s_add_u32 s23, s23, s24
             v_lshlrev_b32 v27, 10, v25
             v_lshl_add_u32 v27, v26, 3, v27
             v_add_u32 v{xe}, s23, v27
             v_lshl_add_u32 v{dk}, v26, 3, s24
             v_xor_b32 v27, v25, v26
             v_lshlrev_b32 v27, 4, v27
             v_lshl_add_u32 v27, v25, 7, v27
             v_add_u32 v{yr}, s34, v27
             v_lshlrev_b32 v27, 12, v25
             v_lshl_add_u32 v{oa}, v26, 4, v27""".format(S=sS, scr=L_SCR, L=vL, lin=vLin, fa8=vFA8, ca=vCA, cnt=L_CNT, one=vOne, xwb=vXWb, xw=L_XW,
                  xww=vXWw, ch=vCh16, eb=vEb, gw=vGw, gr=vGr, fg=vFG, yw=vYw, J=sJ, TQ=sTQ, HG=sHG, xe=vXe, dk=vDk, yr=vYr, oa=vOa))
        A("""s_lshl_b32 s23, s26, 2
             s_add_u32 s92, s23, s{S}
             s_lshl_b32 s23, s92, 16
             s_lshl_b32 s24, s27, 12
             s_add_u32 s23, s23, s24
             s_add_u32 s93, s23, {gi}
             s_lshl_b32 s23, s92, 6
             s_add_u32 s94, s23, {fg}""".format(S=sS, gi=WS_G, fg=WS_FG))
    USLOT = [1, 2, 0, 1, 2, 0, 1, 2]
    def udma_parts(c):
        base = L_URING + USLOT[c] * 24576
        f = dict(m=sM, b=vXB, b2=vXB2, xa=vXA, xa2=vXA2)
        return ["""s_add_u32 m0, s{m}, {o}
             s_add_u32 s95, s60, s35
             buffer_load_dwordx4 v{b}, s[36:39], s95 offen lds
             buffer_load_dwordx4 v{b2}, s[36:39], s95 offen offset:2048 lds""".format(o=base, **f),
                """s_add_u32 m0, s{m}, {o}
             s_add_u32 s95, s59, s35
             buffer_load_dwordx4 v{xa}, s[40:43], s95 offen lds
             buffer_load_dwordx4 v{xa2}, s[40:43], s95 offen offset:2048 lds""".format(o=base + 8192, **f),
                """s_add_u32 m0, s{m}, {o}
             s_add_u32 s95, s95, 65536
             buffer_load_dwordx4 v{xa}, s[40:43], s95 offen lds
             buffer_load_dwordx4 v{xa2}, s[40:43], s95 offen offset:2048 lds
             s_add_u32 s35, s35, 128
             s_and_b32 s35, s35, 1023""".format(o=base + 16384, **f)]
    def udma(c):
        for x in udma_parts(c): A(x)
        vm.add('u%d' % c, 6)
    def pre_loads():
        A("""global_load_dwordx4 v[48:51], v160, s[{cr}:{cr1}]
             global_load_dwordx4 v[52:55], v160, s[{ci}:{ci1}]
             global_load_ushort v56, v161, s[{w}:{w1}]
             global_load_ushort v57, v161, s[{w}:{w1}] offset:1024
             global_load_ushort v58, v161, s[{w}:{w1}] offset:2048
             global_load_ushort v59, v161, s[{w}:{w1}] offset:3072""".format(cr=P_CRE, cr1=P_CRE+1, ci=P_CIM, ci1=P_CIM+1, w=P_WO, w1=P_WO+1))
        vm.add("P", 6)
    PC = 48
    def prepass():
        vm.need("P")
        for e in range(8):
            A(("v_lshlrev_b32 v25, 16, v%d" if e % 2 == 0 else "v_and_b32 v25, 0xffff0000, v%d") % (PC + e // 2))
            A(("v_lshlrev_b32 v26, 16, v%d" if e % 2 == 0 else "v_and_b32 v26, 0xffff0000, v%d") % (PC + 4 + e // 2))
            A("v_mul_f32 v%d, v%d, v25\nv_fmac_f32 v%d, v%d, v26" % (128 + e, 128 + e, 128 + e, 136 + e))
        for q in range(4):
            A("v_cvt_pk_bf16_f32 v%d, v%d, v%d" % (PC + q, 128 + 2*q, 129 + 2*q))
        A("""v_lshl_or_b32 v56, v57, 16, v56
             v_lshl_or_b32 v57, v59, 16, v58
             s_lshl_b32 s23, s26, 16
             s_lshl_b32 s24, s27, 2
             s_add_u32 s24, s24, s{S}
             s_lshl_b32 s24, s24, 10
             s_add_u32 s23, s23, s24
             s_add_u32 s23, s23, {c}
             s_lshl_b32 s24, s26, 5
             s_add_u32 s24, s24, s29
             s_lshl_b32 s24, s24, 10
             s_lshl_b32 s25, s28, 3
             s_add_u32 s24, s24, s25
             s_add_u32 s24, s24, {wo}
             buffer_store_dwordx4 v[48:51], v{lin}, s[12:15], s23 offen sc1
             buffer_store_dwordx2 v[56:57], v{lin}, s[12:15], s24 offen sc1""".format(S=sS, c=WS_C, wo=WS_WO, lin=vLin))
        vm.add("S", 2)
    def fp_flag():
        A("""s_lshl_b32 s23, s{J}, 5
             s_add_u32 s23, s23, s{I}
             s_lshl_b32 s23, s23, 2
             s_add_u32 s23, s23, s{S}
             s_lshl_b32 s23, s23, 2
             s_add_u32 s23, s23, {f}
             v_mov_b32 v28, s{TAG}""".format(J=sJ, I=sI, S=sS, f=WS_FP, TAG=sTAG))
        one_lane(["buffer_store_dword v28, off, s[12:15], s23 sc1"])
        vm.add("F")
    QX, QW, XF, WF, XF2, WF2, ACC = 40, 44, 48, 64, 80, 96, 112
    def chore1():
        A("s_lshr_b32 s23, s%d, 1\ns_lshl_b32 s23, s23, 12\ns_sub_u32 s23, s23, %d" % (sS, L_URING))
        for ks in range(4):
            A("v_add_u32 v%d, s23, v%d" % (QX + ks, 32 + ks))
        A("""v_bfe_u32 v25, v{L}, 2, 2
             v_lshrrev_b32 v26, 5, v{L}
             v_lshl_add_u32 v26, v26, 3, v25
             v_lshlrev_b32 v{wa}, 7, v26
             v_bfe_u32 v26, v{L}, 4, 1
             s_lshl_b32 s23, s28, 1
             v_add_u32 v26, s23, v26
             v_and_b32 v25, 2, v25
             v_xor_b32 v26, v26, v25
             v_lshl_add_u32 v{wa}, v26, 5, v{wa}
             v_bfe_u32 v25, v{L}, 1, 1
             v_and_b32 v26, 1, v{L}
             v_lshl_add_u32 v25, v26, 1, v25
             v_lshl_add_u32 v{wa}, v25, 3, v{wa}
             v_add_u32 v{wa}, {base}, v{wa}
             v_lshlrev_b32 v{lin}, 4, v{L}
             s_lshl_b32 s23, s{J}, 2
             s_add_u32 s23, s23, s{TQ}
             s_lshl_b32 s23, s23, 1
             s_lshr_b32 s24, s{S}, 1
             s_add_u32 s32, s23, s24
             s_add_u32 s23, s{HG}, {dq}
             s_and_b32 s23, s23, 7
             s_lshl_b32 s23, s23, 1
             s_add_u32 s33, s23, s28
             s_lshl_b32 s23, s33, 17
             s_lshl_b32 s24, s32, 10
             s_add_u32 s23, s23, s24
             s_add_u32 s88, s23, {q}
             s_add_u32 s89, s88, 65536
             s_lshl_b32 s23, s{J}, 4
             s_add_u32 s23, s23, s33
             s_lshl_b32 s23, s23, 4
             s_and_b32 s24, s32, 7
             s_add_u32 s23, s23, s24
             s_lshl_b32 s23, s23, 2
             s_add_u32 s90, s23, {fq}
             s_add_u32 s91, s90, 32""".format(L=vL, wa=QW, base=L_RING + 4*8192, lin=vLin, J=sJ, TQ=sTQ, S=sS, HG=sHG, q=WS_Q, fq=WS_FQ, dq=DQ))
    def qreads(xf, wf, ks, off):
        A("ds_read_b128 %s, v%d offset:%d" % (v(xf + 4*ks, 4), QX + ks, off))
        A("ds_read_b64_tr_b16 %s, v%d offset:%d" % (v(wf + 4*ks, 2), QW, off + 2048*ks))
        A("ds_read_b64_tr_b16 %s, v%d offset:%d" % (v(wf + 4*ks + 2, 2), QW, off + 2048*ks + 512))
    UE, PE = 0, opts.get("pearly", 0)
    chores = {0: [chore0], 1: [chore1], 3: [chore5], 4: [chore6], 5: [chore7], 6: [chore8], 7: [chore9]}
    for t in range(8):
        vm.need("V%d" % t)
        if t == 0: stamp(1)
        bar()
        issue(10 + 3*t, min(13 + 3*t, 32))
        if t == 7:
            slot_load(30, 25); vm.add("slot")
        for f_ in chores.get(t, []): f_()
        if t == 7 and opts.get("mwarm"):
            A("""v_lshlrev_b32 v25, 7, v{L}
                 s_lshl_b32 s23, s26, 17
                 s_lshl_b32 s24, s27, 2
                 s_add_u32 s24, s24, s{S}
                 s_lshl_b32 s24, s24, 11
                 s_add_u32 s23, s23, s24
                 s_mov_b64 exec, 0xffff
                 buffer_load_dword v163, v25, s[40:43], s23 offen
                 s_lshl_b32 s23, s27, 15
                 s_lshl_b32 s24, s26, 1
                 s_add_u32 s24, s24, s28
                 s_lshl_b32 s24, s24, 10
                 s_add_u32 s23, s23, s24
                 s_mov_b64 exec, 0xff
                 buffer_load_dword v164, v25, s[36:39], s23 offen
                 s_mov_b64 exec, -1""".format(L=vL, S=sS))
            vm.add("W", 2)
    vm.need("Q3", lg=0); bar()
    sets = ((XF, WF), (XF2, WF2))
    for ks in range(4): qreads(XF, WF, ks, 0)
    for c in range(8):
        xf, wf = sets[c & 1]; xn, wn = sets[(c + 1) & 1]
        if c == 3:
            vm.need("Q7"); A("s_barrier")
        for ks in range(4):
            wait(lg=9 if c < 7 else 9 - 3*ks)
            A("v_mfma_f32_32x32x16_bf16 %s, %s, %s, %s" % (v(ACC, 16), v(wf + 4*ks, 4), v(xf + 4*ks, 4), "0" if c == 0 and ks == 0 else v(ACC, 16)))
            if c < 7: qreads(xn, wn, ks, 8192*(c + 1))
    def signal(*ps):
        one_lane(["ds_add_u32 v%d, v%d offset:%d" % (vCA, vOne, 4 * p) for p in ps])
    def lds_wait(idx, n, tmp=25):
        l, d = lab("hb"), lab("hd")
        A("s_mov_b32 s%d, 0" % sSPIN)
        A.label(l)
        A("""ds_read_b32 v{t}, v{ca} offset:{o}
             s_add_u32 s{sp}, s{sp}, 1
             s_cmp_gt_u32 s{sp}, {SP}
             s_cbranch_scc1 {d}
             s_waitcnt lgkmcnt(0)
             v_cmp_gt_u32 vcc, {n}, v{t}
             s_nop 1
             s_cbranch_vccz {d}
             {sl}
             s_branch {l}""".format(t=tmp, ca=vCA, o=4*idx, sp=sSPIN, SP=SPIN, d=d, l=l, n=n, sl="s_sleep %d" % opts.get("sleep", 1) if opts.get("sleep", 1) else ""))
        A.label(d)
    A("""s_lshr_b32 s23, s{I}, 1
         s_lshl_b32 s23, s23, 9
         s_add_u32 s50, s23, {f}
         s_mov_b64 s[62:63], 0
         s_lshl_b32 s61, s{I}, 17
         s_lshl_b32 s23, s{S}, 12
         s_add_u32 s61, s61, s23
         s_add_u32 s61, s61, {kvg}
         s_mov_b32 s51, s23""".format(I=sI, S=sS, f=WS_FKVG, kvg=WS_KVG))
    def remote(p, dma=True):
        l = lab("rb")
        A("""s_add_u32 s30, s{J}, {p}
             s_and_b32 s30, s30, 7
             s_lshl_b32 s31, s30, 3
             s_mov_b32 s{sp}, 0""".format(J=sJ, p=p, sp=sSPIN))
        A.label(l)
        A("""s_lshr_b64 s[24:25], s[62:63], s31
             s_and_b32 s24, s24, 0xff
             s_cmp_eq_u32 s24, 0xff
             s_cbranch_scc1 {l}g
             buffer_load_dwordx2 v[26:27], v{fa}, s[12:15], s50 offen sc1
             s_add_u32 s{sp}, s{sp}, 1
             s_cmp_gt_u32 s{sp}, {SP}
             s_cbranch_scc1 {l}g
             s_waitcnt vmcnt(0)
             v_cmp_eq_u32 s[62:63], s{TAG}, v26
             v_cmp_eq_u32 vcc, s{TAG}, v27
             s_nop 1
             s_and_b64 s[62:63], s[62:63], vcc
             s_branch {l}""".format(l=l, fa=vFA8, sp=sSPIN, SP=SPIN, TAG=sTAG))
        A.label(l + "g")
        if not dma: return
        A("""s_lshl_b32 s30, s30, 14
             s_add_u32 m0, s51, {dst}
             s_add_u32 s30, s30, s61""".format(dst=16384 * p))
        for k in range(4):
            A("buffer_load_dwordx4 v%d, s[12:15], s30 offen offset:%d sc1 lds" % (vLin, 1024 * k))
        vm.add("p%d" % p, 4)
    def ucompute(c, fill=(), arrive=None):
        o = USLOT[c] * 24576
        fill = list(fill)
        LA = opts.get("ula", 0)
        def rd(ks):
            F = 72 + 12 * (ks & 1) if LA else 80
            for w_ in range(3):
                A("ds_read_b128 %s, v%d offset:%d" % (v(F + 4*w_, 4), (36 if w_ == 0 else 32) + ks, o + (4096 if w_ == 2 else 0)))
        if LA: rd(0)
        for ks in range(4):
            F = 72 + 12 * (ks & 1) if LA else 80
            if not LA: rd(ks)
            elif ks < 3: rd(ks + 1)
            if fill: fill.pop(0)()
            wait(lg=3 if (LA and ks < 3) else 0)
            if ks == 3 and arrive:
                vm.need(*arrive[0]); signal(*(arrive[1] + (11,)))
            for im in range(2):
                acc = UIM if im else URE
                A("v_mfma_f32_32x32x16_bf16 %s, %s, %s, %s" % (v(acc, 16), v(F, 4), v(F + 4 + 4*im, 4), "0" if (c == 0 and ks == 0) else v(acc, 16)))
        assert not fill
    def ufill(c):
        return [(lambda x=x: (A(x), vm.add("u%d" % c, 2))) for x in udma_parts(c)]
    hb = [0]
    def hwait():
        hb[0] += 4
        lds_wait(11, hb[0])
        if stamps == "hb": stamp(32 + hb[0] // 4)
    A("s_barrier")
    stamp(9)
    vm.need("slot")
    slot_eval(30)
    A("v_mov_b32 v25, 0x3eb8aa3b\nv_mov_b32 v26, s%d\ns_nop 1" % sTAG)
    for r in range(16):
        A("v_mul_f32 v%d, v25, v%d" % (ACC + r, ACC + r))
    for q in range(8):
        A("v_cvt_pk_bf16_f32 v%d, v%d, v%d" % (48 + q, ACC + 2*q, ACC + 2*q + 1))
    A("""buffer_store_dwordx4 v[48:51], v{lin}, s[12:15], s88 offen sc1
         buffer_store_dwordx4 v[52:55], v{lin}, s[12:15], s89 offen sc1
         v_mov_b32 v30, v26
         v_lshlrev_b32 v25, 2, v{L}
         v_add_u32 v25, {cnt}, v25
         v_mov_b32 v26, 0
         v_writelane_b32 v26, 8, 1
         v_writelane_b32 v26, 8, 2
         v_writelane_b32 v26, 4, 3
         v_writelane_b32 v26, 4, 4
         v_writelane_b32 v26, 4, 5
         v_writelane_b32 v26, 4, 6
         v_writelane_b32 v26, 4, 7
         v_writelane_b32 v26, 4, 8
         ds_write_b32 v25, v26""".format(L=vL, cnt=L_CNT, lin=vLin))
    chore11()
    wait(vm=0)
    vm.q = []
    A("s_mov_b64 exec, 1")
    mode_stores(["buffer_store_dword v30, off, s[12:15], s90", "buffer_store_dword v30, off, s[12:15], s91"])
    A("s_mov_b64 exec, -1")
    vm.add("fq", 2)
    EARLY = opts.get("early", 1)
    if EARLY:
        wait(lg=0); A("s_barrier")
        udma(0)
        if EARLY > 1: udma(1)
    wait(lg=0); A("s_barrier")
    stamp(2)
    def o_touch():
        A("""s_lshl_b32 s23, s{J}, 2
             s_add_u32 s23, s23, s{S}
             s_lshl_b32 s24, s23, 16
             s_lshl_b32 s25, s{I}, 10
             s_add_u32 s24, s24, s25
             s_add_u32 s24, s24, {o}
             v_and_b32 v25, 7, v{L}
             v_lshlrev_b32 v25, 7, v25
             v_bfe_u32 v26, v{L}, 3, 1
             v_lshl_add_u32 v25, v26, 15, v25
             v_add_u32 v25, s24, v25
             s_lshl_b32 s23, s23, 8
             s_add_u32 s23, s23, {fo}
             v_writelane_b32 v25, s23, 16
             s_add_u32 s23, s23, 128
             v_writelane_b32 v25, s23, 17
             s_mov_b64 exec, 0x3ffff
             buffer_load_dword v163, v25, s[12:15], 0 offen sc1
             s_mov_b64 exec, -1""".format(L=vL, HG=sHG, TQ=sTQ, S=sS, c=WS_C, wo=WS_WO, J=sJ, I=sI, o=WS_O, fo=WS_FO))
    GT = 0
    def cold():
        pre_loads()
        A("""s_mov_b64 exec, 1
             buffer_load_dword v162, off, s[12:15], s94 sc1
             s_mov_b64 exec, -1
             global_load_dwordx2 v[160:161], v{dk}, s[{pd}:{pd1}]""".format(dk=vDk, pd=P_DSK, pd1=P_DSK+1))
        vm.add("T", 2)
    A.mark0 = len(A.lines)
    if opts.get("nossm"):
        remote(1); remote(3, False); wait(vm=0); signal(1); remote(2); remote(4, False); wait(vm=0); signal(2)
        remote(5, False); remote(6, False); remote(7, False); signal(13, 13, 9)
        stamp_out()
        A("s_endpgm")
    if EARLY:
        remote(1)
        if EARLY == 1: udma(1)
        remote(3, False)
        vm.need("u0"); signal(11)
        hwait(); ucompute(0, ufill(2), (("u1", "p1"), (1,)))
        stamp(3)
        remote(2); cold(); remote(4, False)
    else:
        remote(1); remote(3, False)
        vm.need("p1"); signal(1)
        stamp(3)
        udma(0); remote(2); cold(); remote(4, False)
        vm.need("u0"); signal(11)
        udma(1)
        vm.need("p2"); signal(2)
        hwait(); ucompute(0, ufill(2), (("u1",), ()))
        prepass()
    hwait(); ucompute(1, ufill(3), (("u2",), ()))
    hwait(); ucompute(2, ufill(4), (("u3",), (2,) if EARLY else ()))
    if EARLY: prepass()
    else: fp_flag()
    hwait(); ucompute(3, ufill(5), (("u4",), ()))
    hwait(); ucompute(4, ufill(6), (("u5",), ()))
    if EARLY: fp_flag()
    hwait(); ucompute(5, ufill(7), (("u6",), ()))
    remote(5, False)
    hwait(); signal(13); ucompute(6, (), (("u7",), ()))
    remote(6, False); remote(7, False)
    hwait(); signal(13); ucompute(7)
    stamp(10)
    def pstep(dr, di, sr, si, ir, ii):
        A("""v_pk_fma_f32 {dr}, {l}, {sr}, {ir} op_sel_hi:[0,1,1]
             v_pk_fma_f32 {di}, {l}, {si}, {ii} op_sel_hi:[0,1,1]
             v_pk_fma_f32 {dr}, {l}, {si}, {dr} op_sel:[1,0,0] neg_lo:[1,0,0] neg_hi:[1,0,0]
             v_pk_fma_f32 {di}, {l}, {sr}, {di} op_sel:[1,0,0]""".format(dr=v(dr, 2), di=v(di, 2), sr=v(sr, 2), si=v(si, 2), ir=v(ir, 2), ii=v(ii, 2), l=v(LAM, 2)))
    def cacc2(dr, di, p, xr, xi):
        A("""v_fmac_f32 v{dr}, v{p}, v{xr}
             v_fmac_f32 v{di}, v{p}, v{xi}
             v_fma_f32 v{dr}, -v{p1}, v{xi}, v{dr}
             v_fmac_f32 v{di}, v{p1}, v{xr}""".format(dr=dr, di=di, p=p, p1=p+1, xr=xr, xi=xi))
    A("s_nop 7\ns_nop 3")
    pr, pi = URE, UIM
    for k in range(1, 8):
        nr, ni = (40, 42) if k % 2 else (44, 46)
        pstep(nr, ni, pr, pi, URE + 2*k, UIM + 2*k)
        pr, pi = nr, ni
    cacc2(41, 43, L8, 40, 42)
    A("""v_mov_b32 v44, v41
         v_mov_b32 v45, v43
         v_mov_b32 v46, v41
         v_mov_b32 v47, v43
         s_nop 1
         v_permlane32_swap_b32 v44, v46
         v_permlane32_swap_b32 v45, v47""")
    cacc2(46, 47, MU, 44, 45)
    A("ds_write_b64 v%d, v[46:47]" % vXWw)
    wait(lg=0)
    signal(10)
    lds_wait(10, 4)
    WX = 24
    for k in range(4):
        A("ds_read_b64 %s, v%d offset:%d" % (v(WX + 2*k, 2), vXWb, 256 * k))
    A("""s_add_u32 s4, s12, {e}
         s_addc_u32 s5, s13, 0
         s_mov_b32 s6, 0x20000
         s_mov_b32 s7, 0x20000
         s_lshl_b32 s23, s26, 13
         s_lshl_b32 s24, s{S}, 3
         s_lshl_b64 s[24:25], 0xff, s24
         v_mov_b32 v65, s{TAG}
         v_mov_b32 v67, s{TAG}""".format(e=WS_E, S=sS, TAG=sTAG))
    wait(lg=0)
    A("v_mov_b32 v60, v26\nv_mov_b32 v61, v27\nv_mov_b32 v62, v28\nv_mov_b32 v63, v29\nv_mov_b32 v64, v30\nv_mov_b32 v66, v31")
    cacc2(60, 61, NU, 24, 25)
    cacc2(62, 63, NU, 60, 61)
    cacc2(64, 66, NU, 62, 63)
    A("""s_mov_b64 exec, s[24:25]
         buffer_store_dwordx4 v[64:67], v%d, s[4:7], s23 offen sc1
         s_mov_b64 exec, -1""" % vCh16)
    for k in range(6): A("v_mov_b32 v%d, v%d" % (2 + k, WX + k))
    stamp(11)
    EX = 48
    A("v_mov_b32 v80, v%d" % vEb)
    for n in range(1, 8):
        A("v_subrev_u32 v%d, 8192, v%d" % (80 + n, 80 + n - 1))
    def e_loads():
        for n in range(8):
            A("buffer_load_dwordx4 %s, v%d, s[4:7], 0 offen sc1" % (v(EX + 4*n, 4), 80 + n))
    CF = opts.get("cfirst", 1)
    if not CF: e_loads()
    A("s_lshl_b32 s28, s%d, 9\ns_add_u32 s28, s28, %d" % (sHG, WS_FP))
    l, d = lab("pp"), lab("pd")
    A("s_mov_b32 s%d, 0" % sSPIN)
    A.label(l)
    A("""buffer_load_dwordx2 v[26:27], v{fa}, s[12:15], s28 offen sc1
         s_add_u32 s{sp}, s{sp}, 1
         s_cmp_gt_u32 s{sp}, {SP}
         s_cbranch_scc1 {d}
         s_waitcnt vmcnt(0)
         v_cmp_ne_u32 s[24:25], s{TAG}, v26
         v_cmp_ne_u32 vcc, s{TAG}, v27
         s_nop 1
         s_or_b64 vcc, vcc, s[24:25]
         s_cbranch_vccnz {l}""".format(fa=vFA8, sp=sSPIN, SP=SPIN, d=d, l=l, TAG=sTAG))
    A.label(d)
    wait(vm=0)
    if stamps == "hb": stamp(42)
    A("""v_lshlrev_b32 v25, 7, v{L}
         s_lshl_b32 s23, s{HG}, 2
         s_add_u32 s23, s23, s{TQ}
         s_lshl_b32 s23, s23, 2
         s_add_u32 s23, s23, s{S}
         s_lshl_b32 s24, s23, 13
         s_add_u32 s24, s24, {c}
         buffer_load_dword v164, v25, s[12:15], s24 offen sc1""".format(L=vL, HG=sHG, TQ=sTQ, S=sS, c=WS_C))
    if CF:
        e_loads(); wait(vm=0)
    stamp(4)
    A("s_mov_b32 s%d, 0" % sSPIN)
    A.label("L_EC")
    A("s_mov_b64 s[30:31], -1")
    for n in range(8):
        A("""v_cmp_eq_u32 s[24:25], s{TAG}, v{t1}
             v_cmp_eq_u32 vcc, s{TAG}, v{t2}
             s_cmp_le_u32 s26, {n}
             s_cselect_b32 s28, -1, 0
             s_cmp_le_u32 s26, {n8}
             s_cselect_b32 s29, -1, 0
             s_and_b64 vcc, vcc, s[24:25]
             s_or_b64 vcc, vcc, s[28:29]
             s_and_b64 s[30:31], s[30:31], vcc""".format(TAG=sTAG, t1=EX+4*n+1, t2=EX+4*n+3, n=n, n8=n+8))
    A("""s_cmp_eq_u64 s[30:31], -1
         s_cbranch_scc1 L_EG
         s_add_u32 s{sp}, s{sp}, 1
         s_cmp_gt_u32 s{sp}, {SP}
         s_cbranch_scc1 L_EG""".format(sp=sSPIN, SP=SPIN))
    e_loads()
    wait(vm=0)
    A("s_branch L_EC")
    A.label("L_EG")
    if stamps == "hb": stamp(43)
    for n in range(6, -1, -1):
        cacc2(EX + 4*n, EX + 4*n + 2, RHO, EX + 4*n + 4, EX + 4*n + 6)
    A("""v_mov_b32 v30, v{r}
         v_mov_b32 v31, v{i}
         s_nop 1
         v_permlane32_swap_b32 v30, v{r}
         v_permlane32_swap_b32 v31, v{i}""".format(r=EX, i=EX+2))
    cacc2(30, 31, RHO8, EX, EX + 2)
    for k in range(3):
        A("s_cmp_le_u32 s%d, %d\ns_cbranch_scc1 L_PG" % (sS, k))
        cacc2(2 + 2*k, 3 + 2*k, NU, 30, 31)
        A("v_mov_b32 v30, v%d\nv_mov_b32 v31, v%d" % (2 + 2*k, 3 + 2*k))
    A.label("L_PG")
    A("s_mov_b32 exec_lo, 0")
    cacc2(44, 45, MU, 30, 31)
    A("v_mov_b32 v30, v44\nv_mov_b32 v31, v45\ns_mov_b32 exec_lo, -1")
    cacc2(40, 42, L8, 30, 31)
    A("v_mov_b32 v24, v30\nv_mov_b32 v25, v40\nv_mov_b32 v26, v31\nv_mov_b32 v27, v42")
    pr, pi = 24, 26
    for k in range(8):
        pstep(URE + 2*k, UIM + 2*k, pr, pi, URE + 2*k, UIM + 2*k)
        pr, pi = URE + 2*k, UIM + 2*k
    for base, dst in ((URE, 48), (UIM, 56)):
        for k in range(8):
            r0 = 4 * (k & 3) + (k >> 2)
            A("v_cvt_pk_bf16_f32 v%d, v%d, v%d" % (dst + k, base + r0, base + r0 + 2))
    A("""ds_write_b128 v{g}, v[48:51]
         ds_write_b128 v{g}, v[52:55] offset:16
         ds_write_b128 v{g}, v[56:59] offset:2048
         ds_write_b128 v{g}, v[60:63] offset:2064
         s_mov_b32 s29, s93
         s_lshl_b32 s23, s92, 4
         s_add_u32 s23, s23, s27
         s_lshl_b32 s23, s23, 2
         s_add_u32 s30, s23, {fg}
         s_and_b32 s25, s32, 62
         s_lshl_b32 s28, s25, 6
         s_lshl_b32 s24, s{S}, 4
         s_add_u32 s28, s28, s24
         s_add_u32 s28, s28, {fg}
         s_lshl_b32 s24, s{S}, 14
         s_lshl_b32 s60, s32, 16
         s_add_u32 s60, s60, s24
         s_add_u32 s60, s60, {gi}
         s_lshl_b32 s59, s33, 16
         s_add_u32 s59, s59, s24
         s_add_u32 s59, s59, {c}
         s_add_u32 s57, s{HG}, s{TQ}
         s_lshl_b32 s57, s57, 12
         v_mov_b32 v29, s{TAG}""".format(g=vGw, S=sS, gi=WS_G, fg=WS_FG, c=WS_C, TAG=sTAG, HG=sHG, TQ=sTQ))
    wait(lg=0)
    for f in range(4):
        for rd in range(2):
            A("ds_read_b64_tr_b16 %s, v%d offset:%d" % (v(64 + 4*f + 2*rd, 2), vGr, f * 1024 + rd * 256))
    wait(lg=0)
    if not GT:
        for f in range(4): A("buffer_store_dwordx4 %s, v%d, s[12:15], s29 offen offset:%d sc1" % (v(64 + 4*f, 4), vLin, 1024*f))
    else:
        mode_stores(["buffer_store_dwordx4 %s, v%d, s[12:15], s29 offen offset:%d" % (v(64 + 4*f, 4), vLin, 1024*f) for f in range(4)])
    wait(vm=0)
    A("s_mov_b64 exec, 1")
    mode_stores(["buffer_store_dword v29, off, s[12:15], s30"])
    A("s_mov_b64 exec, -1")
    stamp(5)
    keep = (vLin, vCA, vOne, vXe, vYw, vYr, vOa)
    yLin, yCA, yOne, yXe, yYw, yYr, yOa = ynew = (16, 17, 18, 19, 21, 30, 31)
    for n_, r_ in zip(ynew, keep): A("v_mov_b32 v%d, v%d" % (n_, r_))
    vCA, vOne = yCA, yOne
    poll_all(vFG, "s28", 25)
    signal(8 + 8 + 8)
    stamp(6)
    YA = 96
    A("s_setprio 0")
    def yload(k, w_):
        A("buffer_load_dwordx4 %s, v%d, s[12:15], s%d offen offset:%d sc1" % (v(YR + 16*k + 4*w_, 4), yLin, 53 + w_, 1024 * k))
    def ymm(k, dt, tt, z=False):
        acc = v(YA + 16*dt + 32*tt, 16)
        A("s_setprio 3")
        A("v_mfma_f32_32x32x16_bf16 %s, %s, %s, %s" % (acc, v(YR + 16*k + 8*dt, 4), v(YR + 16*k + 4 + 8*tt, 4), "0" if z else acc))
        A("s_setprio 0")
    def yadv():
        A("""s_add_u32 s57, s57, 4096
             s_and_b32 s57, s57, 0x3fff
             s_add_u32 s53, s59, s57
             s_add_u32 s54, s60, s57
             s_xor_b32 s55, s53, 65536
             s_xor_b32 s56, s54, 65536""")
    def ygroup(z, more, extra=0):
        for k in range(4):
            base = (12 if more else 12 - 4*k) + extra
            wait(vm=base + 2); ymm(k, 0, 0, z and k == 0)
            wait(vm=base + 1); ymm(k, 1, 0, z and k == 0)
            if more: yload(k, 1)
            wait(vm=base + (1 if more else 0)); ymm(k, 0, 1, z and k == 0)
            if more: yload(k, 0)
            ymm(k, 1, 1, z and k == 0)
            if more: yload(k, 2); yload(k, 3)
    yadv()
    for k in range(4):
        for w_ in (1, 0, 2, 3): yload(k, w_)
    yadv(); ygroup(True, True)
    A("s_mov_b32 s58, 0")
    A.label("L_Y")
    yadv(); ygroup(False, True)
    A("s_add_u32 s58, s58, 1\ns_cmp_lt_u32 s58, 2\ns_cbranch_scc1 L_Y")
    A("""s_mov_b32 s23, 8192
         s_mov_b32 s24, 16384
         s_mov_b32 s25, 24576
         buffer_load_dwordx2 v[8:9], v{xe}, s[40:43], 0 offen
         buffer_load_dwordx2 v[10:11], v{xe}, s[40:43], s23 offen
         buffer_load_dwordx2 v[12:13], v{xe}, s[40:43], s24 offen
         buffer_load_dwordx2 v[14:15], v{xe}, s[40:43], s25 offen""".format(xe=yXe))
    A("""s_lshl_b32 s23, s{HG}, 16
         s_lshl_b32 s54, s{S}, 14
         s_add_u32 s23, s23, s54
         s_add_u32 s53, s23, {wo}""".format(HG=sHG, S=sS, wo=WS_WO))
    lds_wait(5, 12, 20)
    for q in range(4):
        A("s_mov_b32 m0, s54\ns_add_u32 s54, s54, 4096")
        for k in range(4):
            A("buffer_load_dwordx4 v%d, s[12:15], s53 offen offset:%d sc1 lds" % (yLin, 1024*k))
        A("s_add_u32 s53, s53, 4096")
    o_touch()
    if stamps == "hb": stamp(44)
    ygroup(False, False, 21)
    if stamps == "hb": stamp(45)
    if opts.get("wb") is not None:
        A("""s_and_b32 s23, s{I}, {m}
             s_or_b32 s23, s23, s{S}
             s_cmp_eq_u32 s23, 0
             s_cbranch_scc0 L_NWB
             buffer_wbl2 sc1""".format(I=sI, S=sS, m=opts["wb"]))
        A.label("L_NWB")
    A("""s_setprio 3
         s_mov_b32 s36, s{po}
         s_mov_b32 s37, s{po1}
         s_mov_b32 s38, 0x800000
         s_mov_b32 s39, 0x20000
         s_xor_b32 s23, s{S}, 2
         s_lshl_b32 s23, s23, 12
         s_add_u32 s23, s23, 65536
         v_add_u32 v24, s23, v{lin}
         s_xor_b32 s23, s{S}, 1
         s_lshl_b32 s23, s23, 12
         s_add_u32 s23, s23, 81920
         v_add_u32 v25, s23, v{lin}
         s_xor_b32 s23, s34, 12288
         v_add_u32 v26, s23, v{lin}
         s_sub_u32 s23, s34, 65536
         v_add_u32 v27, s23, v{lin}
         v_add_u32 v28, s34, v{lin}""".format(po=P_OUT, po1=P_OUT+1, lin=yLin, S=sS))
    lds_wait(24, 4, 20); lds_wait(7, 12, 20)
    for k in range(3):
        for g in range(4): A("ds_write_b128 v%d, %s offset:%d" % (24 + k, v(YA + 16 + 16*k + 4*g, 4), 1024*g))
    wait(vm=1, lg=0); signal(9, 12); lds_wait(12, 4, 20)
    for k in range(3):
        for g in range(4): A("ds_read_b128 %s, v%d offset:%d" % (v(32 + 16*k + 4*g, 4), 27 if k < 2 else 28, (16384 if k == 1 else 0) + 1024*g))
    A("""v_xor_b32 v25, 32, v{yw}
         v_xor_b32 v26, 64, v{yw}
         v_xor_b32 v27, 96, v{yw}""".format(yw=yYw))
    wait(lg=4)
    for r in range(16): A("v_add_f32 v%d, v%d, v%d" % (32 + r, 32 + r, 48 + r))
    wait(lg=0)
    for r in range(16): A("v_add_f32 v%d, v%d, v%d" % (YA + r, YA + r, 64 + r))
    for r in range(16): A("v_add_f32 v%d, v%d, v%d" % (YA + r, YA + r, 32 + r))
    for g in range(4):
        A("ds_write_b128 v%d, %s" % (yYw if g == 0 else 24 + g, v(YA + 4*g, 4)))
    wait(lg=0)
    vYr, vOa = yYr, yOa
    A("""s_lshl_b32 s23, s32, 17
         s_lshl_b32 s24, s33, 7
         s_add_u32 s23, s23, s24""")
    if stamps == "hb": stamp(46)
    if stamps == "hb": stamp(47)
    for n in range(4):
        A("ds_read_b128 %s, v%d offset:%d" % (v(32 + 4*n, 4), vYr, 1024*n))
    A("""v_lshlrev_b32 v22, 16, v160
         v_and_b32 v23, 0xffff0000, v160
         v_lshlrev_b32 v24, 16, v161
         v_and_b32 v25, 0xffff0000, v161""")
    for n in range(4):
        x = 8 + 2*n
        A("""v_lshlrev_b32 v26, 16, v{x}
             v_and_b32 v27, 0xffff0000, v{x}
             v_lshlrev_b32 v28, 16, v{x1}
             v_and_b32 v29, 0xffff0000, v{x1}""".format(x=x, x1=x+1))
        wait(lg=3 - n)
        for e in range(4):
            A("v_fmac_f32 v%d, v%d, v%d" % (32 + 4*n + e, 26 + e, 22 + e))
        A("buffer_store_dwordx4 %s, v%d, s[36:39], s23 offen %s" % (v(32 + 4*n, 4), vOa, opts.get("ystore", "sc1")))
        if n < 3: A("s_add_u32 s23, s23, 32768")
    stamp(7)
    if stamps != "pad": stamp_out()
    A("s_endpgm")

    A.label("L_ATT")
    barn[0] = None
    vXa, vWa, vWc = 2, 6, 7
    XF, WF, XF2, WF2, ACC = 16, 32, 48, 64, 80
    sP, sTT = 48, 49
    A("""s_and_b32 s{p}, s3, 1
         s_lshr_b32 s{tt}, s3, 1
         s_and_b32 s{tt}, s{tt}, 1
         s_mov_b32 s{vm}, 0xffff
         s_mov_b32 s{vm1}, 0xffff""".format(p=sP, tt=sTT, vm=sVM, vm1=sVM+1))
    if opts.get("codepf", True):
        A("""s_cmp_eq_u32 s3, 6
             s_cbranch_scc0 L_NOPF
             s_getpc_b64 s[24:25]
             L_PC:
             s_sub_u32 s24, s24, L_PC-L_START
             s_subb_u32 s25, s25, 0
             v_lshlrev_b32 v8, 7, v1
             global_load_dword v163, v8, s[24:25]
             v_add_u32 v8, 8192, v8
             global_load_dword v164, v8, s[24:25]
             v_add_u32 v8, 8192, v8
             v_min_u32 v8, L_CODE_END-L_START-4, v8
             global_load_dword v165, v8, s[24:25]""")
        A.label("L_NOPF")
    frag_addr(vXa, 8, 9)
    A("s_lshl_b32 s23, s%d, 12" % sTT)
    for ks in range(4):
        A("v_add_u32 v%d, s23, v%d" % (vXa + ks, vXa + ks))
    A("""v_bfe_u32 v8, v{L}, 2, 2
         v_lshrrev_b32 v9, 5, v{L}
         v_lshl_add_u32 v9, v9, 3, v8
         v_lshlrev_b32 v{wa}, 7, v9
         v_bfe_u32 v9, v{L}, 4, 1
         s_lshl_b32 s23, s{p}, 1
         v_add_u32 v9, s23, v9
         v_and_b32 v8, 2, v8
         v_xor_b32 v9, v9, v8
         v_lshl_add_u32 v{wa}, v9, 5, v{wa}
         v_and_b32 v8, 3, v{L}
         s_waitcnt lgkmcnt(0)
         s_add_u32 s12, s12, {wso}
         s_addc_u32 s13, s13, 0
         s_load_dword s{ep}, s[12:13], 0""".format(wso=WSO, L=vL, wa=vWa, p=sP, ep=sEP))
    for r in range(16): A("v_mov_b32 v%d, 0" % (ACC + r))
    A("""s_lshl_b32 s23, s{J}, 2
         s_add_u32 s23, s23, s{TQ}
         s_lshl_b32 s23, s23, 1
         s_add_u32 s51, s23, s{tt}
         s_lshr_b32 s25, s3, 2
         s_mul_i32 s23, s25, {dv}
         s_add_u32 s23, s23, s{HG}
         s_and_b32 s23, s23, 7
         s_lshl_b32 s23, s23, 1
         s_add_u32 s61, s23, s{p}
         s_lshl_b32 s52, s61, 18
         s_lshl_b32 s24, s51, 11
         s_add_u32 s50, s52, s24
         s_lshl_b32 s23, s{TQ}, 1
         s_add_u32 s23, s23, s25
         s_lshl_b32 s23, s23, 1
         s_add_u32 s23, s23, s{tt}
         s_lshl_b32 s23, s23, 2
         s_lshl_b32 s24, s{J}, 4
         s_add_u32 s24, s24, s61
         s_lshl_b32 s24, s24, 6
         s_add_u32 s59, s24, s23
         s_add_u32 s59, s59, {fl}
         s_lshl_b32 s24, s61, 3
         s_add_u32 s24, s24, s{J}
         s_lshl_b32 s24, s24, 6
         s_add_u32 s60, s24, s23
         s_add_u32 s60, s60, {fg}
         v_lshlrev_b32 v11, 4, v{L}
         s_lshl_b32 s30, s3, 11
         s_lshl_b32 s23, s{I}, 17
         s_add_u32 s23, s23, s30
         s_add_u32 s62, s23, {kvg}
         s_lshl_b32 s24, s{J}, 14
         s_add_u32 s29, s62, s24
         s_lshr_b32 s24, s{I}, 1
         s_lshl_b32 s23, s{J}, 4
         s_add_u32 s23, s23, s24
         s_lshl_b32 s23, s23, 6
         s_add_u32 s28, s23, {fl}
         s_lshl_b32 s23, s24, 3
         s_add_u32 s23, s23, s{J}
         s_lshl_b32 s23, s23, 6
         s_add_u32 s31, s23, {fg}
         s_and_b32 s24, s3, 3
         s_lshl_b32 s24, s24, 1
         s_lshl_b32 s23, s{J}, 5
         s_add_u32 s23, s23, s{I}
         s_lshl_b32 s23, s23, 3
         s_add_u32 s23, s23, s24
         s_lshl_b32 s23, s23, 2
         s_add_u32 s32, s23, {fq}
         s_add_u32 s24, s24, s25
         s_lshl_b32 s23, s{J}, 3
         s_add_u32 s34, s23, s24
         s_lshl_b32 s23, s{I}, 6
         s_add_u32 s23, s23, s34
         s_lshl_b32 s23, s23, 10
         s_add_u32 s33, s23, {q}
         v_mov_b32 v144, v11
         v_mov_b32 v145, 1
         s_waitcnt lgkmcnt(0)""".format(J=sJ, I=sI, TQ=sTQ, tt=sTT, HG=sHG, p=sP, fl=WS_FL, fg=WS_FKVG, L=vL, dv=DV, kvg=WS_KVG, fq=WS_FQ, q=WS_Q))
    tag_from_epoch()
    A("v_mov_b32 v10, s%d" % sTAG)
    A("s_cmp_ge_u32 s3, 4\ns_cbranch_scc1 L_VPRE")
    A("""v_lshrrev_b32 v9, 1, v8
         v_lshlrev_b32 v8, 1, v8
         v_and_b32 v8, 2, v8
         v_or_b32 v9, v9, v8
         v_lshl_add_u32 v{wa}, v9, 3, v{wa}""".format(wa=vWa))
    def reads(xf, wf, ks, xoff, woff):
        A("ds_read_b128 %s, v%d offset:%d" % (v(xf + 4*ks, 4), vXa + ks, xoff))
        A("ds_read_b64_tr_b16 %s, v%d offset:%d" % (v(wf + 4*ks, 2), vWc, woff + 2048*ks))
        A("ds_read_b64_tr_b16 %s, v%d offset:%d" % (v(wf + 4*ks + 2, 2), vWc, woff + 2048*ks + 512))
    def kv_loop(lbl, is_k):
        A.label(lbl)
        bar()
        A("v_add_u32 v%d, s56, v%d" % (vWc, vWa))
        for ks in range(4): reads(XF, WF, ks, 0, 0)
        A("""s_add_u32 s56, s56, s57
             s_cmp_ge_u32 s56, 163840
             s_cselect_b32 s23, 98304, 0
             s_sub_u32 s56, s56, s23""")
        for ks in range(4):
            wait(lg=9 - 3*ks)
            a_, b_ = (WF, XF) if is_k else (XF, WF)
            A("v_mfma_f32_32x32x16_bf16 %s, %s, %s, %s" % (v(ACC, 16), v(a_ + 4*ks, 4), v(b_ + 4*ks, 4), v(ACC, 16)))
            A("v_add_u32 v%d, 8192, v%d" % (vXa + ks, vXa + ks))
        A("s_add_u32 s58, s58, 1\ns_and_b32 s23, s58, 7\ns_cbranch_scc1 %s" % lbl)
    PK = 96
    A("""v_mov_b32 v14, v11
         s_add_u32 s53, s50, {g}
         s_add_u32 s54, s53, 131072
         s_mov_b32 s58, 0
         s_mov_b32 s56, {ring}
         s_mov_b32 s57, 16384""".format(g=WS_KVG, ring=L_RING))
    kv_loop("L_K", True)
    A("s_branch L_KVE")

    A.label("L_VPRE")
    A("v_lshl_add_u32 v%d, v8, 3, v%d" % (vWa, vWa))
    A("s_cmp_eq_u32 s3, 7\ns_cbranch_scc0 L_VP3")
    A("""v_mov_b32 v100, s{TAG}
         v_mov_b32 v101, s{X}
         s_lshl_b32 s23, s{J}, 5
         s_add_u32 s23, s23, s{I}
         s_lshl_b32 s23, s23, 3
         s_add_u32 s23, s23, {x}""".format(TAG=sTAG, X=sXCC, J=sJ, I=sI, x=WS_XCC))
    one_lane(["buffer_store_dwordx2 v[100:101], off, s[12:15], s23 sc1"])
    A.label("L_VP3")
    A("""v_bfe_u32 v14, v{L}, 4, 1
         v_lshlrev_b32 v14, 17, v14
         v_lshrrev_b32 v9, 5, v{L}
         v_lshl_add_u32 v14, v9, 9, v14
         v_and_b32 v9, 15, v{L}
         v_lshl_add_u32 v14, v9, 4, v14
         s_add_u32 s53, s50, {g}
         s_add_u32 s54, s53, 256""".format(L=vL, g=WS_KVG + 1024))
    A("s_mov_b32 s58, 0\ns_mov_b32 s56, %d\ns_mov_b32 s57, 16384" % (L_RING + 8192))
    kv_loop("L_V", False)
    A.label("L_KVE")
    bar()
    stamp(1)
    slot_load(12, 8)
    A("s_nop 1")
    for q in range(8):
        A("v_cvt_pk_bf16_f32 v%d, v%d, v%d" % (PK + q, ACC + 2*q, ACC + 2*q + 1))
    A("""buffer_store_dwordx4 v[96:99], v14, s[12:15], s53 offen sc1
         buffer_store_dwordx4 v[100:103], v14, s[12:15], s54 offen sc1""")
    bar()
    vKA, vCN, vCA2, Q, K, V0, V1, P, S0, S1, O = 2, 3, 28, 4, 8, 12, 16, 20, 32, 48, 64
    Q1, VB, O1 = 96, 100, 80
    WOF, OF, WACC = 80, 16, 48
    vPW, vPR, vOUT, vFO, vWA, vXW, vXL, vXF, vTAG, vCB = 148, 152, 154, 155, 156, 157, 158, 159, 160, 147
    L_XL = 157696
    A("""s_lshr_b32 s52, s3, 1
         s_sub_u32 s63, s62, s30
         s_lshr_b32 s23, s3, 2
         s_lshl_b32 s23, s23, 13
         v_add_u32 v{ka}, s23, v11
         v_mov_b32 v{ca}, {cnt4}
         v_mov_b32 v{cb}, {cnt}
         v_mov_b32 v{tag}, v10
         s_lshl_b32 s23, s34, 5
         s_add_u32 s23, s23, s{I}
         s_lshl_b32 s88, s23, 10
         s_add_u32 s88, s88, {o}
         s_lshl_b32 s89, s23, 2
         s_add_u32 s89, s89, {fo}
         s_lshl_b32 s23, s{J}, 2
         s_add_u32 s24, s23, s{TQ}
         s_lshl_b32 s23, s24, 1
         s_add_u32 s23, s23, s{p}
         s_lshl_b32 s23, s23, 2
         s_add_u32 s23, s23, s52
         s_lshl_b32 s90, s23, 13
         s_add_u32 s90, s90, {o}
         s_add_u32 s91, s90, 4096
         s_lshl_b32 s92, s23, 5
         s_add_u32 s92, s92, {fo}
         s_lshl_b32 s23, s24, 3
         s_add_u32 s23, s23, s3
         s_lshl_b32 s23, s23, 15
         s_lshl_b32 s24, s{HG}, 8
         s_add_u32 s23, s23, s24
         s_add_u32 s93, s23, 2048
         s_add_u32 s35, s93, 16384
         s_mov_b32 s36, s{po}
         s_mov_b32 s37, s{po1}
         s_mov_b32 s38, 0x800000
         s_mov_b32 s39, 0x20000
         v_and_b32 v29, 7, v{L}
         v_lshlrev_b32 v{vfo}, 2, v29
         s_lshl_b32 s23, s52, 13
         v_add_u32 v{wa}, s23, v11
         s_add_u32 s23, s30, 98304
         v_add_u32 v{xw}, s23, v11
         s_lshl_b32 s23, s3, 8
         s_add_u32 s23, s23, {xl}
         v_lshl_add_u32 v{vxl}, v{L}, 2, s23
         s_lshl_b32 s23, s3, 2
         s_add_u32 s23, s23, {cnt64}
         v_mov_b32 v{xf}, s23
         s_lshl_b32 s23, s3, 13
         v_and_b32 v30, 31, v{L}
         v_lshrrev_b32 v31, 5, v{L}
         v_xor_b32 v31, v31, v30
         v_and_b32 v31, 7, v31
         v_lshlrev_b32 v31, 4, v31
         v_lshl_add_u32 v30, v30, 7, v31
         v_add_u32 v{pw}, s23, v30
         v_xor_b32 v{pw1}, 32, v{pw}
         v_xor_b32 v{pw2}, 64, v{pw}
         v_xor_b32 v{pw3}, 96, v{pw}
         v_lshrrev_b32 v30, 4, v{L}
         v_xor_b32 v29, v29, v30
         v_lshlrev_b32 v29, 4, v29
         v_lshl_add_u32 v29, v30, 7, v29
         v_bfe_u32 v31, v{L}, 3, 1
         v_lshl_add_u32 v29, v31, 12, v29
         s_lshr_b32 s23, s3, 2
         s_lshl_b32 s23, s23, 13
         s_and_b32 s24, s3, 3
         s_lshl_b32 s24, s24, 10
         s_add_u32 s23, s23, s24
         v_add_u32 v{pr}, s23, v29
         v_xor_b32 v{pr1}, 64, v{pr}
         v_and_b32 v29, 15, v{L}
         v_lshlrev_b32 v29, 4, v29
         v_lshl_add_u32 v{out}, v30, 12, v29
         v_and_b32 v31, 1, v{L}
         v_lshl_add_u32 v31, v31, 2, s32
         v_lshlrev_b32 v30, 2, v{L}
         v_cmp_gt_u32 s[26:27], 16, v{L}""".format(ka=vKA, ca=vCA2, cnt4=L_CNT + 4, cb=vCB, cnt=L_CNT, tag=vTAG, I=sI, o=WS_O, fo=WS_FO, J=sJ, TQ=sTQ, p=sP,
              HG=sHG, po=P_OUT, po1=P_OUT + 1, L=vL, vfo=vFO, wa=vWA, xw=vXW, xl=L_XL, vxl=vXL, cnt64=L_CNT + 64, xf=vXF,
              pw=vPW, pw1=vPW + 1, pw2=vPW + 2, pw3=vPW + 3, pr=vPR, pr1=vPR + 1, out=vOUT))
    for r in range(32): A("v_mov_b32 v%d, 0" % (O + r))
    bar()
    wait(vm=0)
    stamp(2)
    one_lane(["buffer_store_dword v10, off, s[12:15], s59"])
    slot_eval(12)
    A("s_cmp_eq_u32 s%d, 0\ns_cbranch_scc0 L_KF\ns_mov_b32 s28, s31" % sFAST)
    one_lane(["buffer_store_dword v10, off, s[12:15], s60 sc1"])
    A.label("L_KF")
    A("""v_add_u32 v30, s28, v30
         s_xor_b32 s23, s33, 1024
         v_cndmask_b32 v30, v31, v30, s[26:27]""")
    poll_all(30, "0", 29)
    A("""s_mov_b32 m0, s30
         s_nop 0
         buffer_load_dwordx4 v11, s[12:15], s29 offen sc1 lds
         buffer_load_dwordx4 v11, s[12:15], s29 offen offset:1024 sc1 lds
         buffer_load_dwordx4 %s, v11, s[12:15], s33 offen sc1
         buffer_load_dwordx4 %s, v11, s[12:15], s23 offen sc1""" % (v(Q, 4), v(Q1, 4)))
    one_lane(["buffer_store_dword v10, off, s[12:15], s60 sc1"])
    if EARLY: bar()
    stamp(8)
    A("""v_and_b32 v29, 31, v{L}
         v_cmp_eq_u32 vcc, 16, v29
         v_mov_b32 v29, 0x3f803f80
         s_nop 0
         v_cndmask_b32 v{v0}, 0, v29, vcc""".format(L=vL, v0=V0))
    for r in list(range(V0 + 1, V0 + 8)) + list(range(VB, VB + 8)): A("v_mov_b32 v%d, v%d" % (r, V0))
    def vreads(off, Vd):
        A("""s_mov_b64 exec, s[{m}:{m1}]
             ds_read_b128 {a}, v{ka} offset:{o0}
             ds_read_b128 {b}, v{ka} offset:{o1}
             s_mov_b64 exec, -1""".format(m=sVM, m1=sVM+1, a=v(Vd, 4), b=v(Vd + 4, 4), ka=vKA, o0=off + 1024, o1=off + 1280))
    HI = opts.get("hi", 6.5)
    if HI:
        A("s_cmp_ge_u32 s3, 4\ns_cbranch_scc0 L_PR\ns_setprio 1")
        A.label("L_PR")
    wait(vm=1); bar()
    A("ds_read_b128 %s, v%d" % (v(K, 4), vKA))
    vreads(0, V0)
    wait(lg=0)
    stamp(3); cstamp(14)
    A("v_mfma_f32_32x32x16_bf16 %s, %s, %s, 0" % (v(S0, 16), v(K, 4), v(Q, 4)))
    A("s_mov_b32 s58, 0\ns_nop 10")
    A("v_exp_f32 v%d, v%d\nv_exp_f32 v%d, v%d" % (S0, S0, S0 + 1, S0 + 1))
    TC, TI = opts.get("tc", 3), opts.get("ti", 5)
    PAT = {"a": ([0], [6.5]), "b": ([0, 4], [3.5, 7]), "c": ([0, 4], [3, 7.5]), "d": ([0, 2, 4, 6], [1.5, 3.5, 5.5]), "e": ([0, 4], [3.5, 7.5]), "f": ([0, 4], [3, 7])}[opts.get("pat", "b")]
    def att_loop(x):
        A(".p2align 6")
        A.label("L_A" + x)
        for t in range(8):
            u = t >> 1
            S, N, qn, Oc = (S0, S1, Q1, O) if t % 2 == 0 else (S1, S0, Q, O1)
            Vc, Vn = (V0, VB) if u % 2 == 0 else (VB, V0)
            nxt = 2048 * (u + 1) if u < 3 else 16384
            if x == "k" and t in PAT[0]: A("s_setprio 2")
            if x == "k" and t in PAT[1]: A("s_setprio 0")
            if t == TC:
                A("s_cmp_ge_u32 s58, 2\ns_cbranch_scc1 L_DC" + x)
                A.label("L_DCR" + x)
            if t == TI:
                A("s_sub_u32 s24, s58, 1\ns_cmp_lt_u32 s24, 5\ns_cbranch_scc1 L_DM" + x)
                A.label("L_DR" + x)
            if t == 6: A("v_readfirstlane_b32 s23, v%d" % vCN)
            for e in range(2, 8): A("v_exp_f32 v%d, v%d" % (S + e, S + e))
            if t % 2: wait(lg=0)
            A("v_mfma_f32_32x32x16_bf16 %s, %s, %s, 0" % (v(N, 16), v(K, 4), v(qn, 4)))
            if t % 2 == 0:
                if t == 6:
                    A("s_cmp_lt_u32 s23, 12\ns_cbranch_scc1 L_AW" + x)
                    A.label("L_AR" + x)
                A("ds_read_b128 %s, v%d offset:%d" % (v(K, 4), vKA, nxt))
                if t == 4: A("ds_read_b32 v%d, v%d" % (vCN, vCA2))
                vreads(nxt, Vn)
            for q in range(4): A("v_cvt_pk_bf16_f32 v%d, v%d, v%d" % (P + q, S + 2*q, S + 2*q + 1))
            for e in (8, 9): A("v_exp_f32 v%d, v%d" % (S + e, S + e))
            A("v_mfma_f32_32x32x16_bf16 %s, %s, %s, %s" % (v(Oc, 16), v(Vc, 4), v(P, 4), v(Oc, 16)))
            if x == "k" and t + 0.5 in PAT[1]: A("s_setprio 0")
            for e in range(10, 16): A("v_exp_f32 v%d, v%d" % (S + e, S + e))
            for q in range(4, 8): A("v_cvt_pk_bf16_f32 v%d, v%d, v%d" % (P + q, S + 2*q, S + 2*q + 1))
            for e in (0, 1): A("v_exp_f32 v%d, v%d" % (N + e, N + e))
            A("v_mfma_f32_32x32x16_bf16 %s, %s, %s, %s" % (v(Oc, 16), v(Vc + 4, 4), v(P + 4, 4), v(Oc, 16)))
        A("""v_add_u32 v{ka}, 16384, v{ka}
             v_add_u32 v{ca}, 4, v{ca}
             s_add_u32 s58, s58, 1
             s_cmp_lt_u32 s58, 8
             s_cbranch_scc1 L_A{x}""".format(ka=vKA, ca=vCA2, x=x))
    A("s_cmp_ge_u32 s3, 4\ns_cbranch_scc1 L_Av")
    att_loop("k")
    A("s_branch L_AE")
    att_loop("v")
    A.label("L_AE")
    stamp(4); cstamp(15)
    def cnt_wait(reg, off, n):
        l, d = lab("cw"), lab("cd")
        A("s_mov_b32 s%d, 0" % sSPIN)
        A.label(l)
        A("""ds_read_b32 v146, v{r} offset:{o}
             s_add_u32 s{sp}, s{sp}, 1
             s_cmp_gt_u32 s{sp}, {SP}
             s_cbranch_scc1 {d}
             s_waitcnt lgkmcnt(0)
             v_cmp_gt_u32 vcc, {n}, v146
             s_nop 1
             s_cbranch_vccnz {l}""".format(r=reg, o=off, sp=sSPIN, SP=SPIN, d=d, l=l, n=n))
        A.label(d)
    A("""s_setprio 2
         v_xor_b32 v8, 8192, v{xw}
         v_xor_b32 v9, 1024, v{xl}
         v_xor_b32 v10, 16, v{xf}
         s_mov_b32 s23, 0x33800000
         s_mov_b32 s24, 0x53800000
         s_mov_b32 s25, 0x7f800000
         s_nop 0
         ds_write_b128 v{xw}, {a}
         ds_write_b128 v{xw}, {b} offset:1024
         ds_write_b32 v{xl}, v{l}""".format(xw=vXW, xl=vXL, xf=vXF, a=v(O1, 4), b=v(O1 + 4, 4), l=O1 + 8))
    wait(lg=0)
    one_lane(["ds_add_u32 v%d, v145" % vXF])
    cnt_wait(10, 0, 1)
    A("""ds_read_b128 v[32:35], v8
         ds_read_b128 v[36:39], v8 offset:1024
         ds_read_b32 v40, v9""")
    wait(lg=0)
    for r in range(9): A("v_add_f32 v%d, v%d, v%d" % (O + r, O + r, 32 + r))
    def rowsum():
        A("""v_mov_b32 v30, v{l}
             s_nop 1
             v_permlane32_swap_b32 v{l}, v30""".format(l=O + 8))
    rowsum()
    A("""v_max3_f32 v8, |v{o0}|, |v{o1}|, |v{o2}|
         v_max3_f32 v9, |v{o3}|, |v{o4}|, |v{o5}|
         v_max3_f32 v8, |v{o6}|, |v{o7}|, v8
         v_cmp_le_f32 s[26:27], s23, v{l}
         v_cmp_ge_f32 s[28:29], s24, v{l}
         v_max_f32 v8, v8, v9
         v_add_f32 v9, v{o0}, v{o1}
         v_add_f32 v10, v{o2}, v{o3}
         v_add_f32 v11, v{o4}, v{o5}
         v_add_f32 v29, v{o6}, v{o7}
         v_add_f32 v9, v9, v10
         v_add_f32 v11, v11, v29
         v_cmp_gt_f32 s[30:31], s25, v8
         v_cmp_o_f32 vcc, v9, v11
         s_and_b64 s[26:27], s[26:27], s[28:29]
         s_and_b64 s[30:31], s[30:31], vcc
         s_and_b64 s[26:27], s[26:27], s[30:31]
         s_cmp_eq_u64 s[26:27], -1
         s_cbranch_scc0 L_FB""".format(o0=O, o1=O+1, o2=O+2, o3=O+3, o4=O+4, o5=O+5, o6=O+6, o7=O+7, l=O+8))
    A.label("L_FBR")
    A("v_rcp_f32 v29, v%d\ns_nop 0" % (O + 8))
    for r in range(8): A("v_mul_f32 v%d, v%d, v29" % (O + r, O + r))
    for q in range(4): A("v_cvt_pk_bf16_f32 v%d, v%d, v%d" % (8 + q, O + 2*q, O + 2*q + 1))
    mode_stores(["buffer_store_dwordx4 v[8:11], v144, s[12:15], s88 offen"])
    cnt_wait(vCB, 36, 4)
    for k in range(8):
        for nt in range(2):
            A("ds_read_b128 %s, v%d offset:%d" % (v(WOF + 32*nt + 4*k, 4), vWA, 32768*nt + 1024*k))
        if k == 5: wait(lg=8)
    wait(vm=0)
    A("s_mov_b64 exec, 1")
    mode_stores(["buffer_store_dword v%d, off, s[12:15], s89" % vTAG])
    A("s_mov_b64 exec, -1")
    stamp(5)
    wait(lg=0)
    one_lane(["ds_add_u32 v%d, v145 offset:56" % vCB])
    poll_all(vFO, "s92", 29)
    stamp(6)
    for k in range(8):
        A("buffer_load_dwordx4 %s, v144, s[12:15], s%d offen offset:%d sc1" % (v(OF + 4*k, 4), 90 if k < 4 else 91, 1024 * (k & 3)))
    cnt_wait(vCB, 56, 8)
    for k in range(8):
        wait(vm=7 - k)
        for nt in range(2):
            A("v_mfma_f32_32x32x16_bf16 %s, %s, %s, %s" % (v(WACC + 16*nt, 16), v(WOF + 32*nt + 4*k, 4), v(OF + 4*k, 4), "0" if k == 0 else v(WACC + 16*nt, 16)))
    A("s_nop 10")
    for nt in range(2):
        for g in range(4):
            A("ds_write_b128 v%d, %s offset:%d" % (vPW + g, v(WACC + 16*nt + 4*g, 4), 4096*nt))
    wait(lg=0)
    one_lane(["ds_add_u32 v%d, v145 offset:60" % vCB])
    cnt_wait(vCB, 60, 8)
    for hh in range(2):
        for kq in range(4):
            A("ds_read_b128 %s, v%d offset:%d" % (v(16 + 16*hh + 4*kq, 4), vPR + hh, 16384*kq + 512*hh))
    for hh in range(2):
        b0 = 16 + 16*hh
        wait(lg=6 - 4*hh)
        for e in range(4): A("v_add_f32 v%d, v%d, v%d" % (b0 + e, b0 + e, b0 + 4 + e))
        wait(lg=4 - 4*hh)
        for e in range(4): A("v_add_f32 v%d, v%d, v%d" % (b0 + 8 + e, b0 + 8 + e, b0 + 12 + e))
        for e in range(4): A("v_add_f32 v%d, v%d, v%d" % (b0 + e, b0 + e, b0 + 8 + e))
        A("buffer_store_dwordx4 %s, v%d, s[36:39], s%d offen %s" % (v(b0, 4), vOUT, 93 if hh == 0 else 35, opts.get("ostore", "")))
    A("""s_or_b32 s23, s2, s3
         s_cmp_eq_u32 s23, 0
         s_cbranch_scc0 L_NE
         s_add_u32 s23, s{ep}, 1
         v_mov_b32 v3, s23""".format(ep=sEP))
    one_lane(["buffer_store_dword v3, off, s[12:15], 0 sc1"])
    A.label("L_NE")
    stamp(7)
    stamp_out()
    A.label("L_END")
    A("s_endpgm")
    n0_ = len(A.lines)
    A.label("L@_DC")
    A("""s_waitcnt vmcnt(0)
         s_mov_b64 exec, 1
         ds_add_u32 v{ca}, v145
         s_mov_b64 exec, -1
         s_branch L@_DCR""".format(ca=vCA2))
    A.label("L@_DM")
    if stamps == "dm": A("s_memtime s[94:95]\ns_waitcnt lgkmcnt(0)")
    A("""s_cmp_lt_u32 s58, 3
         s_cbranch_scc1 L@_DM2
         s_cmp_eq_u32 s58, 3
         s_cselect_b32 s24, 4, 8
         s_mov_b32 s{sp}, 0""".format(sp=sSPIN))
    A.label("L@_DM1")
    A("""ds_read_b32 v146, v{cb} offset:52
         s_add_u32 s{sp}, s{sp}, 1
         s_cmp_gt_u32 s{sp}, {SP}
         s_cbranch_scc1 L@_DM2
         s_waitcnt lgkmcnt(0)
         v_cmp_gt_u32 vcc, s24, v146
         s_nop 1
         s_cbranch_vccnz L@_DM1""".format(cb=vCB, sp=sSPIN, SP=SPIN))
    A.label("L@_DM2")
    A("""s_add_u32 s23, s58, 2
         s_lshl_b32 s24, s23, 14
         s_add_u32 m0, s24, s30
         s_add_u32 s23, s23, s{J}
         s_and_b32 s23, s23, 7
         s_lshl_b32 s23, s23, 14
         s_add_u32 s23, s23, s62
         buffer_load_dwordx4 v144, s[12:15], s23 offen sc1 lds
         buffer_load_dwordx4 v144, s[12:15], s23 offen offset:1024 sc1 lds
         s_branch L@_DR""".format(J=sJ) + ("x" if stamps == "dm" else ""))
    if stamps == "dm":
        for nm_ in ("L@_DR",):
            A.label(nm_ + "x")
            A("s_memtime s[96:97]\ns_waitcnt lgkmcnt(0)\ns_sub_u32 s96, s96, s94\ns_add_u32 m0, s58, %d\ns_nop 0\nv_writelane_b32 v%d, s96, m0\ns_branch %s" % (16 if nm_ == "L@_DR" else 24, VSTAMP, nm_))
    A.label("L@_AW")
    if stamps and stamps != "pad":
        A("s_memrealtime s[96:97]\ns_waitcnt lgkmcnt(0)")
    A("s_mov_b32 s%d, 0" % sSPIN)
    A.label("L@_AW2")
    A("""ds_read_b32 v{cn}, v{ca}
         s_add_u32 s{sp}, s{sp}, 1
         s_cmp_gt_u32 s{sp}, {SP}
         s_cbranch_scc1 L@_AR
         s_waitcnt lgkmcnt(0)
         v_cmp_gt_u32 vcc, 12, v{cn}
         s_nop 1
         s_cbranch_vccnz L@_AW2""".format(cn=vCN, ca=vCA2, sp=sSPIN, SP=SPIN))
    if stamps and stamps != "pad":
        A("s_memrealtime s[98:99]\ns_waitcnt lgkmcnt(0)\ns_sub_u32 s98, s98, s96\ns_add_u32 m0, s58, 48\ns_nop 0\nv_writelane_b32 v%d, s98, m0" % VSTAMP)
    A("s_branch L@_AR")
    stub = A.lines[n0_:]
    del A.lines[n0_:]
    import re
    for x in "kv":
        A.lines += [re.sub(r"L@_(\w+)", lambda m_: "L_" + m_.group(1) + x, l_) for l_ in stub]
    A.label("L_FB")
    A("v_mov_b32 v29, 0xff800000\ns_mov_b32 s58, 0\ns_mov_b32 s23, s63")
    wait(lg=0)
    A.label("L_FB1")
    A("buffer_load_dwordx4 %s, v144, s[12:15], s23 offen sc1" % v(K, 4))
    wait(vm=0)
    A("v_mfma_f32_32x32x16_bf16 %s, %s, %s, 0\ns_nop 7\ns_nop 3" % (v(S0, 16), v(K, 4), v(Q, 4)))
    for q in range(8): A("v_max3_f32 v29, v29, v%d, v%d" % (S0 + 2*q, S0 + 2*q + 1))
    A("""s_add_u32 s23, s23, 2048
         s_add_u32 s58, s58, 1
         s_cmp_lt_u32 s58, 64
         s_cbranch_scc1 L_FB1
         v_mov_b32 v30, v29
         s_nop 1
         v_permlane32_swap_b32 v29, v30
         v_max_f32 v29, v29, v30
         s_mov_b32 s23, s63
         s_mov_b32 s58, 0""")
    for r in range(16): A("v_xor_b32 v%d, 0x80000000, v29\nv_mov_b32 v%d, 0" % (S1 + r, O + r))
    A.label("L_FB2")
    A("""buffer_load_dwordx4 {k}, v144, s[12:15], s23 offen sc1
         s_mov_b64 exec, s[{m}:{m1}]
         buffer_load_dwordx4 {a}, v144, s[12:15], s23 offen offset:1024 sc1
         buffer_load_dwordx4 {b}, v144, s[12:15], s23 offen offset:1280 sc1
         s_mov_b64 exec, -1""".format(k=v(K, 4), m=sVM, m1=sVM+1, a=v(V0, 4), b=v(V1, 4)))
    wait(vm=0)
    A("v_mfma_f32_32x32x16_bf16 %s, %s, %s, %s\ns_nop 7\ns_nop 3" % (v(S0, 16), v(K, 4), v(Q, 4), v(S1, 16)))
    for e in range(16): A("v_exp_f32 v%d, v%d" % (S0 + e, S0 + e))
    A("s_nop 0")
    for q in range(8): A("v_cvt_pk_bf16_f32 v%d, v%d, v%d" % (P + q, S0 + 2*q, S0 + 2*q + 1))
    A("s_nop 1")
    A("v_mfma_f32_32x32x16_bf16 %s, %s, %s, %s" % (v(O, 16), v(V0, 4), v(P, 4), v(O, 16)))
    A("v_mfma_f32_32x32x16_bf16 %s, %s, %s, %s" % (v(O, 16), v(V1, 4), v(P + 4, 4), v(O, 16)))
    A("""s_add_u32 s23, s23, 2048
         s_add_u32 s58, s58, 1
         s_nop 7
         s_cmp_lt_u32 s58, 64
         s_cbranch_scc1 L_FB2
         s_nop 7""")
    rowsum()
    A("s_branch L_FBR")
    A.label("L_CODE_END")
    if opts.get("drop"):
        i0 = A.mark0; i1 = A.lines.index("L_ATT:")
        keep_ = []
        for n_, l_ in enumerate(A.lines):
            if i0 <= n_ < i1:
                d_ = opts["drop"]
                if "m" in d_ and l_.startswith("v_mfma"): l_ = "s_nop 0"
                if "v" in d_ and l_.startswith(("v_pk_fma", "v_fmac", "v_fma_", "v_cvt_pk", "v_add_f32", "v_mul_f32")): continue
                if "r" in d_ and l_.startswith("ds_read_b128"): continue
                if "w" in d_ and l_.startswith("ds_write_b128"): continue
                if "d" in d_ and l_.endswith(" lds") and ("s[36:39]" in l_ or "s[40:43]" in l_): l_ = "buffer_load_dword v165, off, s[12:15], 0"
                if "y" in d_ and l_.startswith("buffer_load_dwordx4 v[") and ", v16," in l_: l_ = "buffer_load_dword v165, off, s[12:15], 0"
            keep_.append(l_)
        A.lines = keep_
    return A

HEADER = """; fused S5 SSM + multi-head attention block, one persistent launch: 256 workgroups x 12 waves
; @launch grid=(256,1,1) block=(768,1,1) lds=%d
.amdgcn_target "amdgcn-amd-amdhsa--gfx950"
.text
.globl %s_kernel
""" % (LDS_BYTES, NAME)
FOOTER = """.section .rodata,"a"
.p2align 6
.amdhsa_kernel %s_kernel
  .amdhsa_next_free_vgpr 168
  .amdhsa_next_free_sgpr 102
  .amdhsa_accum_offset 168
  .amdhsa_group_segment_fixed_size 0
  .amdhsa_kernarg_size 120
  .amdhsa_user_sgpr_count 2
  .amdhsa_user_sgpr_kernarg_segment_ptr 1
  .amdhsa_system_sgpr_workgroup_id_x 1
.end_amdhsa_kernel
""" % NAME

def build(path, **kw):
    A = gen(**kw)
    probs = lint(A.lines)
    for p in probs: print("HAZARD:", p)
    body = A.text()
    pre = ""
    open(path, "w").write(HEADER + body + pre + FOOTER)
    return probs

if __name__ == "__main__":
    out = sys.argv[1] if len(sys.argv) > 1 else "cdna_kernels/%s.s" % NAME
    kw = {}
    if "stamps" in sys.argv: kw["stamps"] = True
    kw["opts"] = {}
    for a in sys.argv:
        if "=" in a:
            k_, v_ = a.split("=")
            try: v_ = float(v_) if "." in v_ else int(v_)
            except ValueError: pass
            kw["opts"][k_] = v_
    if "dbg" in sys.argv: kw["stamps"] = "dbg"
    if "bar" in sys.argv: kw["stamps"] = "bar"
    if "hb" in sys.argv: kw["stamps"] = "hb"
    if "dm" in sys.argv: kw["stamps"] = "dm"
    for a in sys.argv:
        if a.startswith("pad"):
            kw["stamps"] = "pad"; kw["opts"]["padk"] = int(a[3:])
    if "safe" in sys.argv: kw["force_safe"] = True
    build(out, **kw)
```
